```python
import torch

def _softmax(x, axis=-1):
    return torch.softmax(x, dim=axis)
def _gelu(x):
    return torch.nn.functional.gelu(x, approximate="tanh")
def _silu(x):
    return torch.nn.functional.silu(x)
def _sigmoid(x):
    return torch.sigmoid(x)
def _layernorm(x, axis=-1, eps=1e-5):
    m = x.mean(dim=axis, keepdim=True)
    v = x.var(dim=axis, keepdim=True, unbiased=False)
    return (x - m) / torch.sqrt(v + eps)
def _scatter_add(tgt, idx, src, axis=0):
    return tgt.clone().index_add_(axis, idx, src)
def _segment_sum(src, seg, n):
    out = torch.zeros((n,) + src.shape[1:], dtype=src.dtype)
    return out.index_add_(0, seg, src)
def _pad(x, pw):
    flat = tuple(v for pair in reversed(pw) for v in pair)
    return torch.nn.functional.pad(x, flat)

kernel_name = 'gated_mix__grouped_kv_mqa__compressed_kv_cla__prompt'

def setup_inputs():

    _w = (lambda a: (lambda t: t.to(torch.bfloat16) if t.is_floating_point() else t)(torch.as_tensor(a)))
    def _A_setup():
        B, S, D, H = 1, 2048, 512, 32
        Dh = D // H
        return {
            "x": _w((lambda *s: torch.randn(*s, dtype=torch.bfloat16) * 0.05)(B, S, D)),
            "wq": _w((lambda *s: torch.randn(*s, dtype=torch.bfloat16) * 1.6)(D, H * Dh)),
            "wk": _w((lambda *s: torch.randn(*s, dtype=torch.bfloat16) * 1.6)(D, Dh)),
            "wv": _w((lambda *s: torch.randn(*s, dtype=torch.bfloat16) * 0.8)(D, Dh)),
            "wo": _w((lambda *s: torch.randn(*s, dtype=torch.bfloat16) * 0.8)(H * Dh, D)),
        }
    _A_in = _A_setup()

    def _B_setup():
        B, H, Sq, Sk, D, M = 1, 32, 2048, 2048, 128, 512
        Dc = 4 * D
        return {
            "x": _w((lambda *s: torch.randn(*s, dtype=torch.bfloat16) * 0.05)(B, Sq, M)),
            "c_kv": _w((lambda *s: torch.randn(*s, dtype=torch.bfloat16) * 1.6)(B, Sk, Dc)),
            "w_q": _w((lambda *s: torch.randn(*s, dtype=torch.bfloat16) * 6.4)(M, H, D) * (M ** -0.5)),
            "w_uk": _w((lambda *s: torch.randn(*s, dtype=torch.bfloat16) * 6.4)(Dc, H, D) * (Dc ** -0.5)),
            "w_uv": _w((lambda *s: torch.randn(*s, dtype=torch.bfloat16) * 1.6)(Dc, H, D) * (Dc ** -0.5)),
            "w_o": _w((lambda *s: torch.randn(*s, dtype=torch.bfloat16) * 1.6)(H, D, M) * ((H * D) ** -0.5)),
        }
    _B_in = _B_setup()

    return {
        "A_x": _A_in["x"],
        "A_wq": _A_in["wq"],
        "A_wk": _A_in["wk"],
        "A_wv": _A_in["wv"],
        "A_wo": _A_in["wo"],
        "B_x": _B_in["x"],
        "B_c_kv": _B_in["c_kv"],
        "B_w_q": _B_in["w_q"],
        "B_w_uk": _B_in["w_uk"],
        "B_w_uv": _B_in["w_uv"],
        "B_w_o": _B_in["w_o"],
        "gate_w": _w((lambda *s: torch.randn(*s, dtype=torch.bfloat16) * 0.1)(512) * 16.0),
    }

def reference(A_x, A_wq, A_wk, A_wv, A_wo, B_x, B_c_kv, B_w_q, B_w_uk, B_w_uv, B_w_o, gate_w):
    def _A_ref(x, wq, wk, wv, wo):
        B, S, D = x.shape
        H = 32
        Dh = D // H
        q = (lambda x, *d: x.permute(*d))((x @ wq).reshape(B, S, H, Dh), 0, 2, 1, 3)
        k = x @ wk
        v = x @ wv
        scores = torch.einsum("bhqd,bkd->bhqk", q, k) * (Dh ** -0.5)
        p = _softmax(scores, axis=-1)
        o = torch.einsum("bhqk,bkd->bhqd", p, v)
        return (lambda x, *d: x.permute(*d))(o, 0, 2, 1, 3).reshape(B, S, H * Dh) @ wo

    def _B_ref(x, c_kv, w_q, w_uk, w_uv, w_o):
        B, Sq, M = x.shape[0], x.shape[1], x.shape[2]
        Sk = c_kv.shape[1]
        H, D = w_q.shape[1], w_q.shape[2]
        q = torch.einsum("bqm,mhd->bhqd", x, w_q)
        k = torch.einsum("bkc,chd->bhkd", c_kv, w_uk)
        v = torch.einsum("bkc,chd->bhkd", c_kv, w_uv)
        scores = torch.einsum("bhqd,bhkd->bhqk", q, k) * (D ** -0.5)
        off = Sk - Sq
        qi = torch.arange(Sq)[:, None]
        kj = torch.arange(Sk)[None, :]
        cmask = kj <= (qi + off)
        scores = torch.where(cmask[None, None], scores, -1e9)
        p = _softmax(scores, axis=-1)
        ctx = torch.einsum("bhqk,bhkd->bhqd", p, v)
        return torch.einsum("bhqd,hdm->bqm", ctx, w_o)

    x = A_x
    g = _sigmoid((x * gate_w).sum(-1, keepdims=True))
    a = _A_ref(x, A_wq, A_wk, A_wv, A_wo)
    b = _B_ref(x, B_c_kv, B_w_q, B_w_uk, B_w_uv, B_w_o)
    return g * a + (1 - g) * b
```

```python
import re

class Asm:
    def __init__(self):
        self.lines = []
        self.uid = 0
    def __call__(self, s):
        for l in s.strip("\n").split("\n"):
            l = l.strip()
            if l:
                self.lines.append("    " + l if not l.endswith(":") else l)
    def label(self, name):
        self.lines.append(name + ":")
    def newlabel(self, base="L"):
        self.uid += 1
        return f"{base}_{self.uid}"
    def comment(self, s):
        self.lines.append("    ; " + s)
    def raw(self, s):
        self.lines.append(s)
    def text(self):
        return "\n".join(self.lines) + "\n"

def vr(a, n=1):
    return f"v{a}" if n == 1 else f"v[{a}:{a+n-1}]"
def sr(a, n=1):
    return f"s{a}" if n == 1 else f"s[{a}:{a+n-1}]"

_REG = re.compile(r"\b([vsa])(\d+)\b|\b([vsa])\[(\d+):(\d+)\]")
def regs_of(tok):
    out = set()
    for m in _REG.finditer(tok):
        if m.group(1):
            out.add((m.group(1), int(m.group(2))))
        else:
            for i in range(int(m.group(4)), int(m.group(5)) + 1):
                out.add((m.group(3), i))
    if re.search(r"\bvcc\b", tok): out.add(("s", 106)); out.add(("s", 107))
    if re.search(r"\bm0\b", tok): out.add(("s", 124))
    return out

TRANS = ("v_exp_", "v_log_", "v_rcp_", "v_rsq_", "v_sqrt_", "v_sin_", "v_cos_")
def parse(line):
    l = line.split(";")[0].strip()
    if not l or l.endswith(":") or l.startswith("."):
        return None
    parts = l.split(None, 1)
    mn = parts[0]
    ops = [o.strip() for o in parts[1].split(",")] if len(parts) > 1 else []
    return mn, ops

def classify(mn, ops):
    w, r = set(), set()
    kind = "other"
    if mn.startswith("v_mfma"):
        kind = "mfma"
        w = regs_of(ops[0]); a = regs_of(ops[1]); b = regs_of(ops[2]); c = regs_of(ops[3])
        passes = 8 if "32x32" in mn else 4
        return kind, w, a | b | c, dict(a=a | b, c=c, passes=passes)
    if mn.startswith("v_cmp"):
        kind = "valu"; w = regs_of(ops[0])
        for o in ops[1:]: r |= regs_of(o)
        return kind, w, r, {}
    if mn.startswith("v_"):
        kind = "trans" if mn.startswith(TRANS) else "valu"
        w = regs_of(ops[0])
        rest = ops[1:]
        if mn.startswith(("v_add_co", "v_sub_co", "v_addc_co", "v_subb_co")):
            w |= regs_of(ops[1]); rest = ops[2:]
        for o in rest: r |= regs_of(o)
        if mn.startswith(("v_fmac", "v_dot2c", "v_pk_fmac")) or "UNUSED_PRESERVE" in " ".join(ops): r |= regs_of(ops[0])
        if mn.startswith("v_permlane32_swap") or mn.startswith("v_permlane16_swap"):
            w |= regs_of(ops[1]); r |= regs_of(ops[0])
        if mn.startswith("v_cndmask") and len(ops) == 3: r |= regs_of("vcc")
        return kind, w, r, {"sdwa": "sdwa" in mn or "dst_sel" in " ".join(ops)}
    if mn.startswith(("buffer_load", "global_load")):
        kind = "vmem"
        lds = " lds" in (" " + " ".join(ops)) or "_lds_" in mn
        if lds:
            for o in ops: r |= regs_of(o)
            r |= regs_of("m0")
        else:
            w = regs_of(ops[0])
            for o in ops[1:]: r |= regs_of(o)
        return kind, w, r, {"lds": lds}
    if mn.startswith(("buffer_store", "global_store", "buffer_atomic", "global_atomic")):
        for o in ops: r |= regs_of(o)
        return "vmem", w, r, {"store": True}
    if mn.startswith("ds_read") or mn.startswith("ds_bpermute") or mn.startswith("ds_swizzle") or mn.startswith("ds_permute"):
        w = regs_of(ops[0])
        for o in ops[1:]: r |= regs_of(o)
        return "ds", w, r, {}
    if mn.startswith("ds_"):
        for o in ops: r |= regs_of(o)
        return "ds", w, r, {}
    if mn.startswith("s_"):
        if mn.startswith(("s_cmp", "s_cbranch", "s_branch", "s_waitcnt", "s_barrier", "s_nop", "s_endpgm", "s_setprio", "s_sleep")):
            for o in ops: r |= regs_of(o)
            return "salu", w, r, {}
        if ops:
            w = regs_of(ops[0])
            for o in ops[1:]: r |= regs_of(o)
        return "salu", w, r, {}
    return kind, w, r, {}

def check_hazards(text, verbose=True):
    hist = []
    pos = 0
    probs = []
    for ln, line in enumerate(text.split("\n")):
        p = parse(line)
        if p is None: continue
        mn, ops = p
        kind, w, r, ex = classify(mn, ops)
        for (ppos, pk, pw, pr, pex, pline) in reversed(hist[-40:]):
            d = pos - ppos - 1
            need = 0; why = ""
            if pk in ("valu", "trans") and kind == "mfma" and (pw & r): need, why = 2, "valu->mfma"
            if pk == "mfma":
                P = pex["passes"]
                tab = {4: (8, 6, 3), 8: (12, 10, 7)}[P]
                if kind == "mfma":
                    if pw & ex["a"]: need, why = tab[0], "mfmaD->mfmaAB"
                    elif pw & ex["c"] and not (pw == ex["c"] and ex["passes"] == P): need, why = tab[1], "mfmaD->mfmaC partial"
                elif kind in ("valu", "trans"):
                    if pw & (r | w): need, why = tab[0], "mfmaD->valu"
                    elif pex["c"] & w: need, why = tab[2], "mfmaC WAR valu"
                elif kind in ("vmem", "ds"):
                    if pw & (r | w): need, why = tab[0], "mfmaD->mem"
            if pk == "trans" and kind in ("valu",) and (pw & r): need, why = max(need, 1), "trans->valu"
            if pk in ("valu",) and pex.get("sdwa") and kind in ("valu", "trans") and (pw & (r | w)): need, why = max(need, 1), "sdwa->valu"
            if pk in ("valu", "trans") and kind == "vmem" and any(x[0] == "s" for x in (pw & r)): need, why = 5, "valu sgpr->vmem"
            if pk in ("valu", "trans") and kind in ("valu", "trans") and any(x[0] == "s" for x in (pw & r)): need, why = max(need, 2), "valu sgpr->valu"
            if pk in ("valu", "trans") and mn.startswith(("v_readfirstlane", "v_readlane")) and (pw & r): need, why = max(need, 1), "valu->readlane"
            if pk in ("valu", "trans") and mn.startswith("v_permlane") and (pw & r): need, why = max(need, 2), "valu->permlane"
            if pk == "salu" and ("s", 124) in pw and kind == "vmem" and ex.get("lds"): need, why = 1, "m0->dma"
            if pk == "vmem" and pex.get("store") and kind in ("valu", "trans") and (pr & w) and "dwordx4" in pline: need, why = max(need, 2), "store data WAR"
            if need > d:
                probs.append((ln + 1, why, need, d, pline.strip(), line.strip()))
        n = 1
        if mn == "s_nop": n = int(ops[0], 0) + 1
        hist.append((pos, kind, w, r, ex, line))
        pos += n
    if verbose:
        for p in probs: print("HAZARD line %d %s need %d have %d\n   %s\n   %s" % p)
    return probs
```

```python
import sys
from asmlib import *

NAME = "gated_mix__grouped_kv_mqa__compressed_kv_cla__prompt"
KA_X, KA_WQ, KA_WK, KA_WV, KA_WO, KA_BX, KA_CKV, KA_BWQ, KA_WUK, KA_WUV, KA_BWO, KA_GATE, KA_OUT, KA_DBG, KA_WS = [8*i for i in range(15)]
MB = 1 << 20
KF_OFF = 0
VF_OFF = 16 * MB
KA_OFF = 32 * MB
VA_OFF = 32 * MB + 64 * 1024
G_OFF = 32 * MB + 256 * 1024
ZF_OFF = 33 * MB
ZF_RG = 288 * 1024
WS_BYTES = 64 * MB
LOG2E = 1.4426950408889634
import struct
def f32hex(x):
    return "0x%08x" % struct.unpack("<I", struct.pack("<f", x))[0]

MFMA = "v_mfma_f32_32x32x16_bf16"

def srd(a, s, base_lo, nbytes, add=0):
    if add:
        a(f"s_add_u32 s{s}, s{base_lo}, {add}")
        a(f"s_addc_u32 s{s+1}, s{base_lo+1}, 0")
    else:
        a(f"s_mov_b32 s{s}, s{base_lo}")
        a(f"s_mov_b32 s{s+1}, s{base_lo+1}")
    a(f"s_mov_b32 s{s+2}, {nbytes}")
    a(f"s_mov_b32 s{s+3}, 0x00020000")

def kernel_begin(a, name):
    a.raw(f".globl {name}\n.p2align 8\n.type {name},@function\n{name}:")

def kernel_desc(name, vgpr, sgpr=102, accum=None):
    accum = accum if accum is not None else ((vgpr + 3) // 4) * 4
    return f""".amdhsa_kernel {name}
  .amdhsa_next_free_vgpr {vgpr}
  .amdhsa_next_free_sgpr {sgpr}
  .amdhsa_accum_offset {accum}
  .amdhsa_group_segment_fixed_size 0
  .amdhsa_kernarg_size 120
  .amdhsa_user_sgpr_count 2
  .amdhsa_user_sgpr_kernarg_segment_ptr 1
  .amdhsa_system_sgpr_workgroup_id_x 1
.end_amdhsa_kernel
"""

def pack8(a, dst, src):
    for i in range(4):
        a(f"v_cvt_pk_bf16_f32 v{dst+i}, v{src+2*i}, v{src+2*i+1}")

def gen_k0(a):
    name = "k0_kernel"
    kernel_begin(a, name)
    a(f"""
    s_cmp_ge_u32 s2, 64
    s_cbranch_scc1 k0_end
    s_load_dwordx2 s[4:5], s[0:1], {KA_X}
    s_load_dwordx4 s[24:27], s[0:1], {KA_WK}
    s_load_dwordx2 s[28:29], s[0:1], {KA_GATE}
    s_load_dwordx2 s[30:31], s[0:1], {KA_WS}
    s_waitcnt lgkmcnt(0)
    """)
    srd(a, 8, 4, 2*MB)
    srd(a, 12, 24, 16384)
    srd(a, 16, 26, 16384)
    srd(a, 20, 28, 1024)
    srd(a, 32, 30, WS_BYTES)
    a("v_lshlrev_b32 v1, 4, v0")
    for reg, base in ((16, 0), (12, 16384)):
        for g in range(4):
            a(f"s_mov_b32 m0, {base + g*4096}")
            a(f"s_mov_b32 s36, {g*4096}")
            for i in range(4):
                a(f"buffer_load_dwordx4 v1, s[{reg}:{reg+3}], s36 offen offset:{i*1024} lds")
    a("s_mov_b32 m0, 32768")
    a("s_nop 0")
    a("buffer_load_dwordx4 v1, s[20:23], 0 offen lds")
    a("""
    v_and_b32 v2, 31, v0
    v_lshrrev_b32 v3, 5, v0
    s_lshl_b32 s3, s2, 15
    v_lshlrev_b32 v4, 10, v2
    v_lshl_add_u32 v4, v3, 4, v4
    v_add_u32 v4, s3, v4
    """)
    for s in range(32):
        a(f"buffer_load_dwordx4 v[{64+4*s}:{67+4*s}], v4, s[8:11], 0 offen offset:{s*32}")
    a("""
    v_lshrrev_b32 v5, 4, v0
    v_and_b32 v6, 15, v0
    v_and_b32 v7, 1, v5
    v_lshlrev_b32 v7, 14, v7
    v_lshrrev_b32 v8, 1, v5
    v_lshlrev_b32 v8, 3, v8
    v_lshrrev_b32 v9, 2, v6
    v_add_u32 v8, v8, v9
    v_lshl_add_u32 v7, v8, 5, v7
    v_and_b32 v9, 3, v6
    v_lshl_add_u32 v7, v9, 3, v7
    v_lshlrev_b32 v10, 4, v3
    v_add_u32 v10, 32768, v10
    """)
    for r in range(32):
        a(f"v_mov_b32 v{192+r}, 0")
    a("v_mov_b32 v11, 0")
    a("s_waitcnt vmcnt(0)")
    a("s_barrier")
    for s in range(32):
        wf = 16 + 8 * (s & 1)
        a(f"ds_read_b64_tr_b16 v[{wf}:{wf+1}], v7 offset:{s*512}")
        a(f"ds_read_b64_tr_b16 v[{wf+2}:{wf+3}], v7 offset:{s*512+128}")
        a(f"ds_read_b128 v[{wf+4}:{wf+7}], v10 offset:{s*32}")
        a("s_waitcnt lgkmcnt(0)")
        xf = 64 + 4 * s
        a(f"{MFMA} v[192:207], v[{wf}:{wf+3}], v[{xf}:{xf+3}], v[192:207]")
        a(f"{MFMA} v[208:223], v[{xf}:{xf+3}], v[{wf}:{wf+3}], v[208:223]")
        for i in range(4):
            a(f"v_dot2_f32_bf16 v11, v{xf+i}, v{wf+4+i}, v11")
    a("s_nop 15")
    a("s_nop 3")
    pack8(a, 32, 200)
    a(f"s_lshl_b32 s3, s2, 10")
    a(f"s_add_u32 s36, s3, {KA_OFF}")
    a("buffer_store_dwordx4 v[32:35], v1, s[32:35], s36 offen")
    pack8(a, 36, 208)
    pack8(a, 40, 216)
    a("""
    v_mov_b32 v12, 0x3f803f80
    v_cmp_eq_u32 vcc, 16, v2
    s_nop 1
    v_cndmask_b32 v12, 0, v12, vcc
    v_cmp_gt_u32 vcc, 16, v2
    s_nop 1
    """)
    for i in range(8):
        a(f"v_cndmask_b32 v{36+i}, v12, v{36+i}, vcc")
    a(f"s_lshl_b32 s3, s2, 11")
    a(f"s_add_u32 s36, s3, {VA_OFF}")
    a("buffer_store_dwordx4 v[36:39], v1, s[32:35], s36 offen")
    a("buffer_store_dwordx4 v[40:43], v1, s[32:35], s36 offen offset:1024")
    a(f"""
    v_xor_b32 v13, 32, v0
    v_lshlrev_b32 v13, 2, v13
    ds_bpermute_b32 v14, v13, v11
    s_waitcnt lgkmcnt(0)
    v_add_f32 v11, v11, v14
    v_cvt_pk_bf16_f32 v11, v11, v11
    v_lshlrev_b32 v11, 16, v11
    v_mul_f32 v11, {f32hex(-LOG2E)}, v11
    v_exp_f32 v11, v11
    s_nop 0
    v_add_f32 v11, 1.0, v11
    v_rcp_f32 v11, v11
    s_nop 0
    v_cvt_pk_bf16_f32 v11, v11, v11
    v_lshlrev_b32 v44, 16, v11
    v_sub_f32 v45, 1.0, v44
    v_cvt_pk_bf16_f32 v45, v45, v45
    v_lshlrev_b32 v45, 16, v45
    v_lshlrev_b32 v13, 3, v2
    s_lshl_b32 s3, s2, 8
    s_add_u32 s36, s3, {G_OFF}
    v_cmp_gt_u32 vcc, 32, v0
    s_and_saveexec_b64 s[38:39], vcc
    buffer_store_dwordx2 v[44:45], v13, s[32:35], s36 offen
    s_waitcnt vmcnt(0)
    k0_end:
    s_endpgm
    """)
    return name, "grid=(64,1,1) block=(64,1,1) lds=34816", kernel_desc(name, 256)

def gen_k1(a):
    name = "k1_kernel"
    kernel_begin(a, name)
    a(f"""
    s_cmp_ge_u32 s2, 256
    s_cbranch_scc1 k1_end
    s_load_dwordx2 s[4:5], s[0:1], {KA_CKV}
    s_load_dwordx4 s[24:27], s[0:1], {KA_WUK}
    s_load_dwordx2 s[30:31], s[0:1], {KA_WS}
    v_lshrrev_b32 v2, 6, v0
    v_and_b32 v0, 63, v0
    s_nop 0
    v_readfirstlane_b32 s3, v2
    s_and_b32 s6, s2, 31
    s_lshr_b32 s7, s2, 5
    s_waitcnt lgkmcnt(0)
    """)
    srd(a, 8, 4, 2*MB)
    srd(a, 12, 24, 4*MB)
    srd(a, 16, 26, 4*MB)
    srd(a, 20, 30, WS_BYTES)
    a("v_lshlrev_b32 v1, 4, v0")
    a("""
    v_lshrrev_b32 v3, 3, v0
    v_lshrrev_b32 v4, 4, v0
    v_and_b32 v5, 7, v0
    v_xor_b32 v6, v5, v4
    v_xor_b32 v7, 4, v6
    s_lshl_b32 s28, s7, 8
    s_lshl_b32 s29, s3, 5
    s_add_u32 s28, s28, s29
    v_add_u32 v3, s28, v3
    v_lshlrev_b32 v3, 10, v3
    v_lshl_add_u32 v8, v6, 4, v3
    v_lshl_add_u32 v9, v7, 4, v3
    """)
    for jj in range(4):
        a(f"s_mov_b32 s{40+jj}, {jj*7168}")
    a("""
    v_and_b32 v5, 15, v0
    v_lshlrev_b32 v6, 2, v4
    v_xor_b32 v5, v5, v6
    s_lshl_b32 s28, s3, 3
    v_add_u32 v6, s28, v4
    v_lshlrev_b32 v6, 13, v6
    v_lshl_add_u32 v6, v5, 4, v6
    s_lshl_b32 s28, s6, 8
    v_add_u32 v10, s28, v6
    """)
    a(f"s_mov_b32 s44, {32768-1024}")
    a("""
    s_lshl_b32 s45, s3, 12
    s_lshl_b32 s46, s3, 11
    s_add_u32 s47, s46, 49152
    s_add_u32 s46, s46, 32768
    """)
    def dma(st):
        a(f"s_add_u32 m0, s45, {st*65536}")
        a("s_nop 0")
        a("buffer_load_dwordx4 v8, s[8:11], s40 offen lds")
        a("buffer_load_dwordx4 v9, s[8:11], s41 offen offset:1024 lds")
        a("buffer_load_dwordx4 v8, s[8:11], s42 offen offset:2048 lds")
        a("buffer_load_dwordx4 v9, s[8:11], s43 offen offset:3072 lds")
        a(f"s_add_u32 m0, s46, {st*65536}")
        a("s_nop 0")
        a("buffer_load_dwordx4 v10, s[12:15], 0 offen lds")
        a("buffer_load_dwordx4 v10, s[12:15], s44 offen offset:1024 lds")
        a(f"s_add_u32 m0, s47, {st*65536}")
        a("s_nop 0")
        a("buffer_load_dwordx4 v10, s[16:19], 0 offen lds")
        a("buffer_load_dwordx4 v10, s[16:19], s44 offen offset:1024 lds")
        a("v_add_u32 v8, 128, v8")
        a("v_add_u32 v9, 128, v9")
        a("v_add_u32 v10, 0x80000, v10")
    dma(0)
    a("""
    v_and_b32 v3, 31, v0
    s_and_b32 s28, s3, 3
    s_lshl_b32 s28, s28, 6
    v_add_u32 v3, s28, v3
    v_lshlrev_b32 v3, 7, v3
    v_lshrrev_b32 v5, 5, v0
    v_bfe_u32 v6, v0, 1, 3
    v_xor_b32 v5, v5, v6
    v_lshl_add_u32 v12, v5, 4, v3
    v_xor_b32 v13, 32, v12
    v_xor_b32 v14, 64, v12
    v_xor_b32 v15, 96, v12
    v_add_u32 v16, 0x10000, v12
    v_add_u32 v17, 0x10000, v13
    v_add_u32 v18, 0x10000, v14
    v_add_u32 v19, 0x10000, v15
    """)
    a("""
    v_lshrrev_b32 v3, 5, v0
    v_bfe_u32 v5, v0, 2, 2
    v_lshl_add_u32 v3, v3, 3, v5
    v_lshlrev_b32 v3, 8, v3
    v_bfe_u32 v6, v0, 4, 1
    v_lshl_add_u32 v3, v6, 5, v3
    v_and_b32 v6, 3, v0
    v_lshl_add_u32 v3, v6, 3, v3
    v_lshl_add_u32 v3, v5, 6, v3
    s_lshr_b32 s28, s3, 2
    s_lshl_b32 s28, s28, 14
    s_add_u32 s28, s28, 32768
    v_add_u32 v20, s28, v3
    v_xor_b32 v21, 64, v20
    v_xor_b32 v22, 128, v20
    v_xor_b32 v23, 192, v20
    v_add_u32 v24, 0x10000, v20
    v_add_u32 v25, 0x10000, v21
    v_add_u32 v26, 0x10000, v22
    v_add_u32 v27, 0x10000, v23
    """)
    for r in range(128):
        a(f"v_mov_b32 v{128+r}, 0")
    a("s_cmp_ge_u32 s3, 4")
    a("s_cbranch_scc1 k1_vtype")
    FB = 64
    def reads(st, s, buf):
        f = FB + 24 * buf
        ca = 12 + 4 * st + s
        a(f"ds_read_b128 v[{f}:{f+3}], v{ca}")
        a(f"ds_read_b128 v[{f+4}:{f+7}], v{ca} offset:4096")
        for m in range(4):
            wa = 20 + 4 * st + m
            a(f"ds_read_b64_tr_b16 v[{f+8+4*m}:{f+9+4*m}], v{wa} offset:{s*4096}")
            a(f"ds_read_b64_tr_b16 v[{f+10+4*m}:{f+11+4*m}], v{wa} offset:{s*4096+1024}")
    def mfmas(buf, vtype):
        f = FB + 24 * buf
        for m in range(4):
            for kb in range(2):
                acc = 128 + 16 * (m * 2 + kb)
                c = f"v[{f+4*kb}:{f+4*kb+3}]"; w = f"v[{f+8+4*m}:{f+11+4*m}]"
                if vtype: a(f"{MFMA} v[{acc}:{acc+15}], {c}, {w}, v[{acc}:{acc+15}]")
                else:     a(f"{MFMA} v[{acc}:{acc+15}], {w}, {c}, v[{acc}:{acc+15}]")
    for vtype in (0, 1):
        t = "v" if vtype else "k"
        if vtype: a.label("k1_vtype")
        a("s_mov_b32 s48, 0")
        a.label(f"k1_loop_{t}")
        for st in (0, 1):
            a("s_waitcnt vmcnt(0)")
            a("s_barrier")
            if st == 0:
                dma(1)
            else:
                a("s_cmp_ge_u32 s48, 3")
                a(f"s_cbranch_scc1 k1_skip_{t}")
                dma(0)
                a.label(f"k1_skip_{t}")
            reads(st, 0, 0)
            for s in range(4):
                if s < 3:
                    reads(st, s + 1, (s + 1) & 1)
                    a("s_waitcnt lgkmcnt(10)")
                else:
                    a("s_waitcnt lgkmcnt(0)")
                mfmas(s & 1, vtype)
        a("s_add_u32 s48, s48, 1")
        a("s_cmp_lt_u32 s48, 4")
        a(f"s_cbranch_scc1 k1_loop_{t}")
        a("s_nop 15")
        a(f"""
        s_lshl_b32 s28, s6, 19
        s_lshl_b32 s29, s7, 16
        s_add_u32 s28, s28, s29
        s_and_b32 s29, s3, 3
        s_lshl_b32 s29, s29, 14
        s_add_u32 s28, s28, s29
        s_add_u32 s28, s28, {VF_OFF if vtype else KF_OFF}
        """)
        n = 0
        for m in range(4):
            for kb in range(2):
                acc = 128 + 16 * (m * 2 + kb)
                for g in range(2):
                    tmp = 64 + 4 * (n % 8); n += 1
                    pack8(a, tmp, acc + 8 * g)
                    if vtype: off = kb * 8192 + (g * 4 + m) * 1024
                    else:     off = kb * 8192 + (2 * m + g) * 1024
                    a(f"s_add_u32 s29, s28, {off & ~4095}")
                    a(f"buffer_store_dwordx4 v[{tmp}:{tmp+3}], v1, s[20:23], s29 offen offset:{off & 4095}")
        a("s_endpgm")
    a.label("k1_end")
    a("s_endpgm")
    return name, "grid=(256,1,1) block=(512,1,1) lds=131072", kernel_desc(name, 256)

def build(kernels, path):
    a = Asm()
    infos = []
    for g in kernels:
        infos.append(g(a))
    hdr = open("cdna_kernels/%s.s.ref" % NAME).read().split("\n")
    head = [l for l in hdr if l.startswith(";") and "@launch" not in l and "Override launch" not in l and "grid=ceil" not in l]
    out = "\n".join(head) + "\n"
    for n, l, d in infos:
        out += f"; @launch kernel={n} {l}\n"
    out += '.amdgcn_target "amdgcn-amd-amdhsa--gfx950"\n.text\n'
    out += a.text()
    out += '.section .rodata,"a"\n'
    for n, l, d in infos:
        out += ".p2align 6\n" + d
    open(path, "w").write(out)
    check_hazards(a.text())

if __name__ == "__main__":
    build([gen_k0, gen_k1], sys.argv[1] if len(sys.argv) > 1 else "out.s")
```

```python
from gen import *

def gen_k2(a):
    name = "k2_kernel"
    kernel_begin(a, name)
    a(f"""
    s_cmp_ge_u32 s2, 512
    s_cbranch_scc1 k2_end
    s_load_dwordx4 s[4:7], s[0:1], {KA_X}
    s_load_dwordx2 s[24:25], s[0:1], {KA_BWQ}
    s_load_dwordx2 s[30:31], s[0:1], {KA_WS}
    v_lshrrev_b32 v2, 6, v0
    v_and_b32 v0, 63, v0
    v_lshlrev_b32 v1, 4, v0
    v_readfirstlane_b32 s3, v2
    s_waitcnt lgkmcnt(0)
    """)
    srd(a, 8, 4, 2*MB)
    srd(a, 20, 30, WS_BYTES)
    a("s_cmp_ge_u32 s2, 256")
    a("s_cbranch_scc1 k2_roleA")
    gen_k2_B(a)
    a.label("k2_roleA")
    gen_k2_A(a)
    a.label("k2_end")
    a("s_endpgm")
    return name, "grid=(512,1,1) block=(256,1,1) lds=81920", kernel_desc(name, 256)

O_ = 192; QF = 160; S_ = (128, 144); NEGM = 112; P_ = (96, 104); FR = 32; NFR = 16
def gen_k2_B(a):
    srd(a, 12, 24, 4*MB)
    a("""
    s_and_b32 s6, s2, 7
    s_lshr_b32 s28, s2, 3
    s_and_b32 s7, s28, 7
    s_lshr_b32 s28, s28, 3
    s_lshl_b32 s28, s28, 3
    s_add_u32 s6, s6, s28
    s_lshl_b32 s28, s6, 19
    """)
    a(f"""
    s_add_u32 s16, s30, s28
    s_addc_u32 s17, s31, 0
    s_mov_b32 s18, 524288
    s_mov_b32 s19, 0x00020000
    s_add_u32 s32, s16, {VF_OFF}
    s_addc_u32 s33, s17, 0
    s_mov_b32 s34, 524288
    s_mov_b32 s35, 0x00020000
    """)
    a("""
    v_and_b32 v3, 31, v0
    v_lshrrev_b32 v4, 5, v0
    """)
    a("""
    v_lshrrev_b32 v5, 4, v0
    v_and_b32 v6, 15, v0
    v_lshlrev_b32 v7, 2, v5
    v_xor_b32 v6, v6, v7
    s_lshl_b32 s28, s3, 4
    v_add_u32 v7, s28, v5
    v_lshlrev_b32 v7, 13, v7
    v_lshl_add_u32 v7, v6, 4, v7
    s_lshl_b32 s28, s6, 8
    v_add_u32 v5, s28, v7
    """)
    a("""
    v_bfe_u32 v6, v0, 2, 2
    v_lshl_add_u32 v7, v4, 3, v6
    v_lshlrev_b32 v7, 8, v7
    v_bfe_u32 v8, v0, 4, 1
    v_lshl_add_u32 v7, v8, 5, v7
    v_and_b32 v8, 3, v0
    v_lshl_add_u32 v7, v8, 3, v7
    v_lshl_add_u32 v8, v6, 6, v7
    v_xor_b32 v9, 64, v8
    v_xor_b32 v10, 128, v8
    v_xor_b32 v11, 192, v8
    s_lshl_b32 s28, s3, 11
    v_add_u32 v6, s28, v1
    """)
    for jj in range(4):
        a(f"s_mov_b32 s{40+jj}, {jj*(32768-1024)}")
    a("s_lshl_b32 s44, s3, 12")
    a("s_lshl_b32 s45, s3, 11")
    a("s_mov_b32 s46, 0")
    a.label("b_task")
    a("""
    s_sub_u32 s47, 15, s7
    s_cmp_eq_u32 s46, 0
    s_cselect_b32 s47, s47, s7
    s_mov_b32 s60, 0
    """)
    a("""
    s_lshl_b32 s28, s47, 7
    s_lshl_b32 s29, s3, 5
    s_add_u32 s48, s28, s29
    v_add_u32 v12, s48, v3
    v_lshlrev_b32 v12, 10, v12
    v_lshl_add_u32 v12, v4, 4, v12
    v_mov_b32 v13, v5
    s_barrier
    """)
    def wq_dma(c):
        a(f"s_add_u32 m0, s44, {(c % 5) * 16384}")
        a("s_nop 0")
        for jj in range(4):
            a(f"buffer_load_dwordx4 v13, s[12:15], s{40+jj} offen offset:{jj*1024} lds")
        a("v_add_u32 v13, 0x80000, v13")
    XF = 32
    for c in range(5):
        wq_dma(c)
        for s in range(4 * c, 4 * c + 4):
            a(f"buffer_load_dwordx4 v[{XF+4*s}:{XF+4*s+3}], v12, s[8:11], 0 offen offset:{s*32}")
    for s in range(20, 32):
        a(f"buffer_load_dwordx4 v[{XF+4*s}:{XF+4*s+3}], v12, s[8:11], 0 offen offset:{s*32}")
    for r in range(64):
        a(f"v_mov_b32 v{O_+r}, 0")
    def wreads(c, s, buf):
        f = QF + 16 * buf
        base = (c % 5) * 16384
        for m in range(4):
            a(f"ds_read_b64_tr_b16 v[{f+4*m}:{f+4*m+1}], v{8+m} offset:{base + s*4096}")
            a(f"ds_read_b64_tr_b16 v[{f+4*m+2}:{f+4*m+3}], v{8+m} offset:{base + s*4096 + 1024}")
    a("""
    v_add_u32 v14, 0x10000, v8
    v_add_u32 v15, 0x10000, v9
    v_add_u32 v16, 0x10000, v10
    v_add_u32 v17, 0x10000, v11
    """)
    def wreads(c, s, buf):
        f = QF + 16 * buf
        slot = c % 5
        for m in range(4):
            ar = (14 + m) if slot == 4 else (8 + m)
            base = 0 if slot == 4 else slot * 16384
            a(f"ds_read_b64_tr_b16 v[{f+4*m}:{f+4*m+1}], v{ar} offset:{base + s*4096}")
            a(f"ds_read_b64_tr_b16 v[{f+4*m+2}:{f+4*m+3}], v{ar} offset:{base + s*4096 + 1024}")
    issued_after = {0: 52 - 8, 1: 52 - 16, 2: 52 - 24 + 4, 3: 52 - 32 + 8, 4: 0 + 12, 5: 8, 6: 4, 7: 0}
    for c in range(8):
        if c <= 3:
            n = 52 - 8 * (c + 1) + 4 * max(0, min(c - 1, 3))
        elif c == 4:
            n = 12
        else:
            n = 4 * (7 - c)
        a(f"s_waitcnt vmcnt({n})")
        a("s_barrier")
        if 1 <= c <= 3:
            wq_dma(c + 4)
        wreads(c, 0, 0)
        for s in range(4):
            if s < 3:
                wreads(c, s + 1, (s + 1) & 1)
                a("s_waitcnt lgkmcnt(8)")
            else:
                a("s_waitcnt lgkmcnt(0)")
            f = QF + 16 * (s & 1)
            xf = XF + 4 * (4 * c + s)
            for m in range(4):
                a(f"{MFMA} v[{O_+16*m}:{O_+16*m+15}], v[{f+4*m}:{f+4*m+3}], v[{xf}:{xf+3}], v[{O_+16*m}:{O_+16*m+15}]")
    a("s_barrier")
    a("""
    s_lshl_b32 s50, s47, 2
    s_add_u32 s49, s50, s3
    s_add_u32 s49, s49, 1
    s_add_u32 s50, s50, 4
    """)
    a.label("b_redo")
    def kv_dma(srdreg, sidx, sslot, ldsbase):
        a(f"s_add_u32 s28, s{sslot}, s45")
        a(f"s_add_u32 m0, s28, {ldsbase}")
        a(f"s_lshl_b32 s29, s{sidx}, 13")
        a(f"buffer_load_dwordx4 v6, s[{srdreg}:{srdreg+3}], s29 offen lds")
        a(f"buffer_load_dwordx4 v6, s[{srdreg}:{srdreg+3}], s29 offen offset:1024 lds")
    def adv(sidx, sslot):
        a(f"s_add_u32 s{sidx}, s{sidx}, 1")
        a(f"s_add_u32 s{sslot}, s{sslot}, 8192")
        a(f"s_cmp_eq_u32 s{sslot}, 40960")
        a(f"s_cselect_b32 s{sslot}, 0, s{sslot}")
    a("""
    s_mov_b32 s52, 0
    s_mov_b32 s53, 0
    s_mov_b32 s54, 0
    s_mov_b32 s55, 0
    """)
    for i in range(3):
        kv_dma(16, 52, 53, 0); adv(52, 53)
    kv_dma(32, 54, 55, 40960); adv(54, 55)
    a("s_cmp_lg_u32 s60, 0")
    a("s_cbranch_scc1 b_noq")
    a("s_nop 7")
    a(f"s_mov_b32 s28, {f32hex(LOG2E * 128 ** -0.5)}")
    for r in range(64):
        a(f"v_mul_f32 v{O_+r}, s28, v{O_+r}")
    for s in range(8):
        pack8(a, QF + 4 * s, O_ + 8 * s)
    a.label("b_noq")
    for r in range(64):
        a(f"v_mov_b32 v{O_+r}, 0")
    for r in range(4):
        a(f"v_mov_b32 v{24+r}, 0")
    a("""
    s_mov_b32 s56, 0
    s_mov_b32 s57, 0
    s_mov_b32 s58, 0
    """)
    a("""
    v_lshlrev_b32 v18, 2, v4
    v_sub_u32 v18, v3, v18
    """)
    def apply_mask(base):
        a("v_mov_b32 v19, 0xff800000")
        for r in range(16):
            a(f"v_cmp_lt_i32 vcc, v18, {8*(r>>2)+(r&3)}" if False else f"v_cmp_gt_i32 vcc, {8*(r>>2)+(r&3)}, v18")
            a("s_nop 1")
            a(f"v_cndmask_b32 v{base+r}, v{base+r}, v19, vcc")
    def qk(par, cinit):
        S = S_[par]
        a("v_add_u32 v20, s56, v1")
        for s in range(8):
            a(f"ds_read_b128 v[{FR+4*s}:{FR+4*s+3}], v20 offset:{s*1024}")
        for s in range(8):
            a(f"s_waitcnt lgkmcnt({7-s})")
            c = cinit if s == 0 else f"v[{S}:{S+15}]"
            a(f"{MFMA} v[{S}:{S+15}], v[{FR+4*s}:{FR+4*s+3}], v[{QF+4*s}:{QF+4*s+3}], {c}")
    def sm(par):
        S = S_[par]; P = P_[par]
        for r in range(16):
            a(f"v_exp_f32 v{S+r}, v{S+r}")
        for r in range(16):
            a(f"v_add_f32 v{24+(r&3)}, v{24+(r&3)}, v{S+r}")
        for i in range(8):
            a(f"v_cvt_pk_bf16_f32 v{P+i}, v{S+2*i}, v{S+2*i+1}")
    def pv(par):
        P = P_[par]
        a(f"v_add_u32 v21, s57, v1")
        for k in range(8):
            a(f"ds_read_b128 v[{FR+32+4*k}:{FR+32+4*k+3}], v21 offset:{40960 + k*1024}")
        for ks in range(2):
            for b in range(4):
                k = ks * 4 + b
                a(f"s_waitcnt lgkmcnt({7-k})")
                a(f"{MFMA} v[{O_+16*b}:{O_+16*b+15}], v[{FR+32+4*k}:{FR+32+4*k+3}], v[{P+4*ks}:{P+4*ks+3}], v[{O_+16*b}:{O_+16*b+15}]")
    def advslot(s):
        a(f"s_add_u32 s{s}, s{s}, 8192")
        a(f"s_cmp_eq_u32 s{s}, 40960")
        a(f"s_cselect_b32 s{s}, 0, s{s}")
    a("s_waitcnt vmcnt(0)")
    a("s_barrier")
    a.label("b_loop")
    for par in (0, 1):
        if par == 0:
            a("s_waitcnt vmcnt(0)")
            a("s_barrier")
            for i in range(2):
                l = a.newlabel("b_nk")
                a("s_cmp_ge_u32 s52, s50")
                a(f"s_cbranch_scc1 {l}")
                kv_dma(16, 52, 53, 0); adv(52, 53)
                a.label(l)
                l = a.newlabel("b_nv")
                a("s_cmp_ge_u32 s54, s50")
                a(f"s_cbranch_scc1 {l}")
                kv_dma(32, 54, 55, 40960); adv(54, 55)
                a.label(l)
        lq = a.newlabel("b_noqk"); ls = a.newlabel("b_nosm"); lp = a.newlabel("b_nopv")
        a("s_cmp_ge_u32 s58, s49")
        a(f"s_cbranch_scc1 {lq}")
        if par == 0:
            l0 = a.newlabel("b_notfirst"); l1 = a.newlabel("b_qkdone")
            a("s_or_b32 s28, s58, s60")
            a("s_cmp_lg_u32 s28, 0")
            a(f"s_cbranch_scc1 {l0}")
            qk(0, "0")
            a("s_nop 15")
            lm = a.newlabel("b_nomask0")
            a("s_cmp_lg_u32 s49, 1")
            a(f"s_cbranch_scc1 {lm}")
            apply_mask(S_[0])
            a.label(lm)
            S = S_[0]
            a(f"v_max3_f32 v22, v{S}, v{S+1}, v{S+2}")
            for r in range(3, 15, 2):
                a(f"v_max3_f32 v22, v22, v{S+r}, v{S+r+1}")
            a(f"v_max_f32 v22, v22, v{S+15}")
            a("""
            v_xor_b32 v23, 32, v0
            v_lshlrev_b32 v23, 2, v23
            ds_bpermute_b32 v19, v23, v22
            s_waitcnt lgkmcnt(0)
            v_max_f32 v22, v22, v19
            """)
            for r in range(16):
                a(f"v_sub_f32 v{S+r}, v{S+r}, v22")
            for r in range(16):
                a(f"v_sub_f32 v{NEGM+r}, 0, v22")
            a(f"s_branch {l1}")
            a.label(l0)
        ld = a.newlabel("b_nodiag")
        a("s_add_u32 s28, s58, 1")
        a("s_cmp_lg_u32 s28, s49")
        a(f"s_cbranch_scc1 {ld}")
        apply_mask(NEGM)
        a("s_nop 1")
        a.label(ld)
        qk(par, f"v[{NEGM}:{NEGM+15}]")
        if par == 0:
            a.label(l1)
        a.label(lq)
        advslot(56)
        a("s_cmp_eq_u32 s58, 0")
        a(f"s_cbranch_scc1 {ls}")
        a("s_cmp_gt_u32 s58, s49")
        a(f"s_cbranch_scc1 {ls}")
        sm(par ^ 1)
        a.label(ls)
        a("s_cmp_lt_u32 s58, 2")
        a(f"s_cbranch_scc1 {lp}")
        a("s_add_u32 s28, s49, 1")
        a("s_cmp_gt_u32 s58, s28")
        lp2 = a.newlabel("b_nopv2")
        a(f"s_cbranch_scc1 {lp2}")
        pv(par)
        a.label(lp2)
        advslot(57)
        a.label(lp)
        a("s_add_u32 s58, s58, 1")
    a("s_add_u32 s28, s50, 2")
    a("s_cmp_lt_u32 s58, s28")
    a("s_cbranch_scc1 b_loop")
    a(f"""
    s_nop 15
    v_add_f32 v24, v24, v25
    v_add_f32 v26, v26, v27
    v_add_f32 v24, v24, v26
    v_xor_b32 v23, 32, v0
    v_lshlrev_b32 v23, 2, v23
    ds_bpermute_b32 v19, v23, v24
    v_add_u32 v20, s48, v3
    v_lshlrev_b32 v20, 3, v20
    s_mov_b32 s28, {G_OFF}
    buffer_load_dword v25, v20, s[20:23], s28 offen offset:4
    s_waitcnt lgkmcnt(0)
    v_add_f32 v24, v24, v19
    v_rcp_f32 v26, v24
    s_waitcnt vmcnt(0)
    v_mul_f32 v26, v26, v25
    """)
    for r in range(64):
        a(f"v_mul_f32 v{O_+r}, v26, v{O_+r}")
    a(f"""
    s_lshr_b32 s28, s48, 5
    s_mul_i32 s28, s28, {ZF_RG}
    s_lshl_b32 s29, s6, 13
    s_add_u32 s28, s28, s29
    s_add_u32 s28, s28, {ZF_OFF}
    s_add_u32 s29, s28, 4096
    """)
    for kk in range(8):
        t = FR + 4 * kk
        pack8(a, t, O_ + 8 * kk)
        a(f"buffer_store_dwordx4 v[{t}:{t+3}], v1, s[20:23], s{28 + (kk >> 2)} offen offset:{(kk & 3) * 1024}")
    a("""
    s_add_u32 s46, s46, 1
    s_cmp_lt_u32 s46, 2
    s_cbranch_scc1 b_task
    s_endpgm
    """)

def gen_k2_A(a):
    srd(a, 12, 6, 512 * 1024)
    AQ = 8
    ANEG = (16, 32); AO = (48, 64); AS = (80, 96); AP = (112, 120)
    AKV = 128
    XF = 128
    a("""
    s_sub_u32 s28, s2, 256
    s_and_b32 s6, s28, 15
    s_lshr_b32 s7, s28, 4
    v_and_b32 v3, 31, v0
    v_lshrrev_b32 v4, 5, v0
    """)
    a("""
    v_lshrrev_b32 v5, 2, v0
    s_lshl_b32 s28, s3, 7
    v_add_u32 v5, s28, v5
    v_lshlrev_b32 v5, 10, v5
    v_and_b32 v6, 3, v0
    v_lshl_add_u32 v5, v6, 4, v5
    s_lshl_b32 s28, s6, 6
    v_add_u32 v5, s28, v5
    s_lshl_b32 s29, s3, 13
    """)
    for g in range(2):
        a(f"s_add_u32 m0, s29, {g*4096}")
        for i in range(4):
            j = g * 4 + i
            a(f"s_mov_b32 s28, {j*16384 - i*1024}")
            a(f"buffer_load_dwordx4 v5, s[12:15], s28 offen offset:{i*1024} lds")
    a("""
    s_lshl_b32 s28, s7, 7
    s_lshl_b32 s29, s3, 5
    s_add_u32 s48, s28, s29
    v_add_u32 v6, s48, v3
    v_lshlrev_b32 v6, 10, v6
    v_lshl_add_u32 v6, v4, 4, v6
    """)
    for s in range(32):
        a(f"buffer_load_dwordx4 v[{XF+4*s}:{XF+4*s+3}], v6, s[8:11], 0 offen offset:{s*32}")
    a("""
    v_bfe_u32 v6, v0, 2, 2
    v_lshl_add_u32 v7, v4, 3, v6
    v_lshlrev_b32 v7, 6, v7
    v_bfe_u32 v6, v0, 4, 1
    v_lshl_add_u32 v7, v6, 5, v7
    v_and_b32 v6, 3, v0
    v_lshl_add_u32 v7, v6, 3, v7
    """)
    for r in range(16):
        a(f"v_mov_b32 v{AS[0]+r}, 0")
    a("s_waitcnt vmcnt(0)")
    a("s_barrier")
    WF = 112
    def wr(s):
        f = WF + 4 * (s & 3)
        a(f"ds_read_b64_tr_b16 v[{f}:{f+1}], v7 offset:{s*1024}")
        a(f"ds_read_b64_tr_b16 v[{f+2}:{f+3}], v7 offset:{s*1024+256}")
    wr(0); wr(1)
    for s in range(32):
        if s + 2 < 32:
            wr(s + 2); a("s_waitcnt lgkmcnt(4)")
        else:
            a(f"s_waitcnt lgkmcnt({2*(31-s)})")
        f = WF + 4 * (s & 3)
        a(f"{MFMA} v[{AS[0]}:{AS[0]+15}], v[{f}:{f+3}], v[{XF+4*s}:{XF+4*s+3}], v[{AS[0]}:{AS[0]+15}]")
    a(f"s_mov_b32 s50, {KA_OFF}")
    a(f"s_mov_b32 s51, {VA_OFF}")
    def kvload(st):
        f = AKV + 12 * st
        a(f"buffer_load_dwordx4 v[{f}:{f+3}], v1, s[20:23], s50 offen")
        a(f"buffer_load_dwordx4 v[{f+4}:{f+7}], v1, s[20:23], s51 offen")
        a(f"buffer_load_dwordx4 v[{f+8}:{f+11}], v1, s[20:23], s51 offen offset:1024")
        a("s_add_u32 s50, s50, 1024")
        a("s_add_u32 s51, s51, 2048")
    a("s_nop 15")
    for st in range(4):
        kvload(st)
    a(f"s_mov_b32 s28, {f32hex(LOG2E * 0.25)}")
    for r in range(16):
        a(f"v_mul_f32 v{AS[0]+r}, s28, v{AS[0]+r}")
    pack8(a, AQ, AS[0]); pack8(a, AQ + 4, AS[0] + 8)
    for X in range(2):
        for r in range(16):
            a(f"v_mov_b32 v{AO[X]+r}, 0")
    a("s_waitcnt vmcnt(11)")
    for X in range(2):
        a(f"{MFMA} v[{AS[X]}:{AS[X]+15}], v[{AKV}:{AKV+3}], v[{AQ+4*X}:{AQ+4*X+3}], 0")
    a("""
    v_xor_b32 v5, 32, v0
    v_lshlrev_b32 v5, 2, v5
    s_nop 15
    """)
    for X in range(2):
        S = AS[X]
        a(f"v_max3_f32 v6, v{S}, v{S+1}, v{S+2}")
        for r in range(3, 15, 2):
            a(f"v_max3_f32 v6, v6, v{S+r}, v{S+r+1}")
        a(f"v_max_f32 v6, v6, v{S+15}")
        a("""
        ds_bpermute_b32 v7, v5, v6
        s_waitcnt lgkmcnt(0)
        v_max_f32 v6, v6, v7
        """)
        for r in range(16):
            a(f"v_sub_f32 v{S+r}, v{S+r}, v6")
        for r in range(16):
            a(f"v_sub_f32 v{ANEG[X]+r}, 0, v6")
    a("s_mov_b32 s52, 0")
    a.label("a_loop")
    for st in range(4):
        f = AKV + 12 * st
        fn = AKV + 12 * ((st + 1) & 3)
        a("s_waitcnt vmcnt(8)")
        for X in range(2):
            S = AS[X]; P = AP[X]
            for r in range(16):
                a(f"v_exp_f32 v{S+r}, v{S+r}")
            a("s_nop 0")
            for i in range(8):
                a(f"v_cvt_pk_bf16_f32 v{P+i}, v{S+2*i}, v{S+2*i+1}")
            a("s_nop 1")
            a(f"{MFMA} v[{AO[X]}:{AO[X]+15}], v[{f+4}:{f+7}], v[{P}:{P+3}], v[{AO[X]}:{AO[X]+15}]")
            a(f"{MFMA} v[{AO[X]}:{AO[X]+15}], v[{f+8}:{f+11}], v[{P+4}:{P+7}], v[{AO[X]}:{AO[X]+15}]")
            a(f"{MFMA} v[{S}:{S+15}], v[{fn}:{fn+3}], v[{AQ+4*X}:{AQ+4*X+3}], v[{ANEG[X]}:{ANEG[X]+15}]")
        kvload(st)
    a("""
    s_add_u32 s52, s52, 1
    s_cmp_lt_u32 s52, 16
    s_cbranch_scc1 a_loop
    """)
    a(f"""
    s_nop 15
    v_lshlrev_b32 v5, 2, v3
    ds_bpermute_b32 v6, v5, v{AO[0]+8}
    ds_bpermute_b32 v7, v5, v{AO[1]+8}
    v_add_u32 v2, s48, v3
    v_lshlrev_b32 v2, 3, v2
    s_mov_b32 s28, {G_OFF}
    buffer_load_dword v2, v2, s[20:23], s28 offen
    s_waitcnt lgkmcnt(0)
    v_rcp_f32 v6, v6
    v_rcp_f32 v7, v7
    s_waitcnt vmcnt(0)
    v_mul_f32 v6, v6, v2
    v_mul_f32 v7, v7, v2
    s_lshr_b32 s28, s48, 5
    s_mul_i32 s28, s28, {ZF_RG}
    s_lshl_b32 s29, s6, 11
    s_add_u32 s28, s28, s29
    s_add_u32 s28, s28, {ZF_OFF + 256*1024}
    """)
    for X in range(2):
        for r in range(8):
            a(f"v_mul_f32 v{AO[X]+r}, v{6+X}, v{AO[X]+r}")
        pack8(a, AP[X], AO[X])
        a(f"buffer_store_dwordx4 v[{AP[X]}:{AP[X]+3}], v1, s[20:23], s28 offen offset:{X*1024}")
    a("s_endpgm")

if __name__ == "__main__":
    build([gen_k0, gen_k1, gen_k2], sys.argv[1] if len(sys.argv) > 1 else "out.s")
```

```python
from gen2 import *

def gen_k3(a):
    name = "k3_kernel"
    kernel_begin(a, name)
    a(f"""
    s_cmp_ge_u32 s2, 256
    s_cbranch_scc1 k3_end
    s_load_dwordx2 s[4:5], s[0:1], {KA_WO}
    s_load_dwordx2 s[24:25], s[0:1], {KA_BWO}
    s_load_dwordx2 s[26:27], s[0:1], {KA_OUT}
    s_load_dwordx2 s[30:31], s[0:1], {KA_WS}
    v_lshrrev_b32 v2, 6, v0
    v_and_b32 v0, 63, v0
    v_lshlrev_b32 v1, 4, v0
    v_readfirstlane_b32 s3, v2
    s_and_b32 s28, s2, 7
    s_lshr_b32 s29, s2, 3
    s_and_b32 s7, s29, 7
    s_lshr_b32 s29, s29, 3
    s_lshl_b32 s6, s28, 2
    s_add_u32 s6, s6, s29
    s_waitcnt lgkmcnt(0)
    """)
    srd(a, 8, 24, 4*MB)
    srd(a, 12, 4, 512*1024)
    srd(a, 16, 26, 2*MB)
    srd(a, 20, 30, WS_BYTES)
    a("""
    v_lshrrev_b32 v3, 3, v0
    s_lshl_b32 s28, s3, 5
    v_add_u32 v3, s28, v3
    v_lshlrev_b32 v3, 10, v3
    v_bfe_u32 v4, v0, 4, 1
    v_lshlrev_b32 v4, 2, v4
    v_and_b32 v5, 7, v0
    v_xor_b32 v4, v4, v5
    v_lshl_add_u32 v3, v4, 4, v3
    s_lshl_b32 s28, s7, 7
    v_add_u32 v3, s28, v3
    v_mov_b32 v4, v3
    """)
    for jj in range(4):
        a(f"s_mov_b32 s{40+jj}, {jj*7168}")
    a(f"""
    s_mul_i32 s44, s6, {2*ZF_RG}
    s_lshl_b32 s28, s3, 11
    s_add_u32 s44, s44, s28
    s_add_u32 s44, s44, {ZF_OFF}
    s_add_u32 s45, s44, {ZF_RG}
    s_lshl_b32 s46, s3, 14
    """)
    a("""
    v_lshrrev_b32 v5, 5, v0
    v_bfe_u32 v6, v0, 2, 2
    v_lshl_add_u32 v5, v5, 2, v6
    v_lshlrev_b32 v5, 7, v5
    v_bfe_u32 v6, v0, 3, 1
    v_lshl_add_u32 v5, v6, 6, v5
    v_bfe_u32 v6, v0, 4, 1
    v_lshl_add_u32 v5, v6, 5, v5
    v_and_b32 v6, 3, v0
    v_lshl_add_u32 v5, v6, 3, v5
    v_add_u32 v5, s46, v5
    v_xor_b32 v6, 64, v5
    """)
    ACC = 64; ZR = 128; WF = 32
    for r in range(64):
        a(f"v_mov_b32 v{ACC+r}, 0")
    def issue(i):
        slot = i & 3
        a(f"s_add_u32 m0, s46, {slot*4096}")
        a("s_nop 0")
        if i < 16: va, sd = "v3", 8
        else:      va, sd = "v4", 12
        for jj in range(4):
            a(f"buffer_load_dwordx4 {va}, s[{sd}:{sd+3}], s{40+jj} offen offset:{jj*1024} lds")
        a(f"v_add_u32 {va}, 0x40000, {va}")
        z = ZR + 16 * slot
        a(f"buffer_load_dwordx4 v[{z}:{z+3}], v1, s[20:23], s44 offen")
        a(f"buffer_load_dwordx4 v[{z+4}:{z+7}], v1, s[20:23], s44 offen offset:1024")
        a(f"buffer_load_dwordx4 v[{z+8}:{z+11}], v1, s[20:23], s45 offen")
        a(f"buffer_load_dwordx4 v[{z+12}:{z+15}], v1, s[20:23], s45 offen offset:1024")
        a("s_add_u32 s44, s44, 16384")
        a("s_add_u32 s45, s45, 16384")
    for i in range(3):
        issue(i)
    for i in range(18):
        slot = i & 3
        rem = min(2, 17 - i)
        a(f"s_waitcnt vmcnt({8*rem})")
        for s in range(2):
            for m in range(2):
                f = WF + 16 * (i & 1) + 8 * s + 4 * m
                a(f"ds_read_b64_tr_b16 v[{f}:{f+1}], v{5+m} offset:{slot*4096 + s*2048}")
                a(f"ds_read_b64_tr_b16 v[{f+2}:{f+3}], v{5+m} offset:{slot*4096 + s*2048 + 1024}")
        if i + 3 < 18:
            issue(i + 3)
        for s in range(2):
            a(f"s_waitcnt lgkmcnt({4*(1-s)})")
            for m in range(2):
                f = WF + 16 * (i & 1) + 8 * s + 4 * m
                for rg in range(2):
                    z = ZR + 16 * slot + 8 * rg + 4 * s
                    acc = ACC + 16 * (2 * m + rg)
                    a(f"{MFMA} v[{acc}:{acc+15}], v[{f}:{f+3}], v[{z}:{z+3}], v[{acc}:{acc+15}]")
    a("s_nop 15")
    a("v_add_u32 v7, s46, v1")
    for bk in range(16):
        a(f"ds_write_b128 v7, v[{ACC+4*bk}:{ACC+4*bk+3}] offset:{bk*1024}")
    a("""
    s_waitcnt lgkmcnt(0)
    s_barrier
    s_lshl_b32 s28, s3, 11
    v_add_u32 v7, s28, v1
    v_add_u32 v8, 0x10000, v7
    """)
    for e in range(2):
        for w in range(8):
            d = 128 + 32 * e + 4 * w
            a(f"ds_read_b128 v[{d}:{d+3}], v{7 + (w >> 2)} offset:{(w & 3)*16384 + e*1024}")
    a("""
    s_lshr_b32 s28, s3, 1
    s_and_b32 s28, s28, 1
    s_lshl_b32 s28, s28, 5
    s_lshl_b32 s29, s6, 6
    s_add_u32 s28, s28, s29
    v_and_b32 v9, 31, v0
    v_add_u32 v9, s28, v9
    v_lshlrev_b32 v9, 10, v9
    v_lshrrev_b32 v10, 5, v0
    v_lshl_add_u32 v9, v10, 3, v9
    s_lshl_b32 s28, s7, 7
    s_lshr_b32 s29, s3, 2
    s_lshl_b32 s29, s29, 6
    s_add_u32 s28, s28, s29
    s_and_b32 s29, s3, 1
    s_lshl_b32 s29, s29, 5
    s_add_u32 s28, s28, s29
    """)
    for e in range(2):
        a(f"s_waitcnt lgkmcnt({8*(1-e)})")
        d = 128 + 32 * e
        for w in range(1, 8):
            for j in range(4):
                a(f"v_add_f32 v{d+j}, v{d+j}, v{d+4*w+j}")
        a(f"v_cvt_pk_bf16_f32 v{12+2*e}, v{d}, v{d+1}")
        a(f"v_cvt_pk_bf16_f32 v{13+2*e}, v{d+2}, v{d+3}")
        a(f"buffer_store_dwordx2 v[{12+2*e}:{13+2*e}], v9, s[16:19], s28 offen offset:{16*e}")
    a.label("k3_end")
    a("s_endpgm")
    return name, "grid=(256,1,1) block=(512,1,1) lds=131072", kernel_desc(name, 192)

if __name__ == "__main__":
    build([gen_k0, gen_k1, gen_k2, gen_k3], sys.argv[1] if len(sys.argv) > 1 else "out.s")
```

```python
import sys
from asmlib import *

NAME = "gated_mix__grouped_kv_mqa__compressed_kv_cla__prompt"
KA_X, KA_WQ, KA_WK, KA_WV, KA_WO, KA_BX, KA_CKV, KA_BWQ, KA_WUK, KA_WUV, KA_BWO, KA_GATE, KA_OUT, KA_DBG, KA_WS = [8*i for i in range(15)]
MB = 1 << 20
KF_OFF = 0
VF_OFF = 16 * MB
KA_OFF = 32 * MB
VA_OFF = 32 * MB + 64 * 1024
G_OFF = 32 * MB + 256 * 1024
ZF_OFF = 33 * MB
ZF_RG = 288 * 1024
XF_OFF = 56 * MB
WS_BYTES = 64 * MB
LOG2E = 1.4426950408889634
import struct
def f32hex(x):
    return "0x%08x" % struct.unpack("<I", struct.pack("<f", x))[0]

MFMA = "v_mfma_f32_32x32x16_bf16"

def srd(a, s, base_lo, nbytes, add=0):
    if add:
        a(f"s_add_u32 s{s}, s{base_lo}, {add}")
        a(f"s_addc_u32 s{s+1}, s{base_lo+1}, 0")
    else:
        a(f"s_mov_b32 s{s}, s{base_lo}")
        a(f"s_mov_b32 s{s+1}, s{base_lo+1}")
    a(f"s_mov_b32 s{s+2}, {nbytes}")
    a(f"s_mov_b32 s{s+3}, 0x00020000")

def kernel_begin(a, name):
    a.raw(f".globl {name}\n.p2align 8\n.type {name},@function\n{name}:")

def kernel_desc(name, vgpr, sgpr=102, accum=None):
    accum = accum if accum is not None else ((vgpr + 3) // 4) * 4
    return f""".amdhsa_kernel {name}
  .amdhsa_next_free_vgpr {vgpr}
  .amdhsa_next_free_sgpr {sgpr}
  .amdhsa_accum_offset {accum}
  .amdhsa_group_segment_fixed_size 0
  .amdhsa_kernarg_size 120
  .amdhsa_user_sgpr_count 2
  .amdhsa_user_sgpr_kernarg_segment_ptr 1
  .amdhsa_system_sgpr_workgroup_id_x 1
.end_amdhsa_kernel
"""

import os
STAMP = bool(os.environ.get("STAMP"))
ST_OFF = 60 * MB
def stamp(a, idx, wsrd=20, wavereg="s3", real=False, tv=28):
    if not STAMP: return
    a(f"{'s_memrealtime' if real else 's_memtime'} s[96:97]")
    a(f"s_lshl_b32 s98, s2, 3")
    a(f"s_add_u32 s98, s98, {wavereg}")
    a(f"s_lshl_b32 s98, s98, 8")
    a(f"s_add_u32 s98, s98, {ST_OFF + idx*8}")
    a("s_waitcnt lgkmcnt(0)")
    a(f"v_writelane_b32 v{tv}, s96, 0")
    a(f"v_writelane_b32 v{tv+1}, s97, 0")
    a(f"v_mov_b32 v{tv+2}, 0")
    a("s_mov_b64 s[100:101], exec")
    a("s_mov_b64 exec, 1")
    a(f"buffer_store_dwordx2 v[{tv}:{tv+1}], v{tv+2}, s[{wsrd}:{wsrd+3}], s98 offen")
    a("s_mov_b64 exec, s[100:101]")

def pack8(a, dst, src):
    for i in range(4):
        a(f"v_cvt_pk_bf16_f32 v{dst+i}, v{src+2*i}, v{src+2*i+1}")

def gen_k0(a):
    name = "k0_kernel"
    kernel_begin(a, name)
    a(f"""
    s_cmp_ge_u32 s2, 64
    s_cbranch_scc1 k0_end
    s_load_dwordx2 s[4:5], s[0:1], {KA_X}
    s_load_dwordx4 s[24:27], s[0:1], {KA_WK}
    s_load_dwordx2 s[28:29], s[0:1], {KA_GATE}
    s_load_dwordx2 s[30:31], s[0:1], {KA_WS}
    s_waitcnt lgkmcnt(0)
    """)
    srd(a, 8, 4, 2*MB)
    srd(a, 12, 24, 16384)
    srd(a, 16, 26, 16384)
    srd(a, 20, 28, 1024)
    srd(a, 32, 30, WS_BYTES)
    a("v_lshlrev_b32 v1, 4, v0")
    for reg, base in ((16, 0), (12, 16384)):
        for g in range(4):
            a(f"s_mov_b32 m0, {base + g*4096}")
            a(f"s_mov_b32 s36, {g*4096}")
            for i in range(4):
                a(f"buffer_load_dwordx4 v1, s[{reg}:{reg+3}], s36 offen offset:{i*1024} lds")
    a("s_mov_b32 m0, 32768")
    a("s_nop 0")
    a("buffer_load_dwordx4 v1, s[20:23], 0 offen lds")
    a("""
    v_and_b32 v2, 31, v0
    v_lshrrev_b32 v3, 5, v0
    s_lshl_b32 s3, s2, 15
    v_lshlrev_b32 v4, 10, v2
    v_lshl_add_u32 v4, v3, 4, v4
    v_add_u32 v4, s3, v4
    """)
    for s in range(32):
        a(f"buffer_load_dwordx4 v[{64+4*s}:{67+4*s}], v4, s[8:11], 0 offen offset:{s*32}")
    a("""
    v_lshrrev_b32 v5, 4, v0
    v_and_b32 v6, 15, v0
    v_and_b32 v7, 1, v5
    v_lshlrev_b32 v7, 14, v7
    v_lshrrev_b32 v8, 1, v5
    v_lshlrev_b32 v8, 3, v8
    v_lshrrev_b32 v9, 2, v6
    v_add_u32 v8, v8, v9
    v_lshl_add_u32 v7, v8, 5, v7
    v_and_b32 v9, 3, v6
    v_lshl_add_u32 v7, v9, 3, v7
    v_lshlrev_b32 v10, 4, v3
    v_add_u32 v10, 32768, v10
    """)
    for r in range(32):
        a(f"v_mov_b32 v{192+r}, 0")
    a("v_mov_b32 v11, 0")
    a("s_waitcnt vmcnt(0)")
    a("s_barrier")
    a(f"s_add_u32 s37, s3, {XF_OFF}")
    for s in range(32):
        if s and s % 4 == 0: a("s_add_u32 s37, s37, 4096")
        a(f"buffer_store_dwordx4 v[{64+4*s}:{67+4*s}], v1, s[32:35], s37 offen offset:{(s&3)*1024}")
    for s in range(32):
        wf = 16 + 8 * (s & 1)
        a(f"ds_read_b64_tr_b16 v[{wf}:{wf+1}], v7 offset:{s*512}")
        a(f"ds_read_b64_tr_b16 v[{wf+2}:{wf+3}], v7 offset:{s*512+128}")
        a(f"ds_read_b128 v[{wf+4}:{wf+7}], v10 offset:{s*32}")
        a("s_waitcnt lgkmcnt(0)")
        xf = 64 + 4 * s
        a(f"{MFMA} v[192:207], v[{wf}:{wf+3}], v[{xf}:{xf+3}], v[192:207]")
        a(f"{MFMA} v[208:223], v[{xf}:{xf+3}], v[{wf}:{wf+3}], v[208:223]")
        for i in range(4):
            a(f"v_dot2_f32_bf16 v11, v{xf+i}, v{wf+4+i}, v11")
    a("s_nop 15")
    a("s_nop 3")
    pack8(a, 32, 200)
    a(f"s_lshl_b32 s3, s2, 10")
    a(f"s_add_u32 s36, s3, {KA_OFF}")
    a("buffer_store_dwordx4 v[32:35], v1, s[32:35], s36 offen")
    pack8(a, 36, 208)
    pack8(a, 40, 216)
    a("""
    v_mov_b32 v12, 0x3f803f80
    v_cmp_eq_u32 vcc, 16, v2
    s_nop 1
    v_cndmask_b32 v12, 0, v12, vcc
    v_cmp_gt_u32 vcc, 16, v2
    s_nop 1
    """)
    for i in range(8):
        a(f"v_cndmask_b32 v{36+i}, v12, v{36+i}, vcc")
    a(f"s_lshl_b32 s3, s2, 11")
    a(f"s_add_u32 s36, s3, {VA_OFF}")
    a("buffer_store_dwordx4 v[36:39], v1, s[32:35], s36 offen")
    a("buffer_store_dwordx4 v[40:43], v1, s[32:35], s36 offen offset:1024")
    a(f"""
    v_xor_b32 v13, 32, v0
    v_lshlrev_b32 v13, 2, v13
    ds_bpermute_b32 v14, v13, v11
    s_waitcnt lgkmcnt(0)
    v_add_f32 v11, v11, v14
    v_cvt_pk_bf16_f32 v11, v11, v11
    v_lshlrev_b32 v11, 16, v11
    v_mul_f32 v11, {f32hex(-LOG2E)}, v11
    v_exp_f32 v11, v11
    s_nop 0
    v_add_f32 v11, 1.0, v11
    v_rcp_f32 v11, v11
    s_nop 0
    v_cvt_pk_bf16_f32 v11, v11, v11
    v_lshlrev_b32 v44, 16, v11
    v_sub_f32 v45, 1.0, v44
    v_cvt_pk_bf16_f32 v45, v45, v45
    v_lshlrev_b32 v45, 16, v45
    v_lshlrev_b32 v13, 3, v2
    s_lshl_b32 s3, s2, 8
    s_add_u32 s36, s3, {G_OFF}
    v_cmp_gt_u32 vcc, 32, v0
    s_and_saveexec_b64 s[38:39], vcc
    buffer_store_dwordx2 v[44:45], v13, s[32:35], s36 offen
    s_waitcnt vmcnt(0)
    k0_end:
    s_endpgm
    """)
    return name, "grid=(64,1,1) block=(64,1,1) lds=34816", kernel_desc(name, 256)

def gen_k1(a):
    name = "k1_kernel"
    kernel_begin(a, name)
    a(f"""
    s_cmp_ge_u32 s2, 256
    s_cbranch_scc1 k1_end
    s_load_dwordx2 s[4:5], s[0:1], {KA_CKV}
    s_load_dwordx4 s[24:27], s[0:1], {KA_WUK}
    s_load_dwordx2 s[30:31], s[0:1], {KA_WS}
    v_lshrrev_b32 v2, 6, v0
    v_and_b32 v0, 63, v0
    s_nop 0
    v_readfirstlane_b32 s3, v2
    s_and_b32 s6, s2, 31
    s_lshr_b32 s7, s2, 5
    s_waitcnt lgkmcnt(0)
    """)
    srd(a, 8, 4, 2*MB)
    srd(a, 12, 24, 4*MB)
    srd(a, 16, 26, 4*MB)
    srd(a, 20, 30, WS_BYTES)
    a("v_lshlrev_b32 v1, 4, v0")
    if os.environ.get("STK") == "1": stamp(a, 0); stamp(a, 15, real=True)
    a("""
    v_lshrrev_b32 v3, 3, v0
    v_lshrrev_b32 v4, 4, v0
    v_and_b32 v5, 7, v0
    v_xor_b32 v6, v5, v4
    v_xor_b32 v7, 4, v6
    s_lshl_b32 s28, s7, 8
    s_lshl_b32 s29, s3, 5
    s_add_u32 s28, s28, s29
    v_add_u32 v3, s28, v3
    v_lshlrev_b32 v3, 10, v3
    v_lshl_add_u32 v8, v6, 4, v3
    v_lshl_add_u32 v9, v7, 4, v3
    """)
    for jj in range(4):
        a(f"s_mov_b32 s{40+jj}, {jj*7168}")
    a("""
    v_and_b32 v5, 15, v0
    v_lshlrev_b32 v6, 2, v4
    v_xor_b32 v5, v5, v6
    s_lshl_b32 s28, s3, 3
    v_add_u32 v6, s28, v4
    v_lshlrev_b32 v6, 13, v6
    v_lshl_add_u32 v6, v5, 4, v6
    s_lshl_b32 s28, s6, 8
    v_add_u32 v10, s28, v6
    """)
    a(f"s_mov_b32 s44, {32768-1024}")
    a("""
    s_lshl_b32 s45, s3, 12
    s_lshl_b32 s46, s3, 11
    s_add_u32 s47, s46, 49152
    s_add_u32 s46, s46, 32768
    """)
    def dma(st):
        a(f"s_add_u32 m0, s45, {st*65536}")
        a("s_nop 0")
        a("buffer_load_dwordx4 v8, s[8:11], s40 offen lds")
        a("buffer_load_dwordx4 v9, s[8:11], s41 offen offset:1024 lds")
        a("buffer_load_dwordx4 v8, s[8:11], s42 offen offset:2048 lds")
        a("buffer_load_dwordx4 v9, s[8:11], s43 offen offset:3072 lds")
        a(f"s_add_u32 m0, s46, {st*65536}")
        a("s_nop 0")
        a("buffer_load_dwordx4 v10, s[12:15], 0 offen lds")
        a("buffer_load_dwordx4 v10, s[12:15], s44 offen offset:1024 lds")
        a(f"s_add_u32 m0, s47, {st*65536}")
        a("s_nop 0")
        a("buffer_load_dwordx4 v10, s[16:19], 0 offen lds")
        a("buffer_load_dwordx4 v10, s[16:19], s44 offen offset:1024 lds")
        a("v_add_u32 v8, 128, v8")
        a("v_add_u32 v9, 128, v9")
        a("v_add_u32 v10, 0x80000, v10")
    dma(0)
    a("""
    v_and_b32 v3, 31, v0
    s_and_b32 s28, s3, 3
    s_lshl_b32 s28, s28, 6
    v_add_u32 v3, s28, v3
    v_lshlrev_b32 v3, 7, v3
    v_lshrrev_b32 v5, 5, v0
    v_bfe_u32 v6, v0, 1, 3
    v_xor_b32 v5, v5, v6
    v_lshl_add_u32 v12, v5, 4, v3
    v_xor_b32 v13, 32, v12
    v_xor_b32 v14, 64, v12
    v_xor_b32 v15, 96, v12
    v_add_u32 v16, 0x10000, v12
    v_add_u32 v17, 0x10000, v13
    v_add_u32 v18, 0x10000, v14
    v_add_u32 v19, 0x10000, v15
    """)
    a("""
    v_lshrrev_b32 v3, 5, v0
    v_bfe_u32 v5, v0, 2, 2
    v_lshl_add_u32 v3, v3, 3, v5
    v_lshlrev_b32 v3, 8, v3
    v_bfe_u32 v6, v0, 4, 1
    v_lshl_add_u32 v3, v6, 5, v3
    v_and_b32 v6, 3, v0
    v_lshl_add_u32 v3, v6, 3, v3
    v_lshl_add_u32 v3, v5, 6, v3
    s_lshr_b32 s28, s3, 2
    s_lshl_b32 s28, s28, 14
    s_add_u32 s28, s28, 32768
    v_add_u32 v20, s28, v3
    v_xor_b32 v21, 64, v20
    v_xor_b32 v22, 128, v20
    v_xor_b32 v23, 192, v20
    v_add_u32 v24, 0x10000, v20
    v_add_u32 v25, 0x10000, v21
    v_add_u32 v26, 0x10000, v22
    v_add_u32 v27, 0x10000, v23
    """)
    for r in range(128):
        a(f"v_mov_b32 v{128+r}, 0")
    a("s_cmp_ge_u32 s3, 4")
    a("s_cbranch_scc1 k1_vtype")
    FB = 64
    def reads(st, s, buf):
        f = FB + 24 * buf
        ca = 12 + 4 * st + s
        a(f"ds_read_b128 v[{f}:{f+3}], v{ca}")
        a(f"ds_read_b128 v[{f+4}:{f+7}], v{ca} offset:4096")
        for m in range(4):
            wa = 20 + 4 * st + m
            a(f"ds_read_b64_tr_b16 v[{f+8+4*m}:{f+9+4*m}], v{wa} offset:{s*4096}")
            a(f"ds_read_b64_tr_b16 v[{f+10+4*m}:{f+11+4*m}], v{wa} offset:{s*4096+1024}")
    def mfmas(buf, vtype):
        f = FB + 24 * buf
        for m in range(4):
            for kb in range(2):
                acc = 128 + 16 * (m * 2 + kb)
                c = f"v[{f+4*kb}:{f+4*kb+3}]"; w = f"v[{f+8+4*m}:{f+11+4*m}]"
                if vtype: a(f"{MFMA} v[{acc}:{acc+15}], {c}, {w}, v[{acc}:{acc+15}]")
                else:     a(f"{MFMA} v[{acc}:{acc+15}], {w}, {c}, v[{acc}:{acc+15}]")
    for vtype in (0, 1):
        t = "v" if vtype else "k"
        if vtype: a.label("k1_vtype")
        a("s_mov_b32 s48, 0")
        a.label(f"k1_loop_{t}")
        for st in (0, 1):
            a("s_waitcnt vmcnt(0)")
            a("s_barrier")
            if st == 0 and os.environ.get("STK") == "1":
                a("s_cmp_lg_u32 s48, 0"); a(f"s_cbranch_scc1 k1_st_{t}"); stamp(a, 1); a.label(f"k1_st_{t}")
            if st == 0:
                dma(1)
            else:
                a("s_cmp_ge_u32 s48, 3")
                a(f"s_cbranch_scc1 k1_skip_{t}")
                dma(0)
                a.label(f"k1_skip_{t}")
            reads(st, 0, 0)
            for s in range(4):
                if s < 3:
                    reads(st, s + 1, (s + 1) & 1)
                    a("s_waitcnt lgkmcnt(10)")
                else:
                    a("s_waitcnt lgkmcnt(0)")
                mfmas(s & 1, vtype)
        a("s_add_u32 s48, s48, 1")
        a("s_cmp_lt_u32 s48, 4")
        a(f"s_cbranch_scc1 k1_loop_{t}")
        if os.environ.get("STK") == "1": stamp(a, 2)
        a("s_nop 15")
        a(f"""
        s_lshl_b32 s28, s6, 19
        s_lshl_b32 s29, s7, 16
        s_add_u32 s28, s28, s29
        s_and_b32 s29, s3, 3
        s_lshl_b32 s29, s29, 14
        s_add_u32 s28, s28, s29
        s_add_u32 s28, s28, {VF_OFF if vtype else KF_OFF}
        """)
        n = 0
        for m in range(4):
            for kb in range(2):
                acc = 128 + 16 * (m * 2 + kb)
                for g in range(2):
                    tmp = 64 + 4 * (n % 8); n += 1
                    pack8(a, tmp, acc + 8 * g)
                    if vtype: off = kb * 8192 + (g * 4 + m) * 1024
                    else:     off = kb * 8192 + (2 * m + g) * 1024
                    a(f"s_add_u32 s29, s28, {off & ~4095}")
                    a(f"buffer_store_dwordx4 v[{tmp}:{tmp+3}], v1, s[20:23], s29 offen offset:{off & 4095}")
        if os.environ.get("STK") == "1":
            stamp(a, 4)
            a("s_waitcnt vmcnt(0)")
            stamp(a, 3); stamp(a, 14, real=True)
        a("s_endpgm")
    a.label("k1_end")
    a("s_endpgm")
    return name, "grid=(256,1,1) block=(512,1,1) lds=131072", kernel_desc(name, 256)

def build(kernels, path):
    a = Asm()
    infos = []
    for g in kernels:
        infos.append(g(a))
    hdr = open("cdna_kernels/%s.s.ref" % NAME).read().split("\n")
    head = [l for l in hdr if l.startswith(";") and "@launch" not in l and "Override launch" not in l and "grid=ceil" not in l]
    out = "\n".join(head) + "\n"
    for n, l, d in infos:
        out += f"; @launch kernel={n} {l}\n"
    out += '.amdgcn_target "amdgcn-amd-amdhsa--gfx950"\n.text\n'
    out += a.text()
    out += '.section .rodata,"a"\n'
    for n, l, d in infos:
        out += ".p2align 6\n" + d
    open(path, "w").write(out)
    check_hazards(a.text())

if __name__ == "__main__":
    build([gen_k0, gen_k1], sys.argv[1] if len(sys.argv) > 1 else "out.s")
```

```python
from gen import *
_stamp1 = stamp
def stamp1(a, idx, **kw):
    if os.environ.get("STK") == "1": _stamp1(a, idx, tv=2, **kw)

STG = 49152
def gen_k1(a):
    name = "k1_kernel"
    kernel_begin(a, name)
    a(f"""
    s_cmp_ge_u32 s2, 256
    s_cbranch_scc1 k1_end
    s_load_dwordx2 s[4:5], s[0:1], {KA_CKV}
    s_load_dwordx4 s[24:27], s[0:1], {KA_WUK}
    s_load_dwordx2 s[30:31], s[0:1], {KA_WS}
    s_load_dwordx2 s[64:65], s[0:1], {KA_X}
    s_load_dwordx4 s[68:71], s[0:1], {KA_WK}
    s_load_dwordx2 s[72:73], s[0:1], {KA_GATE}
    s_load_dwordx2 s[54:55], s[0:1], {KA_BWQ}
    s_load_dwordx2 s[56:57], s[0:1], {KA_BWO}
    s_load_dwordx2 s[58:59], s[0:1], {KA_WQ}
    s_load_dwordx2 s[60:61], s[0:1], {KA_WO}
    v_lshrrev_b32 v2, 6, v0
    v_and_b32 v0, 63, v0
    v_lshlrev_b32 v1, 4, v0
    v_readfirstlane_b32 s3, v2
    s_and_b32 s6, s2, 31
    s_lshr_b32 s7, s2, 5
    s_waitcnt lgkmcnt(0)
    """)
    srd(a, 8, 4, 2*MB)
    srd(a, 12, 24, 4*MB)
    srd(a, 16, 26, 4*MB)
    srd(a, 20, 30, WS_BYTES)
    stamp1(a, 0); stamp1(a, 15, real=True)
    a("""
    v_lshrrev_b32 v3, 3, v0
    v_lshrrev_b32 v4, 4, v0
    v_and_b32 v5, 7, v0
    v_xor_b32 v6, v5, v4
    v_xor_b32 v7, 4, v6
    s_lshl_b32 s28, s7, 8
    s_lshl_b32 s29, s3, 5
    s_add_u32 s28, s28, s29
    v_add_u32 v3, s28, v3
    v_lshlrev_b32 v3, 10, v3
    v_lshl_add_u32 v8, v6, 4, v3
    v_lshl_add_u32 v9, v7, 4, v3
    v_and_b32 v5, 15, v0
    v_lshlrev_b32 v6, 2, v4
    v_xor_b32 v5, v5, v6
    s_lshl_b32 s28, s3, 3
    v_add_u32 v6, s28, v4
    v_lshlrev_b32 v6, 13, v6
    v_lshl_add_u32 v6, v5, 4, v6
    s_lshl_b32 s28, s6, 8
    v_add_u32 v10, s28, v6
    s_lshl_b32 s45, s3, 12
    s_lshl_b32 s46, s3, 11
    s_add_u32 s46, s46, 32768
    """)
    def dma_ops(k):
        kt = k & 7; st = k % 3
        sd = 16 if k >= 8 else 12
        ops = [f"s_add_u32 m0, s45, {st*STG}"]
        for jj in range(4):
            ops.append(f"s_add_u32 s40, s42, {jj*7168}")
            ops.append(f"buffer_load_dwordx4 v{8 + (jj & 1)}, s[8:11], s40 offen offset:{jj*1024} lds")
        ops.append(f"s_add_u32 m0, s46, {st*STG}")
        ops.append(f"s_add_u32 s40, s43, {32768 - 1024}")
        ops.append(f"buffer_load_dwordx4 v10, s[{sd}:{sd+3}], s43 offen lds")
        ops.append(f"buffer_load_dwordx4 v10, s[{sd}:{sd+3}], s40 offen offset:1024 lds")
        ops.append("s_add_u32 s42, s42, 128")
        ops.append("s_and_b32 s42, s42, 1023")
        ops.append("s_lshl_b32 s43, s42, 12")
        return ops
    a("""
    s_lshr_b32 s42, s6, 3
    s_lshl_b32 s42, s42, 1
    s_add_u32 s42, s42, s7
    s_and_b32 s42, s42, 7
    s_lshl_b32 s42, s42, 7
    s_lshl_b32 s43, s42, 12
    """)
    for o in dma_ops(0) + dma_ops(1): a(o)
    a("""
    v_and_b32 v3, 31, v0
    s_lshr_b32 s28, s3, 1
    s_lshl_b32 s28, s28, 6
    v_add_u32 v3, s28, v3
    v_lshlrev_b32 v3, 7, v3
    v_lshrrev_b32 v5, 5, v0
    v_bfe_u32 v6, v0, 1, 3
    v_xor_b32 v5, v5, v6
    v_lshl_add_u32 v12, v5, 4, v3
    v_xor_b32 v13, 32, v12
    v_xor_b32 v14, 64, v12
    v_xor_b32 v15, 96, v12
    """)
    for st in (1, 2):
        for s in range(4): a(f"v_add_u32 v{12+4*st+s}, {st*STG}, v{12+s}")
    a("""
    v_lshrrev_b32 v3, 5, v0
    v_bfe_u32 v5, v0, 2, 2
    v_lshl_add_u32 v3, v3, 3, v5
    v_lshlrev_b32 v3, 8, v3
    v_bfe_u32 v6, v0, 4, 1
    v_lshl_add_u32 v3, v6, 5, v3
    v_and_b32 v6, 3, v0
    v_lshl_add_u32 v3, v6, 3, v3
    v_lshl_add_u32 v3, v5, 6, v3
    s_and_b32 s28, s3, 1
    s_lshl_b32 s28, s28, 7
    v_xor_b32 v3, s28, v3
    v_add_u32 v24, 32768, v3
    v_xor_b32 v25, 64, v24
    """)
    for st in (1, 2):
        for m in range(2): a(f"v_add_u32 v{24+2*st+m}, {st*STG}, v{24+m}")
    ACC = (128, 192)
    for r in range(128): a(f"v_mov_b32 v{128+r}, 0")
    a(f"""
    s_lshl_b32 s28, s6, 19
    s_lshl_b32 s29, s7, 16
    s_add_u32 s28, s28, s29
    s_lshr_b32 s29, s3, 1
    s_lshl_b32 s29, s29, 14
    s_add_u32 s28, s28, s29
    s_and_b32 s29, s3, 1
    s_lshl_b32 s48, s29, 12
    s_add_u32 s48, s48, s28
    s_add_u32 s48, s48, {KF_OFF}
    s_add_u32 s49, s48, 8192
    s_lshl_b32 s50, s29, 11
    s_add_u32 s50, s50, s28
    s_add_u32 s50, s50, {VF_OFF}
    s_add_u32 s51, s50, 4096
    s_add_u32 s52, s50, 8192
    s_add_u32 s53, s50, 12288
    """)
    FB = 64
    def read_ops(u):
        k = u >> 2; s = u & 3; st = k % 3
        f = FB + 16 * (u % 3)
        ca = 12 + 4 * st + s
        ops = [f"ds_read_b128 v[{f}:{f+3}], v{ca}",
               f"ds_read_b128 v[{f+4}:{f+7}], v{ca} offset:4096"]
        for m in range(2):
            wa = 24 + 2 * st + m
            ops.append(f"ds_read_b64_tr_b16 v[{f+8+4*m}:{f+9+4*m}], v{wa} offset:{s*4096}")
            ops.append(f"ds_read_b64_tr_b16 v[{f+10+4*m}:{f+11+4*m}], v{wa} offset:{s*4096+1024}")
        return ops
    def epi_ops(ps):
        ops = []
        n = 0
        for m in range(2):
            for kb in range(2):
                acc = ACC[ps] + 16 * (m * 2 + kb)
                for g in range(2):
                    tmp = 32 + 4 * (n % 8); n += 1
                    for i in range(4):
                        ops.append(f"v_cvt_pk_bf16_f32 v{tmp+i}, v{acc+8*g+2*i}, v{acc+8*g+2*i+1}")
                    if ps == 0: sreg, off = 48 + kb, (2 * m + g) * 1024
                    else:       sreg, off = 50 + 2 * kb + g, m * 1024
                    ops.append(f"buffer_store_dwordx4 v[{tmp}:{tmp+3}], v1, s[20:23], s{sreg} offen offset:{off}")
        return ops
    a("s_cmp_ge_u32 s2, 64")
    a("s_cbranch_scc1 k1_nox")
    srd(a, 76, 64, 2*MB)
    a("""
    v_and_b32 v30, 31, v0
    v_lshrrev_b32 v31, 5, v0
    s_lshl_b32 s28, s2, 15
    s_lshl_b32 s29, s3, 7
    s_add_u32 s28, s28, s29
    v_lshlrev_b32 v30, 10, v30
    v_lshl_add_u32 v30, v31, 4, v30
    """)
    for s in range(4):
        a(f"buffer_load_dwordx4 v[{112+4*s}:{115+4*s}], v30, s[76:79], s28 offen offset:{s*32}")
    a.label("k1_nox")
    a("s_waitcnt vmcnt(0)")
    a("s_barrier")
    stamp1(a, 1)
    for o in read_ops(0) + read_ops(1): a(o)
    stores_pending = 0
    for k in range(16):
        ps = k >> 3
        if k > 0:
            a(f"s_waitcnt vmcnt({8 if k == 10 else ({15: 6, 2: 2}.get(k, 0) if not os.environ.get('NOPF') else 0)})")
            a("s_barrier")
        early = dma_ops(k + 2) if k + 2 < 16 else []
        extra = epi_ops(0) if k == 9 else []
        if k == 1 and not os.environ.get("NOPF"):
            extra = ["s_lshl_b32 s40, s7, 19", "s_add_u32 s41, s40, 32768",
                     "buffer_load_dwordx4 v[32:35], v10, s[16:19], s40 offen",
                     "buffer_load_dwordx4 v[36:39], v10, s[16:19], s41 offen"]
        if k == 14 and not os.environ.get("NOPF"):
            extra = ["s_mov_b32 s92, s54", "s_mov_b32 s93, s55", f"s_mov_b32 s94, {4*MB}", "s_mov_b32 s95, 0x00020000",
                     "s_lshl_b32 s40, s2, 3", "s_add_u32 s40, s40, s3", "s_lshl_b32 s41, s40, 8", "s_lshl_b32 s40, s40, 11",
                     "buffer_load_dwordx4 v[128:131], v1, s[92:95], s40 offen",
                     "buffer_load_dwordx4 v[132:135], v1, s[92:95], s40 offen offset:1024",
                     "s_mov_b32 s92, s56", "s_mov_b32 s93, s57",
                     "buffer_load_dwordx4 v[136:139], v1, s[92:95], s40 offen",
                     "buffer_load_dwordx4 v[140:143], v1, s[92:95], s40 offen offset:1024",
                     "s_mov_b32 s92, s58", "s_mov_b32 s93, s59", f"s_mov_b32 s94, {512*1024}", "v_lshlrev_b32 v2, 2, v0",
                     "buffer_load_dword v144, v2, s[92:95], s41 offen",
                     "s_mov_b32 s92, s60", "s_mov_b32 s93, s61",
                     "buffer_load_dword v145, v2, s[92:95], s41 offen"]
        nslots = 16
        for s in range(4):
            u = 4 * k + s
            a(f"s_waitcnt lgkmcnt({6 if u + 1 < 64 else 0})")
            rq = read_ops(u + 2) if u + 2 < 64 else []
            f = FB + 16 * (u % 3)
            i = 0
            for m in range(2):
                for kb in range(2):
                    acc = ACC[ps] + 16 * (m * 2 + kb)
                    c = f"v[{f+4*kb}:{f+4*kb+3}]"; w = f"v[{f+8+4*m}:{f+11+4*m}]"
                    if ps: a(f"{MFMA} v[{acc}:{acc+15}], {c}, {w}, v[{acc}:{acc+15}]")
                    else:  a(f"{MFMA} v[{acc}:{acc+15}], {w}, {c}, v[{acc}:{acc+15}]")
                    for o in rq[2*i: 2*i+2]: a(o)
                    i += 1
                    if early:
                        for o in early[:4]: a(o)
                        early = early[4:]
                        nslots -= 1
                        continue
                    ne = -(-len(extra) // nslots)
                    for o in extra[:ne]: a(o)
                    extra = extra[ne:]
                    nslots -= 1
        assert not extra
    stamp1(a, 2)
    a("s_nop 15")
    for o in epi_ops(1): a(o)
    stamp1(a, 4)
    a("s_cmp_ge_u32 s2, 64")
    a("s_cbranch_scc1 k1_fin")
    srd(a, 80, 68, 16384)
    srd(a, 84, 70, 16384)
    srd(a, 88, 72, 1024)
    a("s_barrier")
    a("""
    s_lshl_b32 s28, s3, 13
    s_mov_b32 m0, s28
    s_lshl_b32 s29, s3, 11
    v_lshrrev_b32 v31, 5, v0
    v_lshlrev_b32 v31, 4, v31
    buffer_load_dwordx4 v1, s[84:87], s29 offen lds
    buffer_load_dwordx4 v1, s[84:87], s29 offen offset:1024 lds
    s_add_u32 m0, s28, 2048
    s_lshl_b32 s41, s3, 7
    buffer_load_dwordx4 v1, s[80:83], s29 offen lds
    buffer_load_dwordx4 v1, s[80:83], s29 offen offset:1024 lds
    """)
    for s in range(4):
        a(f"buffer_load_dwordx4 v[{96+4*s}:{99+4*s}], v31, s[88:91], s41 offen offset:{s*32}")
    a(f"""
    s_lshl_b32 s29, s2, 15
    s_lshl_b32 s41, s3, 12
    s_add_u32 s29, s29, s41
    s_add_u32 s29, s29, {XF_OFF}
    """)
    for s in range(4):
        a(f"buffer_store_dwordx4 v[{112+4*s}:{115+4*s}], v1, s[20:23], s29 offen offset:{s*1024}")
    a("""
    v_lshrrev_b32 v5, 4, v0
    v_and_b32 v6, 15, v0
    v_and_b32 v7, 1, v5
    v_lshlrev_b32 v7, 11, v7
    v_lshrrev_b32 v8, 1, v5
    v_lshlrev_b32 v8, 3, v8
    v_lshrrev_b32 v9, 2, v6
    v_add_u32 v8, v8, v9
    v_lshl_add_u32 v7, v8, 5, v7
    v_and_b32 v9, 3, v6
    v_lshl_add_u32 v7, v9, 3, v7
    v_add_u32 v7, s28, v7
    v_mov_b32 v11, 0
    """)
    a("s_waitcnt vmcnt(4)")
    for r in range(32): a(f"v_mov_b32 v{128+r}, 0")
    for s in range(4):
        a(f"ds_read_b64_tr_b16 v[{64+4*s}:{65+4*s}], v7 offset:{s*512}")
        a(f"ds_read_b64_tr_b16 v[{66+4*s}:{67+4*s}], v7 offset:{s*512+128}")
    a("s_waitcnt lgkmcnt(0)")
    for s in range(4):
        xf = 112 + 4 * s; wf = 64 + 4 * s
        a(f"{MFMA} v[128:143], v[{wf}:{wf+3}], v[{xf}:{xf+3}], v[128:143]")
        a(f"{MFMA} v[144:159], v[{xf}:{xf+3}], v[{wf}:{wf+3}], v[144:159]")
        for i in range(4):
            a(f"v_dot2_f32_bf16 v11, v{xf+i}, v{96+4*s+i}, v11")
    a("""
    s_nop 15
    v_add_u32 v8, s28, v1
    v_add_u32 v8, 0x10000, v8
    v_lshlrev_b32 v9, 2, v0
    v_add_u32 v9, s28, v9
    v_add_u32 v9, 0x10000, v9
    """)
    for b in range(6):
        a(f"ds_write_b128 v8, v[{136+4*b}:{139+4*b}] offset:{b*1024}")
    a("ds_write_b32 v9, v11 offset:6144")
    a("s_waitcnt lgkmcnt(0)")
    a("s_barrier")
    a("s_cmp_ge_u32 s3, 3")
    a("s_cbranch_scc1 k1_gate")
    a("""
    s_lshl_b32 s28, s3, 11
    v_add_u32 v8, s28, v1
    v_add_u32 v8, 0x10000, v8
    """)
    for w in range(8):
        a(f"ds_read_b128 v[{128+8*w}:{131+8*w}], v8 offset:{w*8192}")
        a(f"ds_read_b128 v[{132+8*w}:{135+8*w}], v8 offset:{w*8192+1024}")
    a("s_waitcnt lgkmcnt(0)")
    for w in range(1, 8):
        for j in range(8): a(f"v_add_f32 v{128+j}, v{128+j}, v{128+8*w+j}")
    pack8(a, 32, 128)
    a("s_cmp_lg_u32 s3, 0")
    a("s_cbranch_scc1 k1_va")
    a(f"""
    s_lshl_b32 s28, s2, 10
    s_add_u32 s28, s28, {KA_OFF}
    buffer_store_dwordx4 v[32:35], v1, s[20:23], s28 offen
    s_branch k1_fin
    """)
    a.label("k1_va")
    a("""
    v_and_b32 v2, 31, v0
    v_mov_b32 v12, 0x3f803f80
    v_cmp_eq_u32 vcc, 16, v2
    s_nop 1
    v_cndmask_b32 v12, 0, v12, vcc
    v_cmp_gt_u32 vcc, 16, v2
    s_nop 1
    """)
    for i in range(4): a(f"v_cndmask_b32 v{32+i}, v12, v{32+i}, vcc")
    a(f"""
    s_lshl_b32 s28, s2, 11
    s_lshl_b32 s29, s3, 10
    s_add_u32 s28, s28, s29
    s_add_u32 s28, s28, {VA_OFF - 1024}
    buffer_store_dwordx4 v[32:35], v1, s[20:23], s28 offen
    s_branch k1_fin
    """)
    a.label("k1_gate")
    a("s_cmp_lg_u32 s3, 3")
    a("s_cbranch_scc1 k1_fin")
    a("""
    v_lshlrev_b32 v9, 2, v0
    v_add_u32 v9, 0x10000, v9
    """)
    for w in range(8): a(f"ds_read_b32 v{128+w}, v9 offset:{w*8192+6144}")
    a("s_waitcnt lgkmcnt(0)")
    for w in range(1, 8): a(f"v_add_f32 v128, v128, v{128+w}")
    a(f"""
    v_mov_b32 v11, v128
    s_nop 1
    v_permlane32_swap_b32 v11, v128
    s_nop 1
    v_add_f32 v11, v11, v128
    v_cvt_pk_bf16_f32 v11, v11, v11
    v_lshlrev_b32 v11, 16, v11
    v_mul_f32 v11, {f32hex(-LOG2E)}, v11
    v_exp_f32 v11, v11
    s_nop 0
    v_add_f32 v11, 1.0, v11
    v_rcp_f32 v11, v11
    s_nop 0
    v_cvt_pk_bf16_f32 v11, v11, v11
    v_lshlrev_b32 v44, 16, v11
    v_sub_f32 v45, 1.0, v44
    v_cvt_pk_bf16_f32 v45, v45, v45
    v_lshlrev_b32 v45, 16, v45
    v_lshlrev_b32 v13, 3, v0
    s_lshl_b32 s28, s2, 8
    s_add_u32 s28, s28, {G_OFF}
    v_cmp_gt_u32 vcc, 32, v0
    s_and_saveexec_b64 s[38:39], vcc
    buffer_store_dwordx2 v[44:45], v13, s[20:23], s28 offen
    s_mov_b64 exec, s[38:39]
    """)
    a.label("k1_fin")
    if os.environ.get("STK") == "1" and STAMP:
        a("s_waitcnt vmcnt(0)")
        stamp1(a, 3); stamp1(a, 14, real=True)
    a.label("k1_end")
    a("s_endpgm")
    return name, f"grid=(256,1,1) block=(512,1,1) lds={3*STG}", kernel_desc(name, 256)
```

```python
from gen import *
_stamp = stamp
def stamp(a, idx, **kw):
    if os.environ.get("STK", "2") == "2": _stamp(a, idx, **kw)

class VM:
    def __init__(self): self.q = []
    def issue(self, tag): self.q.append(tag)
    def need(self, tags):
        idx = max(i for i, t in enumerate(self.q) if t in tags)
        n = len(self.q) - 1 - idx
        self.q = self.q[idx+1:]
        return n

def gen_k2(a):
    name = "k2_kernel"
    kernel_begin(a, name)
    a(f"""
    s_cmp_ge_u32 s2, 512
    s_cbranch_scc1 k2_end
    s_load_dwordx2 s[6:7], s[0:1], {KA_WQ}
    s_load_dwordx2 s[24:25], s[0:1], {KA_BWQ}
    s_load_dwordx2 s[30:31], s[0:1], {KA_WS}
    v_lshrrev_b32 v2, 6, v0
    v_and_b32 v0, 63, v0
    v_lshlrev_b32 v1, 4, v0
    v_readfirstlane_b32 s3, v2
    s_waitcnt lgkmcnt(0)
    """)
    srd(a, 20, 30, WS_BYTES)
    a("s_cmp_ge_u32 s2, 256")
    a("s_cbranch_scc1 k2_roleA")
    if os.environ.get("NOB"): a("s_endpgm")
    gen_k2_B(a)
    a.label("k2_roleA")
    if os.environ.get("NOA"): a("s_endpgm")
    gen_k2_A(a)
    a.label("k2_end")
    a("s_endpgm")
    return name, "grid=(512,1,1) block=(256,1,1) lds=81920", kernel_desc(name, 256)

O_ = 192; QF = 160; S_ = (128, 144); NEGM = 112; P_ = (96, 104); Q2 = 64; FR = 32
SLOT = 16384
THR = float(os.environ.get('THR', '60'))
def gen_k2_B(a):
    srd(a, 12, 24, 4*MB)
    if os.environ.get("BPRIO"): a(f"s_setprio {os.environ['BPRIO']}")
    a("""
    s_and_b32 s6, s2, 7
    s_lshr_b32 s28, s2, 3
    s_and_b32 s7, s28, 7
    s_lshr_b32 s28, s28, 3
    s_lshl_b32 s28, s28, 3
    s_add_u32 s6, s6, s28
    s_lshl_b32 s28, s6, 19
    """)
    a(f"""
    s_add_u32 s16, s30, s28
    s_addc_u32 s17, s31, 0
    s_mov_b32 s18, 524288
    s_mov_b32 s19, 0x00020000
    s_add_u32 s32, s16, {VF_OFF - 16384}
    s_addc_u32 s33, s17, 0
    s_mov_b32 s34, 524288
    s_mov_b32 s35, 0x00020000
    v_and_b32 v3, 31, v0
    v_lshrrev_b32 v4, 5, v0
    """)
    stamp(a, 0); stamp(a, 15, real=True)
    a("""
    v_lshrrev_b32 v5, 4, v0
    v_and_b32 v6, 15, v0
    v_lshlrev_b32 v7, 2, v5
    v_xor_b32 v6, v6, v7
    s_lshl_b32 s28, s3, 4
    v_add_u32 v7, s28, v5
    v_lshlrev_b32 v7, 13, v7
    v_lshl_add_u32 v7, v6, 4, v7
    s_lshl_b32 s28, s6, 8
    v_add_u32 v13, s28, v7
    """)
    for jj in range(4):
        a(f"s_mov_b32 s{40+jj}, {jj*(32768-1024)}")
    a("s_lshl_b32 s44, s3, 12")
    a("s_lshl_b32 s45, s3, 11")
    vm = VM()
    def wq_dma(c):
        a(f"s_add_u32 m0, s44, {(c % 5) * 16384}")
        a("s_nop 0")
        for jj in range(4):
            a(f"buffer_load_dwordx4 v13, s[12:15], s{40+jj} offen offset:{jj*1024} lds")
            vm.issue(("w", c))
        a("v_add_u32 v13, 0x80000, v13")
    a(f"""
    s_sub_u32 s28, 15, s7
    s_lshl_b32 s28, s28, 2
    s_add_u32 s28, s28, s3
    s_lshl_b32 s28, s28, 15
    s_add_u32 s48, s28, {XF_OFF}
    s_lshl_b32 s28, s7, 2
    s_add_u32 s28, s28, s3
    s_lshl_b32 s28, s28, 15
    s_add_u32 s49, s28, {XF_OFF}
    """)
    XR = 32
    def xload(c):
        for t in range(2):
            for s in range(4):
                r = XR + 32 * (c & 1) + 16 * t + 4 * s
                a(f"buffer_load_dwordx4 v[{r}:{r+3}], v1, s[20:23], s{48+t} offen offset:{s*1024}")
                vm.issue(("x", c))
            a(f"s_add_u32 s{48+t}, s{48+t}, 4096")
    wq_dma(0); xload(0); wq_dma(1); xload(1)
    for c in range(2, 5): wq_dma(c)
    a("""
    v_bfe_u32 v6, v0, 2, 2
    v_lshl_add_u32 v7, v4, 3, v6
    v_lshlrev_b32 v7, 8, v7
    v_bfe_u32 v8, v0, 4, 1
    v_lshl_add_u32 v7, v8, 5, v7
    v_and_b32 v8, 3, v0
    v_lshl_add_u32 v7, v8, 3, v7
    v_lshl_add_u32 v8, v6, 6, v7
    v_xor_b32 v9, 64, v8
    v_xor_b32 v10, 128, v8
    v_xor_b32 v11, 192, v8
    v_add_u32 v14, 0x10000, v8
    v_add_u32 v15, 0x10000, v9
    v_add_u32 v16, 0x10000, v10
    v_add_u32 v17, 0x10000, v11
    s_lshl_b32 s28, s3, 11
    v_add_u32 v6, s28, v1
    v_lshlrev_b32 v18, 2, v4
    v_sub_u32 v18, v3, v18
    """)
    ACC = (192, 128)
    for r in range(128):
        a(f"v_mov_b32 v{128+r}, 0")
    WF = 96
    def wreads(c, s):
        f = WF + 16 * (s & 1)
        slot = c % 5
        for m in range(4):
            ar = (14 + m) if slot == 4 else (8 + m)
            base = 0 if slot == 4 else slot * 16384
            a(f"ds_read_b64_tr_b16 v[{f+4*m}:{f+4*m+1}], v{ar} offset:{base + s*4096}")
            a(f"ds_read_b64_tr_b16 v[{f+4*m+2}:{f+4*m+3}], v{ar} offset:{base + s*4096 + 1024}")
    for c in range(8):
        a(f"s_waitcnt vmcnt({vm.need({('w', c), ('x', c)})})")
        a("s_barrier")
        if 1 <= c <= 3: wq_dma(c + 4)
        wreads(c, 0)
        for s in range(4):
            if s < 3:
                wreads(c, s + 1)
                a("s_waitcnt lgkmcnt(8)")
            else:
                a("s_waitcnt lgkmcnt(0)")
            f = WF + 16 * (s & 1)
            for m in range(4):
                for t in range(2):
                    xf = XR + 32 * (c & 1) + 16 * t + 4 * s
                    acc = ACC[t] + 16 * m
                    a(f"{MFMA} v[{acc}:{acc+15}], v[{f+4*m}:{f+4*m+3}], v[{xf}:{xf+3}], v[{acc}:{acc+15}]")
        if c + 2 < 8: xload(c + 2)
    a("s_barrier")
    stamp(a, 1)
    a("s_mov_b32 s46, 0")
    a.label("b_task")
    a("""
    s_sub_u32 s47, 15, s7
    s_cmp_eq_u32 s46, 0
    s_cselect_b32 s47, s47, s7
    s_lshl_b32 s28, s47, 7
    s_lshl_b32 s29, s3, 5
    s_add_u32 s48, s28, s29
    s_lshl_b32 s50, s47, 2
    s_add_u32 s49, s50, s3
    s_add_u32 s49, s49, 1
    s_add_u32 s50, s50, 4
    s_lshl_b32 s18, s50, 13
    s_add_u32 s34, s18, 16384
    """)
    def c_dma_ops():
        return ["s_mov_b32 m0, s53",
                "s_add_u32 s28, s53, 8192",
                "buffer_load_dwordx4 v6, s[16:19], s52 offen lds",
                "buffer_load_dwordx4 v6, s[16:19], s52 offen offset:1024 lds",
                "s_mov_b32 m0, s28",
                "s_add_u32 s53, s53, 16384",
                "buffer_load_dwordx4 v6, s[32:35], s52 offen lds",
                "buffer_load_dwordx4 v6, s[32:35], s52 offen offset:1024 lds",
                "s_add_u32 s52, s52, 8192",
                "s_cmp_ge_u32 s53, 81920",
                "s_cselect_b32 s53, s45, s53"]
    a("s_mov_b32 s60, 0")
    a.label("b_redo")
    a("s_mov_b32 s52, 0")
    a("s_mov_b32 s53, s45")
    for i in range(3):
        for o in c_dma_ops(): a(o)
    lq2 = a.newlabel("b_q2")
    lqd = a.newlabel("b_qd")
    a("s_cmp_lg_u32 s60, 0")
    a(f"s_cbranch_scc1 {lqd}")
    a("s_cmp_lg_u32 s46, 0")
    a(f"s_cbranch_scc1 {lq2}")
    a(f"s_mov_b32 s28, {f32hex(LOG2E * 128 ** -0.5)}")
    for r in range(128):
        a(f"v_mul_f32 v{128+r}, s28, v{128+r}")
    for s in range(8): pack8(a, Q2 + 4 * s, ACC[1] + 8 * s)
    for s in range(8): pack8(a, QF + 4 * s, ACC[0] + 8 * s)
    a(f"s_branch {lqd}")
    a.label(lq2)
    for r in range(32): a(f"v_mov_b32 v{QF+r}, v{Q2+r}")
    a.label(lqd)
    for r in range(64): a(f"v_mov_b32 v{O_+r}, 0")
    for r in range(4): a(f"v_mov_b32 v{24+r}, 0")
    a(f"""
    s_mov_b32 s56, {SLOT}
    s_mov_b32 s58, 0
    v_mov_b32 v20, v1
    """)
    def apply_mask(base):
        a("v_mov_b32 v19, 0xff800000")
        for r in range(16):
            a(f"v_cmp_gt_i32 vcc, {8*(r>>2)+(r&3)}, v18")
            a("s_nop 1")
            a(f"v_cndmask_b32 v{base+r}, v{base+r}, v19, vcc")

    def mf(n, par, cinit=None):
        f = FR + 4 * (n & 7)
        if n < 8:
            S = S_[par]
            c = (cinit or f"v[{NEGM}:{NEGM+15}]") if n == 0 else f"v[{S}:{S+15}]"
            return f"{MFMA} v[{S}:{S+15}], v[{f}:{f+3}], v[{QF+4*n}:{QF+4*n+3}], {c}"
        k = n - 8; ks = k >> 2; b = k & 3
        P = P_[par]
        return f"{MFMA} v[{O_+16*b}:{O_+16*b+15}], v[{f}:{f+3}], v[{P+4*ks}:{P+4*ks+3}], v[{O_+16*b}:{O_+16*b+15}]"
    def rd(j, par):
        f = FR + 4 * (j & 7)
        if j < 16: return f"ds_read_b128 v[{f}:{f+3}], v{20+par} offset:{j*1024}"
        return f"ds_read_b128 v[{f}:{f+3}], v{20+(par^1)} offset:{(j-16)*1024}"
    def sm_ops(par):
        S = S_[par]; P = P_[par]
        ops = []
        for r in range(16):
            ops.append(f"v_exp_f32 v{S+r}, v{S+r}")
            if r >= 1: ops.append(f"v_add_f32 v{24+((r-1)&3)}, v{24+((r-1)&3)}, v{S+r-1}")
            if r & 1: ops.append(f"v_cvt_pk_bf16_f32 v{P+(r>>1)}, v{S+r-1}, v{S+r}")
        ops.append(f"v_add_f32 v27, v27, v{S+15}")
        return ops
    def cost(o):
        return 8 if o.startswith("v_exp") else 4
    NPF = 4
    def iteration(par, doQK, doSM, doPV, prefetched, extra=(), cinit=None, last=()):
        M = (list(range(8)) if doQK else []) + (list(range(8, 16)) if doPV else [])
        seq = M + (list(range(16, 16 + NPF)) if doQK else [])
        book = [f"v_add_u32 v{20+(par^1)}, s56, v1",
                f"s_add_u32 s56, s56, {SLOT}",
                "s_cmp_ge_u32 s56, 81920",
                "s_cselect_b32 s56, 0, s56"]
        fill = sm_ops(par ^ 1) if doSM else []
        if os.environ.get("NOSM"): fill = []
        extra = list(extra)
        nM = len(M)
        if nM == 0:
            for o in book + fill + extra + list(last): a(o)
            return
        def slot(idx): return idx & 7
        def rdi(idx):
            j = seq[idx]; f = FR + 4 * slot(idx)
            if j < 16: return f"ds_read_b128 v[{f}:{f+3}], v{20+par} offset:{j*1024}"
            return f"ds_read_b128 v[{f}:{f+3}], v{20+(par^1)} offset:{(j-16)*1024}"
        def mfi(idx):
            n = seq[idx]; f = FR + 4 * slot(idx)
            if n < 8:
                S = S_[par]
                c = (cinit or f"v[{NEGM}:{NEGM+15}]") if n == 0 else f"v[{S}:{S+15}]"
                return f"{MFMA} v[{S}:{S+15}], v[{f}:{f+3}], v[{QF+4*n}:{QF+4*n+3}], {c}"
            k = n - 8; ks = k >> 2; b = k & 3
            P = P_[par]
            return f"{MFMA} v[{O_+16*b}:{O_+16*b+15}], v[{f}:{f+3}], v[{P+4*ks}:{P+4*ks+3}], v[{O_+16*b}:{O_+16*b+15}]"
        if not (prefetched and doQK):
            for idx in range(4): a(rdi(idx))
        nv = nM - nM // 4
        tot = sum(cost(o) for o in fill)
        done = 0; gi = 0
        ngrp = nM // 4
        for p in range(nM):
            if p % 4 == 0: a("s_waitcnt lgkmcnt(0)")
            a(mfi(p))
            if p == nM - 1:
                for o in last: a(o)
            if p % 4 == 0:
                if p == 0:
                    for o in book: a(o)
                for idx in range(p + 4, min(p + 8, len(seq))): a(rdi(idx))
                if XPOS == 0:
                    k = -(-len(extra) // (ngrp - p // 4))
                    for o in extra[:k]: a(o)
                    extra = extra[k:]
            else:
                gi += 1
                tgt = tot * gi / nv
                while fill and (done + cost(fill[0]) / 2 <= tgt or gi == nv):
                    done += cost(fill[0]); a(fill.pop(0))
                if XPOS == 1 and extra:
                    k = -(-len(extra) // max(1, (nv - 2) - gi + 1)) if gi <= nv - 2 else len(extra)
                    for o in extra[:k]: a(o)
                    extra = extra[k:]
        assert not fill and not extra, (fill, extra)
    XPOS = int(os.environ.get("XPOS", "1"))

    a("s_waitcnt vmcnt(0)")
    a("s_barrier")
    a.label("b_loop")
    a("s_cmp_lt_u32 s58, 2")
    a("s_cbranch_scc1 b_slow")
    a("s_add_u32 s28, s58, 6")
    a("s_cmp_gt_u32 s28, s50")
    a("s_cbranch_scc1 b_slow")
    a("s_sub_u32 s59, s50, 4")
    a.label("b_fast")
    if not os.environ.get("NOWAIT"): a("s_waitcnt vmcnt(0)")
    if not os.environ.get("NOBAR"): a("s_barrier")
    extra = c_dma_ops() + c_dma_ops()
    if os.environ.get("NODMA"): extra = [o for o in extra if not o.startswith("buffer")]
    iteration(0, True, True, True, True, extra)
    iteration(1, True, True, True, True, ["s_add_u32 s58, s58, 2"], last=["s_cmp_lt_u32 s58, s59"])
    a("s_cbranch_scc1 b_fast")
    a.label("b_slow")
    for par in (0, 1):
        extra = []
        if par == 0:
            if not os.environ.get("NOWAIT"): a("s_waitcnt vmcnt(0)")
            if not os.environ.get("NOBAR"): a("s_barrier")
            extra = c_dma_ops() + c_dma_ops()
            if os.environ.get("NODMA"): extra = [o for o in extra if not o.startswith("buffer")]
        lnext = a.newlabel("b_next")
        lns = a.newlabel("b_nonsteady")
        ld = a.newlabel("b_nodiag")
        a("s_add_u32 s28, s58, 1")
        a("s_cmp_lg_u32 s28, s49")
        a(f"s_cbranch_scc1 {ld}")
        apply_mask(NEGM)
        a.label(ld)
        a("s_cmp_lt_u32 s58, 2")
        a(f"s_cbranch_scc1 {lns}")
        a("s_cmp_ge_u32 s58, s49")
        a(f"s_cbranch_scc1 {lns}")
        iteration(par, True, True, True, True, extra)
        a(f"s_branch {lnext}")
        a.label(lns)
        for o in extra: a(o)
        l_g = a.newlabel("b_ge"); l_smpv = a.newlabel("b_smpv"); l_pv = a.newlabel("b_pv"); l_none = a.newlabel("b_none"); l_sm = a.newlabel("b_sm")
        a("s_cmp_ge_u32 s58, s49")
        a(f"s_cbranch_scc1 {l_g}")
        if par == 0:
            lr = a.newlabel("b_g0raw")
            a("s_cmp_eq_u32 s60, 0")
            a(f"s_cbranch_scc1 {lr}")
            iteration(0, True, False, False, False)
            a(f"s_branch {lnext}")
            a.label(lr)
            iteration(0, True, False, False, False, cinit="0")
            a("s_nop 15")
            lm = a.newlabel("b_nomask0")
            a("s_cmp_lg_u32 s49, 1")
            a(f"s_cbranch_scc1 {lm}")
            apply_mask(S_[0])
            a.label(lm)
            S = S_[0]
            a(f"v_max3_f32 v22, v{S}, v{S+1}, v{S+2}")
            for r in range(3, 15, 2):
                a(f"v_max3_f32 v22, v22, v{S+r}, v{S+r+1}")
            a(f"v_max_f32 v22, v22, v{S+15}")
            a("""
            v_mov_b32 v19, v22
            s_nop 1
            v_permlane32_swap_b32 v19, v22
            s_nop 1
            v_max_f32 v22, v22, v19
            """)
            for r in range(16): a(f"v_sub_f32 v{S+r}, v{S+r}, v22")
            for r in range(16): a(f"v_sub_f32 v{NEGM+r}, 0, v22")
        else:
            iteration(1, True, True, False, True)
        a(f"s_branch {lnext}")
        a.label(l_g)
        a("s_cmp_eq_u32 s58, s49")
        a(f"s_cbranch_scc0 {l_pv}")
        a("s_cmp_lt_u32 s58, 2")
        a(f"s_cbranch_scc1 {l_sm}")
        iteration(par, False, True, True, False)
        a(f"s_branch {lnext}")
        a.label(l_sm)
        iteration(par, False, True, False, False)
        a(f"s_branch {lnext}")
        a.label(l_pv)
        a("s_add_u32 s28, s49, 1")
        a("s_cmp_eq_u32 s58, s28")
        a(f"s_cbranch_scc0 {l_none}")
        a("s_nop 1")
        iteration(par, False, False, True, False)
        a(f"s_branch {lnext}")
        a.label(l_none)
        iteration(par, False, False, False, False)
        a.label(lnext)
        a("s_add_u32 s58, s58, 1")
    a("s_add_u32 s28, s50, 2")
    a("s_cmp_lt_u32 s58, s28")
    a("s_cbranch_scc1 b_loop")
    if STAMP:
        a("s_cmp_lg_u32 s46, 0"); a("s_cbranch_scc1 b_st2"); stamp(a, 2); a.label("b_st2")
    a(f"""
    s_waitcnt lgkmcnt(0) vmcnt(0)
    s_barrier
    v_add_f32 v24, v24, v25
    v_add_f32 v26, v26, v27
    v_add_f32 v24, v24, v26
    v_add_u32 v22, s48, v3
    v_lshlrev_b32 v22, 3, v22
    s_mov_b32 s28, {G_OFF}
    buffer_load_dword v25, v22, s[20:23], s28 offen offset:4
    v_mov_b32 v19, v24
    s_nop 1
    v_permlane32_swap_b32 v19, v24
    s_nop 1
    v_add_f32 v24, v24, v19
    v_rcp_f32 v26, v24
    v_mov_b32 v19, 0
    """)
    for r in range(64):
        a(f"v_fma_f32 v19, v{O_+r}, 0, v19")
    a(f"""
    s_mov_b32 s28, {f32hex(2.0**THR)}
    v_cmp_nle_f32 vcc, v24, s28
    v_cmp_u_f32 s[62:63], v19, v19
    s_or_b64 s[62:63], s[62:63], vcc
    s_cmp_lg_u64 s[62:63], 0
    s_cselect_b32 s28, 1, 0
    v_mov_b32 v19, s28
    s_lshl_b32 s29, s3, 2
    v_mov_b32 v22, s29
    v_mov_b32 v23, 0
    ds_write_b32 v22, v19 offset:65520
    s_waitcnt lgkmcnt(0)
    s_barrier
    ds_read_b32 v28, v23 offset:65532
    ds_read_b32 v29, v23 offset:65528
    ds_read_b32 v30, v23 offset:65524
    ds_read_b32 v31, v23 offset:65520
    s_waitcnt lgkmcnt(0)
    v_or_b32 v28, v28, v29
    v_or_b32 v30, v30, v31
    v_or_b32 v28, v28, v30
    s_nop 0
    v_readfirstlane_b32 s28, v28
    s_cmp_eq_u32 s28, 0
    s_cbranch_scc1 b_ok
    s_cmp_lg_u32 s60, 0
    s_cbranch_scc1 b_ok
    """)
    a("""
    s_mov_b32 s60, 1
    s_mov_b32 s58, 0
    v_mov_b32 v22, 0xff800000
    s_barrier
    """)
    a.label("b_maxloop")
    a("""
    s_mov_b32 m0, s45
    s_lshl_b32 s52, s58, 13
    buffer_load_dwordx4 v6, s[16:19], s52 offen lds
    buffer_load_dwordx4 v6, s[16:19], s52 offen offset:1024 lds
    s_waitcnt vmcnt(0)
    s_barrier
    s_cmp_ge_u32 s58, s49
    s_cbranch_scc1 b_maxskip
    """)
    for n in range(8):
        a(f"ds_read_b128 v[{FR+4*n}:{FR+4*n+3}], v1 offset:{n*1024}")
    a("s_waitcnt lgkmcnt(0)")
    for n in range(8):
        S = S_[0]
        c = "0" if n == 0 else f"v[{S}:{S+15}]"
        a(f"{MFMA} v[{S}:{S+15}], v[{FR+4*n}:{FR+4*n+3}], v[{QF+4*n}:{QF+4*n+3}], {c}")
    a("""
    s_nop 15
    s_add_u32 s28, s58, 1
    s_cmp_lg_u32 s28, s49
    s_cbranch_scc1 b_maxnomask
    """)
    apply_mask(S_[0])
    a.label("b_maxnomask")
    for r in range(0, 16, 2):
        a(f"v_max3_f32 v22, v22, v{S_[0]+r}, v{S_[0]+r+1}")
    a.label("b_maxskip")
    a("""
    s_barrier
    s_add_u32 s58, s58, 1
    s_cmp_lt_u32 s58, s50
    s_cbranch_scc1 b_maxloop
    v_mov_b32 v19, v22
    s_nop 1
    v_permlane32_swap_b32 v19, v22
    s_nop 1
    v_max_f32 v22, v22, v19
    """)
    for r in range(16): a(f"v_sub_f32 v{NEGM+r}, 0, v22")
    a("s_branch b_redo")
    a.label("b_ok")
    a("""
    s_waitcnt vmcnt(0)
    v_mul_f32 v26, v26, v25
    """)
    for r in range(64):
        a(f"v_mul_f32 v{O_+r}, v26, v{O_+r}")
    a(f"""
    s_lshr_b32 s28, s48, 5
    s_mul_i32 s28, s28, {ZF_RG}
    s_lshl_b32 s29, s6, 13
    s_add_u32 s28, s28, s29
    s_add_u32 s28, s28, {ZF_OFF}
    s_add_u32 s29, s28, 4096
    """)
    for kk in range(8):
        t = FR + 4 * kk
        pack8(a, t, O_ + 8 * kk)
        a(f"buffer_store_dwordx4 v[{t}:{t+3}], v1, s[20:23], s{28 + (kk >> 2)} offen offset:{(kk & 3) * 1024}")
    a("""
    s_add_u32 s46, s46, 1
    s_cmp_lt_u32 s46, 2
    s_cbranch_scc1 b_task
    """)
    stamp(a, 3); stamp(a, 14, real=True)
    a("s_endpgm")

def gen_k2_A(a):
    srd(a, 12, 6, 512 * 1024)
    stamp(a, 0, tv=250); stamp(a, 15, real=True, tv=250)
    AQ = 8
    ANEG = (32, 48); AO = (64, 80); AS = (96, 112); AP = (16, 24)
    AKV = 128
    XF = 128
    a("""
    s_sub_u32 s28, s2, 256
    s_and_b32 s6, s28, 15
    s_lshr_b32 s7, s28, 4
    v_and_b32 v3, 31, v0
    v_lshrrev_b32 v4, 5, v0
    v_lshrrev_b32 v5, 2, v0
    s_lshl_b32 s28, s3, 7
    v_add_u32 v5, s28, v5
    v_lshlrev_b32 v5, 10, v5
    v_and_b32 v6, 3, v0
    v_lshl_add_u32 v5, v6, 4, v5
    s_lshl_b32 s28, s6, 6
    v_add_u32 v5, s28, v5
    s_lshl_b32 s29, s3, 13
    """)
    for g in range(2):
        a(f"s_add_u32 m0, s29, {g*4096}")
        for i in range(4):
            j = g * 4 + i
            a(f"s_mov_b32 s28, {j*16384 - i*1024}")
            a(f"buffer_load_dwordx4 v5, s[12:15], s28 offen offset:{i*1024} lds")
    a(f"""
    s_lshl_b32 s28, s7, 7
    s_lshl_b32 s29, s3, 5
    s_add_u32 s48, s28, s29
    s_lshl_b32 s28, s48, 10
    s_add_u32 s28, s28, {XF_OFF}
    """)
    for s in range(32):
        if s and s % 4 == 0: a("s_add_u32 s28, s28, 4096")
        a(f"buffer_load_dwordx4 v[{XF+4*s}:{XF+4*s+3}], v1, s[20:23], s28 offen offset:{(s&3)*1024}")
    a("""
    v_bfe_u32 v6, v0, 2, 2
    v_lshl_add_u32 v7, v4, 3, v6
    v_lshlrev_b32 v7, 6, v7
    v_bfe_u32 v6, v0, 4, 1
    v_lshl_add_u32 v7, v6, 5, v7
    v_and_b32 v6, 3, v0
    v_lshl_add_u32 v7, v6, 3, v7
    """)
    for r in range(16):
        a(f"v_mov_b32 v{AS[0]+r}, 0")
    a("s_waitcnt vmcnt(32)")
    a("s_barrier")
    WF = 64
    def wr(s):
        f = WF + 4 * (s & 3)
        a(f"ds_read_b64_tr_b16 v[{f}:{f+1}], v7 offset:{s*1024}")
        a(f"ds_read_b64_tr_b16 v[{f+2}:{f+3}], v7 offset:{s*1024+256}")
    wr(0); wr(1)
    for s in range(32):
        if s + 2 < 32:
            wr(s + 2); a(f"s_waitcnt lgkmcnt(4) vmcnt({31-s})")
        else:
            a(f"s_waitcnt lgkmcnt({2*(31-s)}) vmcnt({31-s})")
        f = WF + 4 * (s & 3)
        a(f"{MFMA} v[{AS[0]}:{AS[0]+15}], v[{f}:{f+3}], v[{XF+4*s}:{XF+4*s+3}], v[{AS[0]}:{AS[0]+15}]")
    def kvload_ops(st):
        f = AKV + 12 * st
        return [f"buffer_load_dwordx4 v[{f}:{f+3}], v1, s[20:23], s50 offen",
                f"buffer_load_dwordx4 v[{f+4}:{f+7}], v1, s[20:23], s51 offen",
                f"buffer_load_dwordx4 v[{f+8}:{f+11}], v1, s[20:23], s51 offen offset:1024",
                "s_add_u32 s50, s50, 1024",
                "s_add_u32 s51, s51, 2048"]
    a("s_nop 15")
    a(f"s_mov_b32 s28, {f32hex(LOG2E * 0.25)}")
    for r in range(16):
        a(f"v_mul_f32 v{AS[0]+r}, s28, v{AS[0]+r}")
    pack8(a, AQ, AS[0]); pack8(a, AQ + 4, AS[0] + 8)
    a("s_mov_b32 s60, 0")
    a.label("a_start")
    a(f"s_mov_b32 s50, {KA_OFF}")
    a(f"s_mov_b32 s51, {VA_OFF}")
    for st in range(4):
        for o in kvload_ops(st): a(o)
    for X in range(2):
        for r in range(16):
            a(f"v_mov_b32 v{AO[X]+r}, 0")
    a("s_waitcnt vmcnt(11)")
    a("s_cmp_eq_u32 s60, 0")
    a("s_cbranch_scc1 a_raw")
    for X in range(2):
        a(f"{MFMA} v[{AS[X]}:{AS[X]+15}], v[{AKV}:{AKV+3}], v[{AQ+4*X}:{AQ+4*X+3}], v[{ANEG[X]}:{ANEG[X]+15}]")
    a("s_nop 15")
    a("s_branch a_go")
    a.label("a_raw")
    for X in range(2):
        a(f"{MFMA} v[{AS[X]}:{AS[X]+15}], v[{AKV}:{AKV+3}], v[{AQ+4*X}:{AQ+4*X+3}], 0")
    a("s_nop 15")
    for X in range(2):
        S = AS[X]
        a(f"v_max3_f32 v6, v{S}, v{S+1}, v{S+2}")
        for r in range(3, 15, 2):
            a(f"v_max3_f32 v6, v6, v{S+r}, v{S+r+1}")
        a(f"v_max_f32 v6, v6, v{S+15}")
        a("""
        v_mov_b32 v7, v6
        s_nop 1
        v_permlane32_swap_b32 v7, v6
        s_nop 1
        v_max_f32 v6, v6, v7
        """)
        for r in range(16):
            a(f"v_sub_f32 v{S+r}, v{S+r}, v6")
        for r in range(16):
            a(f"v_sub_f32 v{ANEG[X]+r}, 0, v6")
    a.label("a_go")
    a("s_mov_b32 s52, 0")
    stamp(a, 1, tv=250)
    def valu(X):
        S = AS[X]; P = AP[X]
        ops = []
        for r in range(16):
            ops.append(f"v_exp_f32 v{S+r}, v{S+r}")
            if r >= 2 and (r & 1) == 0: ops.append(f"v_cvt_pk_bf16_f32 v{P+(r>>1)-1}, v{S+r-2}, v{S+r-1}")
        ops.append("s_nop 0")
        ops.append(f"v_cvt_pk_bf16_f32 v{P+7}, v{S+14}, v{S+15}")
        return ops
    def phase(X, kf, vf, extra=()):
        Y = X ^ 1
        ops = valu(X)
        m = [f"{MFMA} v[{AS[Y]}:{AS[Y]+15}], v[{kf}:{kf+3}], v[{AQ+4*Y}:{AQ+4*Y+3}], v[{ANEG[Y]}:{ANEG[Y]+15}]",
             f"{MFMA} v[{AO[Y]}:{AO[Y]+15}], v[{vf}:{vf+3}], v[{AP[Y]}:{AP[Y]+3}], v[{AO[Y]}:{AO[Y]+15}]",
             f"{MFMA} v[{AO[Y]}:{AO[Y]+15}], v[{vf+4}:{vf+7}], v[{AP[Y]+4}:{AP[Y]+7}], v[{AO[Y]}:{AO[Y]+15}]"]
        extra = list(extra)
        for i, o in enumerate(ops):
            if i == 0: a(m[0])
            if i == 5: a(m[1])
            if i == 11: a(m[2])
            a(o)
            if i >= 14 and extra: a(extra.pop(0))
        for o in extra: a(o)
    for o in valu(0): a(o)
    a.label("a_loop")
    for st in range(4):
        f = AKV + 12 * st
        fn = AKV + 12 * ((st + 1) & 3)
        a("s_waitcnt vmcnt(8)")
        phase(1, fn, f + 4)
        phase(0, fn, f + 4, kvload_ops(st))
    a("""
    s_add_u32 s52, s52, 1
    s_cmp_lt_u32 s52, 16
    s_cbranch_scc1 a_loop
    """)
    stamp(a, 2, tv=250)
    a(f"""
    s_nop 15
    v_lshlrev_b32 v5, 2, v3
    ds_bpermute_b32 v6, v5, v{AO[0]+8}
    ds_bpermute_b32 v7, v5, v{AO[1]+8}
    v_add_u32 v2, s48, v3
    v_lshlrev_b32 v2, 3, v2
    s_mov_b32 s28, {G_OFF}
    buffer_load_dword v2, v2, s[20:23], s28 offen
    v_mov_b32 v4, 0
    """)
    for X in range(2):
        for r in range(8): a(f"v_fma_f32 v4, v{AO[X]+r}, 0, v4")
    a(f"""
    s_mov_b32 s28, {f32hex(2.0**THR)}
    s_waitcnt lgkmcnt(0) vmcnt(0)
    v_cmp_nle_f32 vcc, v6, s28
    v_cmp_nle_f32 s[62:63], v7, s28
    s_or_b64 s[62:63], s[62:63], vcc
    v_cmp_u_f32 vcc, v4, v4
    s_or_b64 s[62:63], s[62:63], vcc
    s_cmp_eq_u64 s[62:63], 0
    s_cbranch_scc1 a_ok
    s_cmp_lg_u32 s60, 0
    s_cbranch_scc1 a_ok
    s_mov_b32 s60, 1
    s_mov_b32 s50, {KA_OFF}
    s_mov_b32 s52, 0
    v_mov_b32 v6, 0xff800000
    v_mov_b32 v7, 0xff800000
    """)
    a.label("a_maxloop")
    a(f"buffer_load_dwordx4 v[{AKV}:{AKV+3}], v1, s[20:23], s50 offen")
    a("s_add_u32 s50, s50, 1024")
    a("s_waitcnt vmcnt(0)")
    for X in range(2):
        a(f"{MFMA} v[{AS[X]}:{AS[X]+15}], v[{AKV}:{AKV+3}], v[{AQ+4*X}:{AQ+4*X+3}], 0")
    a("s_nop 15")
    for X in range(2):
        for r in range(0, 16, 2):
            a(f"v_max3_f32 v{6+X}, v{6+X}, v{AS[X]+r}, v{AS[X]+r+1}")
    a("""
    s_add_u32 s52, s52, 1
    s_cmp_lt_u32 s52, 64
    s_cbranch_scc1 a_maxloop
    """)
    for X in range(2):
        a(f"""
        v_mov_b32 v5, v{6+X}
        s_nop 1
        v_permlane32_swap_b32 v5, v{6+X}
        s_nop 1
        v_max_f32 v{6+X}, v{6+X}, v5
        """)
        for r in range(16): a(f"v_sub_f32 v{ANEG[X]+r}, 0, v{6+X}")
    a("s_branch a_start")
    a.label("a_ok")
    a(f"""
    v_rcp_f32 v6, v6
    v_rcp_f32 v7, v7
    s_nop 0
    v_mul_f32 v6, v6, v2
    v_mul_f32 v7, v7, v2
    s_lshr_b32 s28, s48, 5
    s_mul_i32 s28, s28, {ZF_RG}
    s_lshl_b32 s29, s6, 11
    s_add_u32 s28, s28, s29
    s_add_u32 s28, s28, {ZF_OFF + 256*1024}
    """)
    for X in range(2):
        for r in range(8):
            a(f"v_mul_f32 v{AO[X]+r}, v{6+X}, v{AO[X]+r}")
        pack8(a, AP[X], AO[X])
        a(f"buffer_store_dwordx4 v[{AP[X]}:{AP[X]+3}], v1, s[20:23], s28 offen offset:{X*1024}")
    stamp(a, 3, tv=250); stamp(a, 14, real=True, tv=250)
    a("s_endpgm")
```

```python
from gen2 import *
from gen2 import _stamp
import gen1

def gen_k3(a):
    name = "k3_kernel"
    kernel_begin(a, name)
    a(f"""
    s_cmp_ge_u32 s2, 256
    s_cbranch_scc1 k3_end
    s_load_dwordx2 s[4:5], s[0:1], {KA_WO}
    s_load_dwordx2 s[24:25], s[0:1], {KA_BWO}
    s_load_dwordx2 s[26:27], s[0:1], {KA_OUT}
    s_load_dwordx2 s[30:31], s[0:1], {KA_WS}
    v_lshrrev_b32 v2, 6, v0
    v_and_b32 v0, 63, v0
    v_lshlrev_b32 v1, 4, v0
    v_readfirstlane_b32 s3, v2
    s_and_b32 s28, s2, 7
    s_lshr_b32 s29, s2, 3
    s_and_b32 s7, s29, 7
    s_lshr_b32 s29, s29, 3
    s_lshl_b32 s6, s28, 2
    s_add_u32 s6, s6, s29
    s_waitcnt lgkmcnt(0)
    """)
    srd(a, 8, 24, 4*MB)
    srd(a, 12, 4, 512*1024)
    srd(a, 16, 26, 2*MB)
    srd(a, 20, 30, WS_BYTES)
    a("""
    v_lshrrev_b32 v3, 3, v0
    s_lshl_b32 s28, s3, 5
    v_add_u32 v3, s28, v3
    v_lshlrev_b32 v3, 10, v3
    v_bfe_u32 v4, v0, 4, 1
    v_lshlrev_b32 v4, 2, v4
    v_and_b32 v5, 7, v0
    v_xor_b32 v4, v4, v5
    v_lshl_add_u32 v3, v4, 4, v3
    s_lshl_b32 s28, s7, 7
    v_add_u32 v3, s28, v3
    v_mov_b32 v4, v3
    """)
    for jj in range(4):
        a(f"s_mov_b32 s{40+jj}, {jj*7168}")
    a(f"""
    s_mul_i32 s44, s6, {2*ZF_RG}
    s_lshl_b32 s28, s3, 11
    s_add_u32 s44, s44, s28
    s_add_u32 s44, s44, {ZF_OFF}
    s_add_u32 s45, s44, {ZF_RG}
    s_lshl_b32 s46, s3, 14
    """)
    a("""
    v_lshrrev_b32 v5, 5, v0
    v_bfe_u32 v6, v0, 2, 2
    v_lshl_add_u32 v5, v5, 2, v6
    v_lshlrev_b32 v5, 7, v5
    v_bfe_u32 v6, v0, 3, 1
    v_lshl_add_u32 v5, v6, 6, v5
    v_bfe_u32 v6, v0, 4, 1
    v_lshl_add_u32 v5, v6, 5, v5
    v_and_b32 v6, 3, v0
    v_lshl_add_u32 v5, v6, 3, v5
    v_add_u32 v5, s46, v5
    v_xor_b32 v6, 64, v5
    """)
    ACC = 64; ZR = 128; WF = 32
    st3 = os.environ.get("STK") == "3"
    if st3: _stamp(a, 0, tv=12); _stamp(a, 15, real=True, tv=12)
    for r in range(64):
        a(f"v_mov_b32 v{ACC+r}, 0")
    def issue(i):
        slot = i & 3
        a(f"s_add_u32 m0, s46, {slot*4096}")
        a("s_nop 0")
        if i < 16: va, sd = "v3", 8
        else:      va, sd = "v4", 12
        for jj in range(4):
            a(f"buffer_load_dwordx4 {va}, s[{sd}:{sd+3}], s{40+jj} offen offset:{jj*1024} lds")
        a(f"v_add_u32 {va}, 0x40000, {va}")
        z = ZR + 16 * slot
        a(f"buffer_load_dwordx4 v[{z}:{z+3}], v1, s[20:23], s44 offen")
        a(f"buffer_load_dwordx4 v[{z+4}:{z+7}], v1, s[20:23], s44 offen offset:1024")
        a(f"buffer_load_dwordx4 v[{z+8}:{z+11}], v1, s[20:23], s45 offen")
        a(f"buffer_load_dwordx4 v[{z+12}:{z+15}], v1, s[20:23], s45 offen offset:1024")
        a("s_add_u32 s44, s44, 16384")
        a("s_add_u32 s45, s45, 16384")
    for i in range(3):
        issue(i)
    for i in range(18):
        slot = i & 3
        rem = min(2, 17 - i)
        a(f"s_waitcnt vmcnt({8*rem})")
        if st3 and i == 0: _stamp(a, 1, tv=12)
        for s in range(2):
            for m in range(2):
                f = WF + 16 * (i & 1) + 8 * s + 4 * m
                a(f"ds_read_b64_tr_b16 v[{f}:{f+1}], v{5+m} offset:{slot*4096 + s*2048}")
                a(f"ds_read_b64_tr_b16 v[{f+2}:{f+3}], v{5+m} offset:{slot*4096 + s*2048 + 1024}")
        if i + 3 < 18:
            issue(i + 3)
        for s in range(2):
            a(f"s_waitcnt lgkmcnt({4*(1-s)})")
            for m in range(2):
                f = WF + 16 * (i & 1) + 8 * s + 4 * m
                for rg in range(2):
                    z = ZR + 16 * slot + 8 * rg + 4 * s
                    acc = ACC + 16 * (2 * m + rg)
                    a(f"{MFMA} v[{acc}:{acc+15}], v[{f}:{f+3}], v[{z}:{z+3}], v[{acc}:{acc+15}]")
    if st3: _stamp(a, 2, tv=12)
    a("s_nop 15")
    a("v_add_u32 v7, s46, v1")
    for bk in range(16):
        a(f"ds_write_b128 v7, v[{ACC+4*bk}:{ACC+4*bk+3}] offset:{bk*1024}")
    a("""
    s_waitcnt lgkmcnt(0)
    s_barrier
    s_lshl_b32 s28, s3, 11
    v_add_u32 v7, s28, v1
    v_add_u32 v8, 0x10000, v7
    """)
    for e in range(2):
        for w in range(8):
            d = 128 + 32 * e + 4 * w
            a(f"ds_read_b128 v[{d}:{d+3}], v{7 + (w >> 2)} offset:{(w & 3)*16384 + e*1024}")
    a("""
    s_lshr_b32 s28, s3, 1
    s_and_b32 s28, s28, 1
    s_lshl_b32 s28, s28, 5
    s_lshl_b32 s29, s6, 6
    s_add_u32 s28, s28, s29
    v_and_b32 v9, 31, v0
    v_add_u32 v9, s28, v9
    v_lshlrev_b32 v9, 10, v9
    v_lshrrev_b32 v10, 5, v0
    v_lshl_add_u32 v9, v10, 3, v9
    s_lshl_b32 s28, s7, 7
    s_lshr_b32 s29, s3, 2
    s_lshl_b32 s29, s29, 6
    s_add_u32 s28, s28, s29
    s_and_b32 s29, s3, 1
    s_lshl_b32 s29, s29, 5
    s_add_u32 s28, s28, s29
    """)
    for e in range(2):
        a(f"s_waitcnt lgkmcnt({8*(1-e)})")
        d = 128 + 32 * e
        for w in range(1, 8):
            for j in range(4):
                a(f"v_add_f32 v{d+j}, v{d+j}, v{d+4*w+j}")
        a(f"v_cvt_pk_bf16_f32 v{12+2*e}, v{d}, v{d+1}")
        a(f"v_cvt_pk_bf16_f32 v{13+2*e}, v{d+2}, v{d+3}")
        a(f"buffer_store_dwordx2 v[{12+2*e}:{13+2*e}], v9, s[16:19], s28 offen offset:{16*e}")
    if st3:
        a("s_waitcnt vmcnt(0)"); _stamp(a, 3, tv=12); _stamp(a, 14, real=True, tv=12)
    a.label("k3_end")
    a("s_endpgm")
    return name, "grid=(256,1,1) block=(512,1,1) lds=131072", kernel_desc(name, 192)

if __name__ == "__main__":
    build([gen1.gen_k1, gen_k2, gen_k3], sys.argv[1] if len(sys.argv) > 1 else "out.s")
```

```python
import sys
from asmlib import *

NAME = "gated_mix__grouped_kv_mqa__compressed_kv_cla__prompt"
KA_X, KA_WQ, KA_WK, KA_WV, KA_WO, KA_BX, KA_CKV, KA_BWQ, KA_WUK, KA_WUV, KA_BWO, KA_GATE, KA_OUT, KA_DBG, KA_WS = [8*i for i in range(15)]
MB = 1 << 20
KF_OFF = 0
VF_OFF = 16 * MB
KA_OFF = 32 * MB
VA_OFF = 32 * MB + 64 * 1024
G_OFF = 32 * MB + 256 * 1024
ZF_OFF = 33 * MB
ZF_RG = 288 * 1024
CNT_OFF = 55 * MB
XF_OFF = 56 * MB
WF_OFF = 64 * MB
QA_OFF = 70 * MB
WS_BYTES = 128 * MB
LOG2E = 1.4426950408889634
import struct
def f32hex(x):
    return "0x%08x" % struct.unpack("<I", struct.pack("<f", x))[0]

MFMA = "v_mfma_f32_32x32x16_bf16"

def srd(a, s, base_lo, nbytes, add=0):
    if add:
        a(f"s_add_u32 s{s}, s{base_lo}, {add}")
        a(f"s_addc_u32 s{s+1}, s{base_lo+1}, 0")
    else:
        a(f"s_mov_b32 s{s}, s{base_lo}")
        a(f"s_mov_b32 s{s+1}, s{base_lo+1}")
    a(f"s_mov_b32 s{s+2}, {nbytes}")
    a(f"s_mov_b32 s{s+3}, 0x00020000")

def kernel_begin(a, name):
    a.raw(f".globl {name}\n.p2align 8\n.type {name},@function\n{name}:")

def kernel_desc(name, vgpr, sgpr=102, accum=None):
    accum = accum if accum is not None else ((vgpr + 3) // 4) * 4
    return f""".amdhsa_kernel {name}
  .amdhsa_next_free_vgpr {vgpr}
  .amdhsa_next_free_sgpr {sgpr}
  .amdhsa_accum_offset {accum}
  .amdhsa_group_segment_fixed_size 0
  .amdhsa_kernarg_size 120
  .amdhsa_user_sgpr_count 2
  .amdhsa_user_sgpr_kernarg_segment_ptr 1
  .amdhsa_system_sgpr_workgroup_id_x 1
.end_amdhsa_kernel
"""

import os
STAMP = bool(os.environ.get("STAMP"))
ST_OFF = 60 * MB
def stamp(a, idx, wsrd=20, wavereg="s3", real=False, tv=28):
    if not STAMP: return
    a(f"{'s_memrealtime' if real else 's_memtime'} s[96:97]")
    a(f"s_lshl_b32 s98, s2, 3")
    a(f"s_add_u32 s98, s98, {wavereg}")
    a(f"s_lshl_b32 s98, s98, 8")
    a(f"s_add_u32 s98, s98, {ST_OFF + idx*8}")
    a("s_waitcnt lgkmcnt(0)")
    a(f"v_writelane_b32 v{tv}, s96, 0")
    a(f"v_writelane_b32 v{tv+1}, s97, 0")
    a(f"v_mov_b32 v{tv+2}, 0")
    a("s_mov_b64 s[100:101], exec")
    a("s_mov_b64 exec, 1")
    a(f"buffer_store_dwordx2 v[{tv}:{tv+1}], v{tv+2}, s[{wsrd}:{wsrd+3}], s98 offen")
    a("s_mov_b64 exec, s[100:101]")

def touch_code(a, tag, end_label, nwaves, nper, dstv, tmpv, sq=92):
    if os.environ.get("NOCT"): return 0
    a(f"s_getpc_b64 s[{sq}:{sq+1}]")
    a.label(f"{tag}_pc")
    a(f"s_mov_b32 s{sq+2}, {end_label}-{tag}_pc")
    a(f"s_mov_b32 s{sq+3}, 0x00020000")
    a(f"s_lshl_b32 s28, s3, 13")
    a(f"v_lshlrev_b32 v{tmpv}, 7, v0")
    for i in range(nper):
        if i: a(f"s_add_u32 s28, s28, {nwaves*8192}")
        a(f"buffer_load_dword v{dstv+i}, v{tmpv}, s[{sq}:{sq+3}], s28 offen")
    return nper

def pack8(a, dst, src):
    for i in range(4):
        a(f"v_cvt_pk_bf16_f32 v{dst+i}, v{src+2*i}, v{src+2*i+1}")

def gen_k0(a):
    name = "k0_kernel"
    kernel_begin(a, name)
    a(f"""
    s_cmp_ge_u32 s2, 64
    s_cbranch_scc1 k0_end
    s_load_dwordx2 s[4:5], s[0:1], {KA_X}
    s_load_dwordx4 s[24:27], s[0:1], {KA_WK}
    s_load_dwordx2 s[28:29], s[0:1], {KA_GATE}
    s_load_dwordx2 s[30:31], s[0:1], {KA_WS}
    s_waitcnt lgkmcnt(0)
    """)
    srd(a, 8, 4, 2*MB)
    srd(a, 12, 24, 16384)
    srd(a, 16, 26, 16384)
    srd(a, 20, 28, 1024)
    srd(a, 32, 30, WS_BYTES)
    a("v_lshlrev_b32 v1, 4, v0")
    for reg, base in ((16, 0), (12, 16384)):
        for g in range(4):
            a(f"s_mov_b32 m0, {base + g*4096}")
            a(f"s_mov_b32 s36, {g*4096}")
            for i in range(4):
                a(f"buffer_load_dwordx4 v1, s[{reg}:{reg+3}], s36 offen offset:{i*1024} lds")
    a("s_mov_b32 m0, 32768")
    a("s_nop 0")
    a("buffer_load_dwordx4 v1, s[20:23], 0 offen lds")
    a("""
    v_and_b32 v2, 31, v0
    v_lshrrev_b32 v3, 5, v0
    s_lshl_b32 s3, s2, 15
    v_lshlrev_b32 v4, 10, v2
    v_lshl_add_u32 v4, v3, 4, v4
    v_add_u32 v4, s3, v4
    """)
    for s in range(32):
        a(f"buffer_load_dwordx4 v[{64+4*s}:{67+4*s}], v4, s[8:11], 0 offen offset:{s*32}")
    a("""
    v_lshrrev_b32 v5, 4, v0
    v_and_b32 v6, 15, v0
    v_and_b32 v7, 1, v5
    v_lshlrev_b32 v7, 14, v7
    v_lshrrev_b32 v8, 1, v5
    v_lshlrev_b32 v8, 3, v8
    v_lshrrev_b32 v9, 2, v6
    v_add_u32 v8, v8, v9
    v_lshl_add_u32 v7, v8, 5, v7
    v_and_b32 v9, 3, v6
    v_lshl_add_u32 v7, v9, 3, v7
    v_lshlrev_b32 v10, 4, v3
    v_add_u32 v10, 32768, v10
    """)
    for r in range(32):
        a(f"v_mov_b32 v{192+r}, 0")
    a("v_mov_b32 v11, 0")
    a("s_waitcnt vmcnt(0)")
    a("s_barrier")
    a(f"s_add_u32 s37, s3, {XF_OFF}")
    for s in range(32):
        if s and s % 4 == 0: a("s_add_u32 s37, s37, 4096")
        a(f"buffer_store_dwordx4 v[{64+4*s}:{67+4*s}], v1, s[32:35], s37 offen offset:{(s&3)*1024}")
    for s in range(32):
        wf = 16 + 8 * (s & 1)
        a(f"ds_read_b64_tr_b16 v[{wf}:{wf+1}], v7 offset:{s*512}")
        a(f"ds_read_b64_tr_b16 v[{wf+2}:{wf+3}], v7 offset:{s*512+128}")
        a(f"ds_read_b128 v[{wf+4}:{wf+7}], v10 offset:{s*32}")
        a("s_waitcnt lgkmcnt(0)")
        xf = 64 + 4 * s
        a(f"{MFMA} v[192:207], v[{wf}:{wf+3}], v[{xf}:{xf+3}], v[192:207]")
        a(f"{MFMA} v[208:223], v[{xf}:{xf+3}], v[{wf}:{wf+3}], v[208:223]")
        for i in range(4):
            a(f"v_dot2_f32_bf16 v11, v{xf+i}, v{wf+4+i}, v11")
    a("s_nop 15")
    a("s_nop 3")
    pack8(a, 32, 200)
    a(f"s_lshl_b32 s3, s2, 10")
    a(f"s_add_u32 s36, s3, {KA_OFF}")
    a("buffer_store_dwordx4 v[32:35], v1, s[32:35], s36 offen")
    pack8(a, 36, 208)
    pack8(a, 40, 216)
    a("""
    v_mov_b32 v12, 0x3f803f80
    v_cmp_eq_u32 vcc, 16, v2
    s_nop 1
    v_cndmask_b32 v12, 0, v12, vcc
    v_cmp_gt_u32 vcc, 16, v2
    s_nop 1
    """)
    for i in range(8):
        a(f"v_cndmask_b32 v{36+i}, v12, v{36+i}, vcc")
    a(f"s_lshl_b32 s3, s2, 11")
    a(f"s_add_u32 s36, s3, {VA_OFF}")
    a("buffer_store_dwordx4 v[36:39], v1, s[32:35], s36 offen")
    a("buffer_store_dwordx4 v[40:43], v1, s[32:35], s36 offen offset:1024")
    a(f"""
    v_xor_b32 v13, 32, v0
    v_lshlrev_b32 v13, 2, v13
    ds_bpermute_b32 v14, v13, v11
    s_waitcnt lgkmcnt(0)
    v_add_f32 v11, v11, v14
    v_cvt_pk_bf16_f32 v11, v11, v11
    v_lshlrev_b32 v11, 16, v11
    v_mul_f32 v11, {f32hex(-LOG2E)}, v11
    v_exp_f32 v11, v11
    s_nop 0
    v_add_f32 v11, 1.0, v11
    v_rcp_f32 v11, v11
    s_nop 0
    v_cvt_pk_bf16_f32 v11, v11, v11
    v_lshlrev_b32 v44, 16, v11
    v_sub_f32 v45, 1.0, v44
    v_cvt_pk_bf16_f32 v45, v45, v45
    v_lshlrev_b32 v45, 16, v45
    v_lshlrev_b32 v13, 3, v2
    s_lshl_b32 s3, s2, 8
    s_add_u32 s36, s3, {G_OFF}
    v_cmp_gt_u32 vcc, 32, v0
    s_and_saveexec_b64 s[38:39], vcc
    buffer_store_dwordx2 v[44:45], v13, s[32:35], s36 offen
    s_waitcnt vmcnt(0)
    k0_end:
    s_endpgm
    """)
    return name, "grid=(64,1,1) block=(64,1,1) lds=34816", kernel_desc(name, 256)

def gen_k1(a):
    name = "k1_kernel"
    kernel_begin(a, name)
    a(f"""
    s_cmp_ge_u32 s2, 256
    s_cbranch_scc1 k1_end
    s_load_dwordx2 s[4:5], s[0:1], {KA_CKV}
    s_load_dwordx4 s[24:27], s[0:1], {KA_WUK}
    s_load_dwordx2 s[30:31], s[0:1], {KA_WS}
    v_lshrrev_b32 v2, 6, v0
    v_and_b32 v0, 63, v0
    s_nop 0
    v_readfirstlane_b32 s3, v2
    s_and_b32 s6, s2, 31
    s_lshr_b32 s7, s2, 5
    s_waitcnt lgkmcnt(0)
    """)
    srd(a, 8, 4, 2*MB)
    srd(a, 12, 24, 4*MB)
    srd(a, 16, 26, 4*MB)
    srd(a, 20, 30, WS_BYTES)
    a("v_lshlrev_b32 v1, 4, v0")
    if os.environ.get("STK") == "1": stamp(a, 0); stamp(a, 15, real=True)
    a("""
    v_lshrrev_b32 v3, 3, v0
    v_lshrrev_b32 v4, 4, v0
    v_and_b32 v5, 7, v0
    v_xor_b32 v6, v5, v4
    v_xor_b32 v7, 4, v6
    s_lshl_b32 s28, s7, 8
    s_lshl_b32 s29, s3, 5
    s_add_u32 s28, s28, s29
    v_add_u32 v3, s28, v3
    v_lshlrev_b32 v3, 10, v3
    v_lshl_add_u32 v8, v6, 4, v3
    v_lshl_add_u32 v9, v7, 4, v3
    """)
    for jj in range(4):
        a(f"s_mov_b32 s{40+jj}, {jj*7168}")
    a("""
    v_and_b32 v5, 15, v0
    v_lshlrev_b32 v6, 2, v4
    v_xor_b32 v5, v5, v6
    s_lshl_b32 s28, s3, 3
    v_add_u32 v6, s28, v4
    v_lshlrev_b32 v6, 13, v6
    v_lshl_add_u32 v6, v5, 4, v6
    s_lshl_b32 s28, s6, 8
    v_add_u32 v10, s28, v6
    """)
    a(f"s_mov_b32 s44, {32768-1024}")
    a("""
    s_lshl_b32 s45, s3, 12
    s_lshl_b32 s46, s3, 11
    s_add_u32 s47, s46, 49152
    s_add_u32 s46, s46, 32768
    """)
    def dma(st):
        a(f"s_add_u32 m0, s45, {st*65536}")
        a("s_nop 0")
        a("buffer_load_dwordx4 v8, s[8:11], s40 offen lds")
        a("buffer_load_dwordx4 v9, s[8:11], s41 offen offset:1024 lds")
        a("buffer_load_dwordx4 v8, s[8:11], s42 offen offset:2048 lds")
        a("buffer_load_dwordx4 v9, s[8:11], s43 offen offset:3072 lds")
        a(f"s_add_u32 m0, s46, {st*65536}")
        a("s_nop 0")
        a("buffer_load_dwordx4 v10, s[12:15], 0 offen lds")
        a("buffer_load_dwordx4 v10, s[12:15], s44 offen offset:1024 lds")
        a(f"s_add_u32 m0, s47, {st*65536}")
        a("s_nop 0")
        a("buffer_load_dwordx4 v10, s[16:19], 0 offen lds")
        a("buffer_load_dwordx4 v10, s[16:19], s44 offen offset:1024 lds")
        a("v_add_u32 v8, 128, v8")
        a("v_add_u32 v9, 128, v9")
        a("v_add_u32 v10, 0x80000, v10")
    dma(0)
    a("""
    v_and_b32 v3, 31, v0
    s_and_b32 s28, s3, 3
    s_lshl_b32 s28, s28, 6
    v_add_u32 v3, s28, v3
    v_lshlrev_b32 v3, 7, v3
    v_lshrrev_b32 v5, 5, v0
    v_bfe_u32 v6, v0, 1, 3
    v_xor_b32 v5, v5, v6
    v_lshl_add_u32 v12, v5, 4, v3
    v_xor_b32 v13, 32, v12
    v_xor_b32 v14, 64, v12
    v_xor_b32 v15, 96, v12
    v_add_u32 v16, 0x10000, v12
    v_add_u32 v17, 0x10000, v13
    v_add_u32 v18, 0x10000, v14
    v_add_u32 v19, 0x10000, v15
    """)
    a("""
    v_lshrrev_b32 v3, 5, v0
    v_bfe_u32 v5, v0, 2, 2
    v_lshl_add_u32 v3, v3, 3, v5
    v_lshlrev_b32 v3, 8, v3
    v_bfe_u32 v6, v0, 4, 1
    v_lshl_add_u32 v3, v6, 5, v3
    v_and_b32 v6, 3, v0
    v_lshl_add_u32 v3, v6, 3, v3
    v_lshl_add_u32 v3, v5, 6, v3
    s_lshr_b32 s28, s3, 2
    s_lshl_b32 s28, s28, 14
    s_add_u32 s28, s28, 32768
    v_add_u32 v20, s28, v3
    v_xor_b32 v21, 64, v20
    v_xor_b32 v22, 128, v20
    v_xor_b32 v23, 192, v20
    v_add_u32 v24, 0x10000, v20
    v_add_u32 v25, 0x10000, v21
    v_add_u32 v26, 0x10000, v22
    v_add_u32 v27, 0x10000, v23
    """)
    for r in range(128):
        a(f"v_mov_b32 v{128+r}, 0")
    a("s_cmp_ge_u32 s3, 4")
    a("s_cbranch_scc1 k1_vtype")
    FB = 64
    def reads(st, s, buf):
        f = FB + 24 * buf
        ca = 12 + 4 * st + s
        a(f"ds_read_b128 v[{f}:{f+3}], v{ca}")
        a(f"ds_read_b128 v[{f+4}:{f+7}], v{ca} offset:4096")
        for m in range(4):
            wa = 20 + 4 * st + m
            a(f"ds_read_b64_tr_b16 v[{f+8+4*m}:{f+9+4*m}], v{wa} offset:{s*4096}")
            a(f"ds_read_b64_tr_b16 v[{f+10+4*m}:{f+11+4*m}], v{wa} offset:{s*4096+1024}")
    def mfmas(buf, vtype):
        f = FB + 24 * buf
        for m in range(4):
            for kb in range(2):
                acc = 128 + 16 * (m * 2 + kb)
                c = f"v[{f+4*kb}:{f+4*kb+3}]"; w = f"v[{f+8+4*m}:{f+11+4*m}]"
                if vtype: a(f"{MFMA} v[{acc}:{acc+15}], {c}, {w}, v[{acc}:{acc+15}]")
                else:     a(f"{MFMA} v[{acc}:{acc+15}], {w}, {c}, v[{acc}:{acc+15}]")
    for vtype in (0, 1):
        t = "v" if vtype else "k"
        if vtype: a.label("k1_vtype")
        a("s_mov_b32 s48, 0")
        a.label(f"k1_loop_{t}")
        for st in (0, 1):
            a("s_waitcnt vmcnt(0)")
            a("s_barrier")
            if st == 0 and os.environ.get("STK") == "1":
                a("s_cmp_lg_u32 s48, 0"); a(f"s_cbranch_scc1 k1_st_{t}"); stamp(a, 1); a.label(f"k1_st_{t}")
            if st == 0:
                dma(1)
            else:
                a("s_cmp_ge_u32 s48, 3")
                a(f"s_cbranch_scc1 k1_skip_{t}")
                dma(0)
                a.label(f"k1_skip_{t}")
            reads(st, 0, 0)
            for s in range(4):
                if s < 3:
                    reads(st, s + 1, (s + 1) & 1)
                    a("s_waitcnt lgkmcnt(10)")
                else:
                    a("s_waitcnt lgkmcnt(0)")
                mfmas(s & 1, vtype)
        a("s_add_u32 s48, s48, 1")
        a("s_cmp_lt_u32 s48, 4")
        a(f"s_cbranch_scc1 k1_loop_{t}")
        if os.environ.get("STK") == "1": stamp(a, 2)
        a("s_nop 15")
        a(f"""
        s_lshl_b32 s28, s6, 19
        s_lshl_b32 s29, s7, 16
        s_add_u32 s28, s28, s29
        s_and_b32 s29, s3, 3
        s_lshl_b32 s29, s29, 14
        s_add_u32 s28, s28, s29
        s_add_u32 s28, s28, {VF_OFF if vtype else KF_OFF}
        """)
        n = 0
        for m in range(4):
            for kb in range(2):
                acc = 128 + 16 * (m * 2 + kb)
                for g in range(2):
                    tmp = 64 + 4 * (n % 8); n += 1
                    pack8(a, tmp, acc + 8 * g)
                    if vtype: off = kb * 8192 + (g * 4 + m) * 1024
                    else:     off = kb * 8192 + (2 * m + g) * 1024
                    a(f"s_add_u32 s29, s28, {off & ~4095}")
                    a(f"buffer_store_dwordx4 v[{tmp}:{tmp+3}], v1, s[20:23], s29 offen offset:{off & 4095}")
        if os.environ.get("STK") == "1":
            stamp(a, 4)
            a("s_waitcnt vmcnt(0)")
            stamp(a, 3); stamp(a, 14, real=True)
        a("s_endpgm")
    a.label("k1_end")
    a("s_endpgm")
    return name, "grid=(256,1,1) block=(512,1,1) lds=131072", kernel_desc(name, 256)

def build(kernels, path):
    a = Asm()
    infos = []
    for g in kernels:
        infos.append(g(a))
    hdr = open("cdna_kernels/%s.s.ref" % NAME).read().split("\n")
    head = [l for l in hdr if l.startswith(";") and "@launch" not in l and "Override launch" not in l and "grid=ceil" not in l]
    out = "\n".join(head) + "\n"
    for n, l, d in infos:
        out += f"; @launch kernel={n} {l}\n"
    out += '.amdgcn_target "amdgcn-amd-amdhsa--gfx950"\n.text\n'
    out += a.text()
    out += "code_end:\n"
    out += '.section .rodata,"a"\n'
    for n, l, d in infos:
        out += ".p2align 6\n" + d
    open(path, "w").write(out)
    check_hazards(a.text())

if __name__ == "__main__":
    build([gen_k0, gen_k1], sys.argv[1] if len(sys.argv) > 1 else "out.s")
```

```python
from gen import *
_stamp1 = stamp
def stamp1(a, idx, **kw):
    if os.environ.get("STK") == "1": _stamp1(a, idx, tv=2, **kw)

STG = 49152
def gen_k1(a):
    name = "k1_kernel"
    kernel_begin(a, name)
    a(f"""
    s_cmp_ge_u32 s2, 256
    s_cbranch_scc1 k1_end
    s_load_dwordx2 s[4:5], s[0:1], {KA_CKV}
    s_load_dwordx4 s[24:27], s[0:1], {KA_WUK}
    s_load_dwordx2 s[30:31], s[0:1], {KA_WS}
    s_load_dwordx2 s[64:65], s[0:1], {KA_X}
    s_load_dwordx4 s[68:71], s[0:1], {KA_WK}
    s_load_dwordx2 s[72:73], s[0:1], {KA_GATE}
    s_load_dwordx2 s[54:55], s[0:1], {KA_BWQ}
    s_load_dwordx2 s[56:57], s[0:1], {KA_BWO}
    s_load_dwordx2 s[58:59], s[0:1], {KA_WQ}
    s_load_dwordx2 s[60:61], s[0:1], {KA_WO}
    v_lshrrev_b32 v2, 6, v0
    v_and_b32 v0, 63, v0
    v_lshlrev_b32 v1, 4, v0
    v_readfirstlane_b32 s3, v2
    s_and_b32 s6, s2, 31
    s_lshr_b32 s7, s2, 5
    s_waitcnt lgkmcnt(0)
    """)
    srd(a, 8, 4, 2*MB)
    srd(a, 12, 24, 4*MB)
    srd(a, 16, 26, 4*MB)
    srd(a, 20, 30, WS_BYTES)
    stamp1(a, 0); stamp1(a, 15, real=True)
    a("""
    v_lshrrev_b32 v3, 3, v0
    v_lshrrev_b32 v4, 4, v0
    v_and_b32 v5, 7, v0
    v_xor_b32 v6, v5, v4
    v_xor_b32 v7, 4, v6
    s_lshl_b32 s28, s7, 8
    s_lshl_b32 s29, s3, 5
    s_add_u32 s28, s28, s29
    v_add_u32 v3, s28, v3
    v_lshlrev_b32 v3, 10, v3
    v_lshl_add_u32 v8, v6, 4, v3
    v_lshl_add_u32 v9, v7, 4, v3
    v_and_b32 v5, 15, v0
    v_lshlrev_b32 v6, 2, v4
    v_xor_b32 v5, v5, v6
    s_lshl_b32 s28, s3, 3
    v_add_u32 v6, s28, v4
    v_lshlrev_b32 v6, 13, v6
    v_lshl_add_u32 v6, v5, 4, v6
    s_lshl_b32 s28, s6, 8
    v_add_u32 v10, s28, v6
    s_lshl_b32 s45, s3, 12
    s_lshl_b32 s46, s3, 11
    s_add_u32 s46, s46, 32768
    """)
    def dma_ops(k):
        kt = k & 7; st = k % 3
        sd = 16 if k >= 8 else 12
        ops = [f"s_add_u32 m0, s45, {st*STG}"]
        for jj in range(4):
            ops.append(f"s_add_u32 s40, s42, {jj*7168}")
            ops.append(f"buffer_load_dwordx4 v{8 + (jj & 1)}, s[8:11], s40 offen offset:{jj*1024} lds")
        ops.append(f"s_add_u32 m0, s46, {st*STG}")
        ops.append(f"s_add_u32 s40, s43, {32768 - 1024}")
        ops.append(f"buffer_load_dwordx4 v10, s[{sd}:{sd+3}], s43 offen lds")
        ops.append(f"buffer_load_dwordx4 v10, s[{sd}:{sd+3}], s40 offen offset:1024 lds")
        ops.append("s_add_u32 s42, s42, 128")
        ops.append("s_and_b32 s42, s42, 1023")
        ops.append("s_lshl_b32 s43, s42, 12")
        return ops
    a("""
    s_lshr_b32 s42, s6, 3
    s_lshl_b32 s42, s42, 1
    s_add_u32 s42, s42, s7
    s_and_b32 s42, s42, 7
    s_lshl_b32 s42, s42, 7
    s_lshl_b32 s43, s42, 12
    """ if os.environ.get("ROT") else """
    s_mov_b32 s42, 0
    s_mov_b32 s43, 0
    """)
    a("s_cmp_ge_u32 s2, 64")
    a("s_cbranch_scc1 k1_noxl")
    srd(a, 76, 64, 2*MB)
    srd(a, 80, 68, 16384)
    srd(a, 84, 70, 16384)
    srd(a, 88, 72, 1024)
    a(f"""
    v_and_b32 v30, 31, v0
    v_lshrrev_b32 v31, 5, v0
    s_lshl_b32 s28, s2, 15
    s_lshl_b32 s29, s3, 7
    s_add_u32 s28, s28, s29
    v_lshlrev_b32 v30, 10, v30
    v_lshlrev_b32 v31, 4, v31
    v_add_u32 v30, v31, v30
    """)
    for s in range(4):
        a(f"buffer_load_dwordx4 v[{112+4*s}:{115+4*s}], v30, s[76:79], s28 offen offset:{s*32}")
    a.label("k1_noxl")
    for o in dma_ops(0) + dma_ops(1): a(o)
    NT = 0
    if not os.environ.get("NOTOUCH"):
        NT = 3
        a("""
        s_lshr_b32 s28, s2, 3
        s_lshl_b32 s28, s28, 3
        s_add_u32 s28, s28, s3
        s_lshl_b32 s28, s28, 13
        v_lshlrev_b32 v2, 7, v0
        buffer_load_dword v192, v2, s[8:11], s28 offen
        v_bfe_u32 v2, v0, 1, 3
        v_lshlrev_b32 v2, 13, v2
        v_and_b32 v3, 1, v0
        v_lshl_add_u32 v2, v3, 7, v2
        s_lshl_b32 s28, s7, 19
        s_lshl_b32 s29, s3, 16
        s_add_u32 s28, s28, s29
        s_lshl_b32 s29, s6, 8
        s_add_u32 s28, s28, s29
        buffer_load_dword v193, v2, s[12:15], s28 offen
        buffer_load_dword v194, v2, s[16:19], s28 offen
        """)
    NT += touch_code(a, "k1c", "code_end", 8, 1, 195, 2)
    a("""
    v_and_b32 v3, 31, v0
    s_lshr_b32 s28, s3, 1
    s_lshl_b32 s28, s28, 6
    v_add_u32 v3, s28, v3
    v_lshlrev_b32 v3, 7, v3
    v_lshrrev_b32 v5, 5, v0
    v_bfe_u32 v6, v0, 1, 3
    v_xor_b32 v5, v5, v6
    v_lshl_add_u32 v12, v5, 4, v3
    v_xor_b32 v13, 32, v12
    v_xor_b32 v14, 64, v12
    v_xor_b32 v15, 96, v12
    """)
    for st in (1, 2):
        for s in range(4): a(f"v_add_u32 v{12+4*st+s}, {st*STG}, v{12+s}")
    a("""
    v_lshrrev_b32 v3, 5, v0
    v_bfe_u32 v5, v0, 2, 2
    v_lshl_add_u32 v3, v3, 3, v5
    v_lshlrev_b32 v3, 8, v3
    v_bfe_u32 v6, v0, 4, 1
    v_lshl_add_u32 v3, v6, 5, v3
    v_and_b32 v6, 3, v0
    v_lshl_add_u32 v3, v6, 3, v3
    v_lshl_add_u32 v3, v5, 6, v3
    s_and_b32 s28, s3, 1
    s_lshl_b32 s28, s28, 7
    v_xor_b32 v3, s28, v3
    v_add_u32 v24, 32768, v3
    v_xor_b32 v25, 64, v24
    """)
    for st in (1, 2):
        for m in range(2): a(f"v_add_u32 v{24+2*st+m}, {st*STG}, v{24+m}")
    ACC = (128, 192)
    a(f"""
    s_lshl_b32 s28, s6, 19
    s_lshl_b32 s29, s7, 16
    s_add_u32 s28, s28, s29
    s_lshr_b32 s29, s3, 1
    s_lshl_b32 s29, s29, 14
    s_add_u32 s28, s28, s29
    s_and_b32 s29, s3, 1
    s_lshl_b32 s48, s29, 12
    s_add_u32 s48, s48, s28
    s_add_u32 s48, s48, {KF_OFF}
    s_add_u32 s49, s48, 8192
    s_lshl_b32 s50, s29, 11
    s_add_u32 s50, s50, s28
    s_add_u32 s50, s50, {VF_OFF}
    s_add_u32 s51, s50, 4096
    s_add_u32 s52, s50, 8192
    s_add_u32 s53, s50, 12288
    """)
    FB = 64
    def read_ops(u):
        k = u >> 2; s = u & 3; st = k % 3
        f = FB + 16 * (u % 3)
        ca = 12 + 4 * st + s
        ops = [f"ds_read_b128 v[{f}:{f+3}], v{ca}",
               f"ds_read_b128 v[{f+4}:{f+7}], v{ca} offset:4096"]
        for m in range(2):
            wa = 24 + 2 * st + m
            ops.append(f"ds_read_b64_tr_b16 v[{f+8+4*m}:{f+9+4*m}], v{wa} offset:{s*4096}")
            ops.append(f"ds_read_b64_tr_b16 v[{f+10+4*m}:{f+11+4*m}], v{wa} offset:{s*4096+1024}")
        return ops
    def epi_ops(ps):
        ops = []
        n = 0
        for m in range(2):
            for kb in range(2):
                acc = ACC[ps] + 16 * (m * 2 + kb)
                for g in range(2):
                    tmp = 32 + 4 * (n % 8); n += 1
                    for i in range(4):
                        ops.append(f"v_cvt_pk_bf16_f32 v{tmp+i}, v{acc+8*g+2*i}, v{acc+8*g+2*i+1}")
                    if ps == 0: sreg, off = 48 + kb, (2 * m + g) * 1024
                    else:       sreg, off = 50 + 2 * kb + g, m * 1024
                    fl = os.environ.get("K1ST%d" % ps, "")
                    if fl == "none": continue
                    ops.append(f"buffer_store_dwordx4 v[{tmp}:{tmp+3}], v1, s[20:23], s{sreg} offen offset:{off} {fl}")
        return ops
    a.label("k1_nox")
    a(f"""
    s_sub_u32 s28, s2, 64
    s_cmp_ge_u32 s28, 32
    s_cbranch_scc1 k1_nocnt
    s_cmp_lg_u32 s3, 0
    s_cbranch_scc1 k1_nocnt
    s_lshl_b32 s28, s28, 8
    s_add_u32 s28, s28, {CNT_OFF}
    v_mov_b32 v30, 0
    v_lshlrev_b32 v31, 2, v0
    buffer_store_dword v30, v31, s[20:23], s28 offen
    """)
    a.label("k1_nocnt")
    a("s_sub_u32 s28, s2, 64")
    a("s_cmp_ge_u32 s28, 32")
    a("s_cbranch_scc1 k1_w1")
    a("s_waitcnt vmcnt(0)")
    a.label("k1_w1")
    a(f"s_waitcnt vmcnt({NT})")
    a("s_barrier")
    stamp1(a, 1)
    for o in read_ops(0) + read_ops(1): a(o)
    stores_pending = 0
    for k in range(16):
        ps = k >> 3
        if k > 0:
            a(f"s_waitcnt vmcnt({8 if k == 10 else ({15: 14}.get(k, 0) if not os.environ.get('NOPF') else 0)})")
            a("s_barrier")
        early = dma_ops(k + 2) if k + 2 < 16 else []
        if k == 14:
            a("s_cmp_ge_u32 s2, 64")
            a("s_cbranch_scc1 k1_nox2")
            a(f"""
            s_mul_i32 s28, s3, 6144
            s_add_u32 m0, s28, {STG}
            s_lshl_b32 s41, s3, 11
            buffer_load_dwordx4 v1, s[84:87], s41 offen lds
            buffer_load_dwordx4 v1, s[84:87], s41 offen offset:1024 lds
            s_add_u32 m0, s28, {STG + 2048}
            s_lshl_b32 s29, s3, 7
            buffer_load_dwordx4 v1, s[80:83], s41 offen lds
            buffer_load_dwordx4 v1, s[80:83], s41 offen offset:1024 lds
            """)
            for s in range(4):
                a(f"buffer_load_dwordx4 v[{160+4*s}:{163+4*s}], v31, s[88:91], s29 offen offset:{s*32}")
            a.label("k1_nox2")
        extra = epi_ops(0) if k == 9 else []
        if k == 14 and not os.environ.get("NOPF"):
            extra = ["s_mov_b32 s92, s54", "s_mov_b32 s93, s55", f"s_mov_b32 s94, {4*MB}", "s_mov_b32 s95, 0x00020000",
                     "s_lshl_b32 s40, s2, 3", "s_add_u32 s40, s40, s3", "s_lshl_b32 s41, s40, 8", "s_lshl_b32 s40, s40, 11",
                     "buffer_load_dwordx4 v[128:131], v1, s[92:95], s40 offen",
                     "buffer_load_dwordx4 v[132:135], v1, s[92:95], s40 offen offset:1024",
                     "s_mov_b32 s92, s56", "s_mov_b32 s93, s57",
                     "buffer_load_dwordx4 v[136:139], v1, s[92:95], s40 offen",
                     "buffer_load_dwordx4 v[140:143], v1, s[92:95], s40 offen offset:1024",
                     "s_mov_b32 s92, s58", "s_mov_b32 s93, s59", f"s_mov_b32 s94, {512*1024}", "v_lshlrev_b32 v2, 2, v0",
                     "buffer_load_dword v144, v2, s[92:95], s41 offen",
                     "s_mov_b32 s92, s60", "s_mov_b32 s93, s61",
                     "buffer_load_dword v145, v2, s[92:95], s41 offen"]
        nslots = 16
        for s in range(4):
            u = 4 * k + s
            a(f"s_waitcnt lgkmcnt({6 if u + 1 < 64 else 0})")
            rq = read_ops(u + 2) if u + 2 < 64 else []
            f = FB + 16 * (u % 3)
            i = 0
            for m in range(2):
                for kb in range(2):
                    acc = ACC[ps] + 16 * (m * 2 + kb)
                    c = f"v[{f+4*kb}:{f+4*kb+3}]"; w = f"v[{f+8+4*m}:{f+11+4*m}]"
                    ci = "0" if (u & 31) == 0 else f"v[{acc}:{acc+15}]"
                    if ps: a(f"{MFMA} v[{acc}:{acc+15}], {c}, {w}, {ci}")
                    else:  a(f"{MFMA} v[{acc}:{acc+15}], {w}, {c}, {ci}")
                    for o in rq[2*i: 2*i+2]: a(o)
                    i += 1
                    if early:
                        for o in early[:4]: a(o)
                        early = early[4:]
                        nslots -= 1
                        continue
                    ne = -(-len(extra) // nslots)
                    for o in extra[:ne]: a(o)
                    extra = extra[ne:]
                    nslots -= 1
        assert not extra
    stamp1(a, 2)
    a("s_nop 15")
    for o in epi_ops(1): a(o)
    stamp1(a, 4)
    XB = STG; GB = 3 * STG
    a("s_cmp_ge_u32 s2, 64")
    a("s_cbranch_scc1 k1_fin")
    a(f"""
    s_mul_i32 s28, s3, 6144
    s_add_u32 s28, s28, {XB}
    s_lshl_b32 s29, s2, 15
    s_lshl_b32 s41, s3, 12
    s_add_u32 s29, s29, s41
    s_add_u32 s29, s29, {XF_OFF}
    v_lshrrev_b32 v5, 4, v0
    v_and_b32 v6, 15, v0
    v_and_b32 v7, 1, v5
    v_lshlrev_b32 v7, 11, v7
    v_lshrrev_b32 v2, 1, v5
    v_lshlrev_b32 v2, 3, v2
    v_lshrrev_b32 v3, 2, v6
    v_add_u32 v2, v2, v3
    v_lshl_add_u32 v7, v2, 5, v7
    v_and_b32 v3, 3, v6
    v_lshl_add_u32 v7, v3, 3, v7
    v_add_u32 v7, s28, v7
    v_mov_b32 v11, 0
    s_waitcnt vmcnt(8)
    """)
    for s in range(4):
        a(f"buffer_store_dwordx4 v[{112+4*s}:{115+4*s}], v1, s[20:23], s29 offen offset:{s*1024}")
    for s in range(4):
        a(f"ds_read_b64_tr_b16 v[{64+4*s}:{65+4*s}], v7 offset:{s*512}")
        a(f"ds_read_b64_tr_b16 v[{66+4*s}:{67+4*s}], v7 offset:{s*512+128}")
    a("s_waitcnt lgkmcnt(0)")
    for s in range(4):
        xf = 112 + 4 * s; wf = 64 + 4 * s
        c1 = "0" if s == 0 else "v[128:143]"; c2 = "0" if s == 0 else "v[144:159]"
        a(f"{MFMA} v[128:143], v[{wf}:{wf+3}], v[{xf}:{xf+3}], {c1}")
        a(f"{MFMA} v[144:159], v[{xf}:{xf+3}], v[{wf}:{wf+3}], {c2}")
        for i in range(4):
            a(f"v_dot2_f32_bf16 v11, v{xf+i}, v{160+4*s+i}, v11")
    a(f"""
    s_nop 15
    v_add_u32 v2, s28, v1
    s_lshl_b32 s29, s3, 8
    v_lshlrev_b32 v3, 2, v0
    v_add_u32 v3, s29, v3
    v_add_u32 v3, {GB}, v3
    """)
    for b in range(6):
        a(f"ds_write_b128 v2, v[{136+4*b}:{139+4*b}] offset:{b*1024}")
    a("ds_write_b32 v3, v11")
    a("s_waitcnt lgkmcnt(0)")
    a("s_barrier")
    a("s_cmp_ge_u32 s3, 3")
    a("s_cbranch_scc1 k1_gate")
    a(f"""
    s_lshl_b32 s28, s3, 11
    v_add_u32 v2, s28, v1
    v_add_u32 v2, {XB}, v2
    """)
    for w in range(8):
        a(f"ds_read_b128 v[{128+8*w}:{131+8*w}], v2 offset:{w*6144}")
        a(f"ds_read_b128 v[{132+8*w}:{135+8*w}], v2 offset:{w*6144+1024}")
    a("s_waitcnt lgkmcnt(0)")
    for w in range(1, 8):
        for j in range(8): a(f"v_add_f32 v{128+j}, v{128+j}, v{128+8*w+j}")
    pack8(a, 32, 128)
    a("s_cmp_lg_u32 s3, 0")
    a("s_cbranch_scc1 k1_va")
    a(f"""
    s_lshl_b32 s28, s2, 10
    s_add_u32 s28, s28, {KA_OFF}
    buffer_store_dwordx4 v[32:35], v1, s[20:23], s28 offen
    s_branch k1_fin
    """)
    a.label("k1_va")
    a("""
    v_and_b32 v2, 31, v0
    v_mov_b32 v3, 0x3f803f80
    v_cmp_eq_u32 vcc, 16, v2
    s_nop 1
    v_cndmask_b32 v3, 0, v3, vcc
    v_cmp_gt_u32 vcc, 16, v2
    s_nop 1
    """)
    for i in range(4): a(f"v_cndmask_b32 v{32+i}, v3, v{32+i}, vcc")
    a(f"""
    s_lshl_b32 s28, s2, 11
    s_lshl_b32 s29, s3, 10
    s_add_u32 s28, s28, s29
    s_add_u32 s28, s28, {VA_OFF - 1024}
    buffer_store_dwordx4 v[32:35], v1, s[20:23], s28 offen
    s_branch k1_fin
    """)
    a.label("k1_gate")
    a("s_cmp_lg_u32 s3, 3")
    a("s_cbranch_scc1 k1_fin")
    a(f"""
    v_lshlrev_b32 v3, 2, v0
    v_add_u32 v3, {GB}, v3
    """)
    for w in range(8): a(f"ds_read_b32 v{128+w}, v3 offset:{w*256}")
    a("s_waitcnt lgkmcnt(0)")
    for w in range(1, 8): a(f"v_add_f32 v128, v128, v{128+w}")
    a(f"""
    v_mov_b32 v11, v128
    s_nop 1
    v_permlane32_swap_b32 v11, v128
    s_nop 1
    v_add_f32 v11, v11, v128
    v_cvt_pk_bf16_f32 v11, v11, v11
    v_lshlrev_b32 v11, 16, v11
    v_mul_f32 v11, {f32hex(-LOG2E)}, v11
    v_exp_f32 v11, v11
    s_nop 0
    v_add_f32 v11, 1.0, v11
    v_rcp_f32 v11, v11
    s_nop 0
    v_cvt_pk_bf16_f32 v11, v11, v11
    v_lshlrev_b32 v44, 16, v11
    v_sub_f32 v45, 1.0, v44
    v_cvt_pk_bf16_f32 v45, v45, v45
    v_lshlrev_b32 v45, 16, v45
    v_lshlrev_b32 v3, 3, v0
    s_lshl_b32 s28, s2, 8
    s_add_u32 s28, s28, {G_OFF}
    v_cmp_gt_u32 vcc, 32, v0
    s_and_saveexec_b64 s[38:39], vcc
    buffer_store_dwordx2 v[44:45], v3, s[20:23], s28 offen
    s_mov_b64 exec, s[38:39]
    """)
    a.label("k1_fin")
    if os.environ.get("STK") == "1" and STAMP:
        a("s_waitcnt vmcnt(0)")
        stamp1(a, 3); stamp1(a, 14, real=True)
    a.label("k1_end")
    a("s_endpgm")
    return name, f"grid=(256,1,1) block=(512,1,1) lds={3*STG+2048}", kernel_desc(name, 256)
```

```python
from gen import *
_stamp = stamp
def stamp(a, idx, **kw):
    if os.environ.get("STK", "2") == "2": _stamp(a, idx, **kw)

class VM:
    def __init__(self): self.q = []
    def issue(self, tag): self.q.append(tag)
    def need(self, tags):
        idx = max(i for i, t in enumerate(self.q) if t in tags)
        n = len(self.q) - 1 - idx
        self.q = self.q[idx+1:]
        return n

def gen_k2(a):
    name = "k2_kernel"
    kernel_begin(a, name)
    a(f"""
    s_cmp_ge_u32 s2, 512
    s_cbranch_scc1 k2_end
    s_load_dwordx2 s[6:7], s[0:1], {KA_WQ}
    s_load_dwordx2 s[24:25], s[0:1], {KA_BWQ}
    s_load_dwordx2 s[30:31], s[0:1], {KA_WS}
    v_lshrrev_b32 v2, 6, v0
    v_and_b32 v0, 63, v0
    v_lshlrev_b32 v1, 4, v0
    v_readfirstlane_b32 s3, v2
    s_waitcnt lgkmcnt(0)
    """)
    srd(a, 20, 30, WS_BYTES)
    a("s_cmp_ge_u32 s2, 256")
    a("s_cbranch_scc1 k2_roleA")
    if os.environ.get("NOB"): a("s_endpgm")
    gen_k2_B(a)
    a.label("k2_roleA")
    if os.environ.get("NOA"): a("s_endpgm")
    gen_k2_A(a)
    a.label("k2_end")
    a("s_endpgm")
    return name, "grid=(512,1,1) block=(256,1,1) lds=81920", kernel_desc(name, 256)

O_ = 192; QF = 160; S_ = (128, 144); NEGM = 112; P_ = (96, 104); Q2 = 64; FR = 32
SLOT = 16384
THR = float(os.environ.get('THR', '60'))
def gen_k2_B(a):
    srd(a, 12, 24, 4*MB)
    if os.environ.get("BPRIO"): a(f"s_setprio {os.environ['BPRIO']}")
    a("""
    s_and_b32 s6, s2, 7
    s_lshr_b32 s28, s2, 3
    s_and_b32 s7, s28, 7
    s_lshr_b32 s28, s28, 3
    s_lshl_b32 s28, s28, 3
    s_add_u32 s6, s6, s28
    s_lshl_b32 s28, s6, 19
    """)
    a(f"""
    s_add_u32 s16, s30, s28
    s_addc_u32 s17, s31, 0
    s_mov_b32 s18, 524288
    s_mov_b32 s19, 0x00020000
    s_add_u32 s32, s16, {VF_OFF - 16384}
    s_addc_u32 s33, s17, 0
    s_mov_b32 s34, 524288
    s_mov_b32 s35, 0x00020000
    v_and_b32 v3, 31, v0
    v_lshrrev_b32 v4, 5, v0
    """)
    stamp(a, 0); stamp(a, 15, real=True)
    a("""
    v_lshrrev_b32 v5, 4, v0
    v_and_b32 v6, 15, v0
    v_lshlrev_b32 v7, 2, v5
    v_xor_b32 v6, v6, v7
    s_lshl_b32 s28, s3, 4
    v_add_u32 v7, s28, v5
    v_lshlrev_b32 v7, 13, v7
    v_lshl_add_u32 v7, v6, 4, v7
    s_lshl_b32 s28, s6, 8
    v_add_u32 v13, s28, v7
    """)
    for jj in range(4):
        a(f"s_mov_b32 s{40+jj}, {jj*(32768-1024)}")
    a("s_lshl_b32 s44, s3, 12")
    a("s_lshl_b32 s45, s3, 11")
    vm = VM()
    def wq_dma(c):
        a(f"s_add_u32 m0, s44, {(c % 5) * 16384}")
        a("s_nop 0")
        for jj in range(4):
            a(f"buffer_load_dwordx4 v13, s[12:15], s{40+jj} offen offset:{jj*1024} lds")
            vm.issue(("w", c))
        a("v_add_u32 v13, 0x80000, v13")
    a(f"""
    s_sub_u32 s28, 15, s7
    s_lshl_b32 s28, s28, 2
    s_add_u32 s28, s28, s3
    s_lshl_b32 s28, s28, 15
    s_add_u32 s48, s28, {XF_OFF}
    s_lshl_b32 s28, s7, 2
    s_add_u32 s28, s28, s3
    s_lshl_b32 s28, s28, 15
    s_add_u32 s49, s28, {XF_OFF}
    """)
    XR = 32
    def xload1(c, s):
        for t in range(2):
            r = XR + 32 * (c & 1) + 16 * t + 4 * s
            a(f"buffer_load_dwordx4 v[{r}:{r+3}], v1, s[20:23], s{48+t} offen offset:{s*1024}")
            vm.issue(("x", c, s))
        if s == 3:
            for t in range(2): a(f"s_add_u32 s{48+t}, s{48+t}, 4096")
    def xload(c):
        for s in range(4): xload1(c, s)
    wq_dma(0); xload(0)
    for i in range(touch_code(a, "k2c", "k2_end", 4, 1, 31, 5)): vm.issue("ct")
    if os.environ.get("QST"):
        stamp(a, 12); vm.issue("st")
    a("""
    v_bfe_u32 v6, v0, 2, 2
    v_lshl_add_u32 v7, v4, 3, v6
    v_lshlrev_b32 v7, 8, v7
    v_bfe_u32 v8, v0, 4, 1
    v_lshl_add_u32 v7, v8, 5, v7
    v_and_b32 v8, 3, v0
    v_lshl_add_u32 v7, v8, 3, v7
    v_lshl_add_u32 v8, v6, 6, v7
    v_xor_b32 v9, 64, v8
    v_xor_b32 v10, 128, v8
    v_xor_b32 v11, 192, v8
    v_add_u32 v14, 0x10000, v8
    v_add_u32 v15, 0x10000, v9
    v_add_u32 v16, 0x10000, v10
    v_add_u32 v17, 0x10000, v11
    s_lshl_b32 s28, s3, 11
    v_add_u32 v6, s28, v1
    v_lshlrev_b32 v18, 2, v4
    v_sub_u32 v18, v3, v18
    """)
    ACC = (192, 128)
    wq_dma(1); xload(1)
    WF = 96
    def wread_ops(c, s):
        f = WF + 16 * (s & 1)
        slot = c % 5
        ops = []
        for m in range(4):
            ar = (14 + m) if slot == 4 else (8 + m)
            base = 0 if slot == 4 else slot * 16384
            ops.append(f"ds_read_b64_tr_b16 v[{f+4*m}:{f+4*m+1}], v{ar} offset:{base + s*4096}")
            ops.append(f"ds_read_b64_tr_b16 v[{f+4*m+2}:{f+4*m+3}], v{ar} offset:{base + s*4096 + 1024}")
        return ops
    def wreads(c, s):
        for o in wread_ops(c, s): a(o)
    def task_setup():
        a("""
        s_sub_u32 s47, 15, s7
        s_cmp_eq_u32 s46, 0
        s_cselect_b32 s47, s47, s7
        s_lshl_b32 s50, s47, 2
        s_add_u32 s50, s50, 4
        s_lshl_b32 s18, s50, 13
        s_add_u32 s34, s18, 16384
        s_mov_b32 s52, 0
        """)
    def c_dma_ops():
        return ["s_mov_b32 m0, s53",
                "s_add_u32 s28, s53, 8192",
                "buffer_load_dwordx4 v6, s[16:19], s52 offen lds",
                "buffer_load_dwordx4 v6, s[16:19], s52 offen offset:1024 lds",
                "s_mov_b32 m0, s28",
                "s_add_u32 s53, s53, 16384",
                "buffer_load_dwordx4 v6, s[32:35], s52 offen lds",
                "buffer_load_dwordx4 v6, s[32:35], s52 offen offset:1024 lds",
                "s_add_u32 s52, s52, 8192",
                "s_cmp_ge_u32 s53, 81920",
                "s_cselect_b32 s53, s45, s53"]
    a("s_mov_b32 s46, 0")
    task_setup()
    a(f"s_add_u32 s53, s45, {3*SLOT}")
    a(f"s_mov_b32 s61, {3*SLOT}")
    if os.environ.get("QST"):
        stamp(a, 13); vm.issue("st")
    wsched = {0: [2, 3], 1: [4, 5], 2: [6], 3: [7]}
    for c in range(8):
        need = {('w', c), ('x', c, 0)}
        if 1 <= c < 7: need.add(('w', c + 1))
        need = {t for t in need if t in vm.q}
        a(f"s_waitcnt vmcnt({vm.need(need)})")
        a("s_barrier")
        if os.environ.get("QST"):
            stamp(a, 4 + c); vm.issue("st")
        if c <= 1: wreads(c, 0)
        for s in range(4):
            w = ""
            if s > 0 and ("x", c, s) in vm.q: w = f" vmcnt({vm.need({('x', c, s)})})"
            if s < 3: rq = wread_ops(c, s + 1)
            elif 1 <= c < 7: rq = wread_ops(c + 1, 0)
            else: rq = []
            a("s_waitcnt lgkmcnt(0)" + w)
            f = WF + 16 * (s & 1)
            for m in range(4):
                for t in range(2):
                    xf = XR + 32 * (c & 1) + 16 * t + 4 * s
                    acc = ACC[t] + 16 * m
                    cin = "0" if (c == 0 and s == 0) else f"v[{acc}:{acc+15}]"
                    a(f"{MFMA} v[{acc}:{acc+15}], v[{f+4*m}:{f+4*m+3}], v[{xf}:{xf+3}], {cin}")
                    if m < 2:
                        for o in rq[:2]: a(o)
                        rq = rq[2:]
                if m == 2 and s < len(wsched.get(c, [])): wq_dma(wsched[c][s])
                if m == 2 and s == 0 and c >= 5:
                    for o in c_dma_ops():
                        a(o)
                        if o.startswith("buffer"): vm.issue(("c", c))
            if c + 2 < 8: xload1(c + 2, s)
    stamp(a, 1)
    a("s_mov_b32 s60, 0")
    a.label("b_task")
    a("""
    s_lshl_b32 s28, s47, 7
    s_lshl_b32 s29, s3, 5
    s_add_u32 s48, s28, s29
    s_sub_u32 s49, s50, 3
    s_add_u32 s49, s49, s3
    """)
    lq2 = a.newlabel("b_q2")
    lqd = a.newlabel("b_qd")
    a("s_cmp_lg_u32 s60, 0")
    a(f"s_cbranch_scc1 {lqd}")
    a("s_cmp_lg_u32 s46, 0")
    a(f"s_cbranch_scc1 {lq2}")
    a(f"s_mov_b32 s28, {f32hex(LOG2E * 128 ** -0.5)}")
    for r in range(128):
        a(f"v_mul_f32 v{128+r}, s28, v{128+r}")
    for s in range(8): pack8(a, Q2 + 4 * s, ACC[1] + 8 * s)
    for s in range(8): pack8(a, QF + 4 * s, ACC[0] + 8 * s)
    a(f"s_branch {lqd}")
    a.label(lq2)
    for r in range(32): a(f"v_mov_b32 v{QF+r}, v{Q2+r}")
    a.label(lqd)
    for r in range(64): a(f"v_mov_b32 v{O_+r}, 0")
    for r in range(4): a(f"v_mov_b32 v{24+r}, 0")
    a(f"""
    s_add_u32 s56, s61, {SLOT}
    s_mov_b32 s58, 0
    v_add_u32 v20, s61, v1
    """)
    def apply_mask(base):
        a("v_mov_b32 v19, 0xff800000")
        for r in range(16):
            a(f"v_cmp_gt_i32 vcc, {8*(r>>2)+(r&3)}, v18")
            a("s_nop 1")
            a(f"v_cndmask_b32 v{base+r}, v{base+r}, v19, vcc")

    def mf(n, par, cinit=None):
        f = FR + 4 * (n & 7)
        if n < 8:
            S = S_[par]
            c = (cinit or f"v[{NEGM}:{NEGM+15}]") if n == 0 else f"v[{S}:{S+15}]"
            return f"{MFMA} v[{S}:{S+15}], v[{f}:{f+3}], v[{QF+4*n}:{QF+4*n+3}], {c}"
        k = n - 8; ks = k >> 2; b = k & 3
        P = P_[par]
        return f"{MFMA} v[{O_+16*b}:{O_+16*b+15}], v[{f}:{f+3}], v[{P+4*ks}:{P+4*ks+3}], v[{O_+16*b}:{O_+16*b+15}]"
    def rd(j, par):
        f = FR + 4 * (j & 7)
        if j < 16: return f"ds_read_b128 v[{f}:{f+3}], v{20+par} offset:{j*1024}"
        return f"ds_read_b128 v[{f}:{f+3}], v{20+(par^1)} offset:{(j-16)*1024}"
    def sm_ops(par):
        S = S_[par]; P = P_[par]
        ops = []
        for r in range(16):
            ops.append(f"v_exp_f32 v{S+r}, v{S+r}")
            if r >= 1: ops.append(f"v_add_f32 v{24+((r-1)&3)}, v{24+((r-1)&3)}, v{S+r-1}")
            if r & 1: ops.append(f"v_cvt_pk_bf16_f32 v{P+(r>>1)}, v{S+r-1}, v{S+r}")
        ops.append(f"v_add_f32 v27, v27, v{S+15}")
        return ops
    def cost(o):
        return 8 if o.startswith("v_exp") else 4
    NPF = 4
    def iteration(par, doQK, doSM, doPV, prefetched, extra=(), cinit=None, last=()):
        M = (list(range(8)) if doQK else []) + (list(range(8, 16)) if doPV else [])
        seq = M + (list(range(16, 16 + NPF)) if doQK else [])
        book = [f"v_add_u32 v{20+(par^1)}, s56, v1",
                f"s_add_u32 s56, s56, {SLOT}",
                "s_cmp_ge_u32 s56, 81920",
                "s_cselect_b32 s56, 0, s56"]
        fill = sm_ops(par ^ 1) if doSM else []
        if os.environ.get("NOSM"): fill = []
        extra = list(extra)
        nM = len(M)
        if nM == 0:
            for o in book + fill + extra + list(last): a(o)
            return
        def slot(idx): return idx & 7
        def rdi(idx):
            j = seq[idx]; f = FR + 4 * slot(idx)
            if j < 16: return f"ds_read_b128 v[{f}:{f+3}], v{20+par} offset:{j*1024}"
            return f"ds_read_b128 v[{f}:{f+3}], v{20+(par^1)} offset:{(j-16)*1024}"
        def mfi(idx):
            n = seq[idx]; f = FR + 4 * slot(idx)
            if n < 8:
                S = S_[par]
                c = (cinit or f"v[{NEGM}:{NEGM+15}]") if n == 0 else f"v[{S}:{S+15}]"
                return f"{MFMA} v[{S}:{S+15}], v[{f}:{f+3}], v[{QF+4*n}:{QF+4*n+3}], {c}"
            k = n - 8; ks = k >> 2; b = k & 3
            P = P_[par]
            return f"{MFMA} v[{O_+16*b}:{O_+16*b+15}], v[{f}:{f+3}], v[{P+4*ks}:{P+4*ks+3}], v[{O_+16*b}:{O_+16*b+15}]"
        if not (prefetched and doQK):
            for idx in range(4): a(rdi(idx))
        nv = nM - nM // 4
        tot = sum(cost(o) for o in fill)
        done = 0; gi = 0
        ngrp = nM // 4
        for p in range(nM):
            if p % 4 == 0: a("s_waitcnt lgkmcnt(0)")
            a(mfi(p))
            if p == nM - 1:
                for o in last: a(o)
            if p % 4 == 0:
                if p == 0:
                    for o in book: a(o)
                for idx in range(p + 4, min(p + 8, len(seq))): a(rdi(idx))
                if XPOS == 0:
                    k = -(-len(extra) // (ngrp - p // 4))
                    for o in extra[:k]: a(o)
                    extra = extra[k:]
            else:
                gi += 1
                tgt = tot * gi / nv
                while fill and (done + cost(fill[0]) / 2 <= tgt or gi == nv):
                    done += cost(fill[0]); a(fill.pop(0))
                if XPOS == 1 and extra:
                    k = -(-len(extra) // max(1, (nv - 2) - gi + 1)) if gi <= nv - 2 else len(extra)
                    for o in extra[:k]: a(o)
                    extra = extra[k:]
        assert not fill and not extra, (fill, extra)
    XPOS = int(os.environ.get("XPOS", "1"))

    a.label("b_loop")
    a("s_cmp_lt_u32 s58, 2")
    a("s_cbranch_scc1 b_slow")
    a("s_add_u32 s28, s58, 6")
    a("s_cmp_gt_u32 s28, s50")
    a("s_cbranch_scc1 b_slow")
    a("s_sub_u32 s59, s50, 4")
    a.label("b_fast")
    if not os.environ.get("NOWAIT"): a("s_waitcnt vmcnt(0)")
    if not os.environ.get("NOBAR"): a("s_barrier")
    extra = c_dma_ops() + c_dma_ops()
    if os.environ.get("NODMA"): extra = [o for o in extra if not o.startswith("buffer")]
    iteration(0, True, True, True, True, extra)
    iteration(1, True, True, True, True, ["s_add_u32 s58, s58, 2"], last=["s_cmp_lt_u32 s58, s59"])
    a("s_cbranch_scc1 b_fast")
    a.label("b_slow")
    for par in (0, 1):
        extra = []
        if par == 0:
            if not os.environ.get("NOWAIT"): a("s_waitcnt vmcnt(0)")
            if not os.environ.get("NOBAR"): a("s_barrier")
            extra = c_dma_ops() + c_dma_ops()
            if os.environ.get("NODMA"): extra = [o for o in extra if not o.startswith("buffer")]
        lnext = a.newlabel("b_next")
        lns = a.newlabel("b_nonsteady")
        ld = a.newlabel("b_nodiag")
        a("s_add_u32 s28, s58, 1")
        a("s_cmp_lg_u32 s28, s49")
        a(f"s_cbranch_scc1 {ld}")
        apply_mask(NEGM)
        a.label(ld)
        a("s_cmp_lt_u32 s58, 2")
        a(f"s_cbranch_scc1 {lns}")
        a("s_cmp_ge_u32 s58, s49")
        a(f"s_cbranch_scc1 {lns}")
        iteration(par, True, True, True, True, extra)
        a(f"s_branch {lnext}")
        a.label(lns)
        for o in extra: a(o)
        l_g = a.newlabel("b_ge"); l_smpv = a.newlabel("b_smpv"); l_pv = a.newlabel("b_pv"); l_none = a.newlabel("b_none"); l_sm = a.newlabel("b_sm")
        a("s_cmp_ge_u32 s58, s49")
        a(f"s_cbranch_scc1 {l_g}")
        if par == 0:
            lr = a.newlabel("b_g0raw")
            a("s_cmp_eq_u32 s60, 0")
            a(f"s_cbranch_scc1 {lr}")
            iteration(0, True, False, False, False)
            a(f"s_branch {lnext}")
            a.label(lr)
            iteration(0, True, False, False, False, cinit="0")
            a("s_nop 15")
            lm = a.newlabel("b_nomask0")
            a("s_cmp_lg_u32 s49, 1")
            a(f"s_cbranch_scc1 {lm}")
            apply_mask(S_[0])
            a.label(lm)
            S = S_[0]
            a(f"v_max3_f32 v22, v{S}, v{S+1}, v{S+2}")
            for r in range(3, 15, 2):
                a(f"v_max3_f32 v22, v22, v{S+r}, v{S+r+1}")
            a(f"v_max_f32 v22, v22, v{S+15}")
            a("""
            v_mov_b32 v19, v22
            s_nop 1
            v_permlane32_swap_b32 v19, v22
            s_nop 1
            v_max_f32 v22, v22, v19
            """)
            for r in range(16): a(f"v_sub_f32 v{S+r}, v{S+r}, v22")
            for r in range(16): a(f"v_sub_f32 v{NEGM+r}, 0, v22")
        else:
            iteration(1, True, True, False, True)
        a(f"s_branch {lnext}")
        a.label(l_g)
        a("s_cmp_eq_u32 s58, s49")
        a(f"s_cbranch_scc0 {l_pv}")
        a("s_cmp_lt_u32 s58, 2")
        a(f"s_cbranch_scc1 {l_sm}")
        iteration(par, False, True, True, False)
        a(f"s_branch {lnext}")
        a.label(l_sm)
        iteration(par, False, True, False, False)
        a(f"s_branch {lnext}")
        a.label(l_pv)
        a("s_add_u32 s28, s49, 1")
        a("s_cmp_eq_u32 s58, s28")
        a(f"s_cbranch_scc0 {l_none}")
        a("s_nop 1")
        iteration(par, False, False, True, False)
        a(f"s_branch {lnext}")
        a.label(l_none)
        iteration(par, False, False, False, False)
        a.label(lnext)
        a("s_add_u32 s58, s58, 1")
    a("s_add_u32 s28, s50, 2")
    a("s_cmp_lt_u32 s58, s28")
    a("s_cbranch_scc1 b_loop")
    if STAMP:
        a("s_cmp_lg_u32 s46, 0"); a("s_cbranch_scc1 b_st2"); stamp(a, 2); a.label("b_st2")
    a(f"""
    s_waitcnt lgkmcnt(0) vmcnt(0)
    s_barrier
    v_add_f32 v24, v24, v25
    v_add_f32 v26, v26, v27
    v_add_f32 v24, v24, v26
    v_add_u32 v22, s48, v3
    v_lshlrev_b32 v22, 3, v22
    s_mov_b32 s28, {G_OFF}
    buffer_load_dword v25, v22, s[20:23], s28 offen offset:4
    v_mov_b32 v19, v24
    s_nop 1
    v_permlane32_swap_b32 v19, v24
    s_nop 1
    v_add_f32 v24, v24, v19
    v_rcp_f32 v26, v24
    v_mov_b32 v19, 0
    """)
    for r in range(64):
        a(f"v_fma_f32 v19, v{O_+r}, 0, v19")
    a(f"""
    s_mov_b32 s28, {f32hex(2.0**THR)}
    v_cmp_nle_f32 vcc, v24, s28
    v_cmp_u_f32 s[62:63], v19, v19
    s_or_b64 s[62:63], s[62:63], vcc
    s_cmp_lg_u64 s[62:63], 0
    s_cselect_b32 s28, 1, 0
    v_mov_b32 v19, s28
    s_lshl_b32 s29, s3, 2
    v_mov_b32 v22, s29
    v_mov_b32 v23, 0
    ds_write_b32 v22, v19 offset:65520
    s_waitcnt lgkmcnt(0)
    s_barrier
    ds_read_b32 v28, v23 offset:65532
    ds_read_b32 v29, v23 offset:65528
    ds_read_b32 v30, v23 offset:65524
    ds_read_b32 v31, v23 offset:65520
    s_waitcnt lgkmcnt(0)
    v_or_b32 v28, v28, v29
    v_or_b32 v30, v30, v31
    v_or_b32 v28, v28, v30
    s_nop 0
    v_readfirstlane_b32 s28, v28
    s_cmp_eq_u32 s28, 0
    s_cbranch_scc1 b_ok
    s_cmp_lg_u32 s60, 0
    s_cbranch_scc1 b_ok
    """)
    a("""
    s_mov_b32 s60, 1
    s_mov_b32 s58, 0
    v_mov_b32 v22, 0xff800000
    s_barrier
    """)
    a.label("b_maxloop")
    a("""
    s_mov_b32 m0, s45
    s_lshl_b32 s52, s58, 13
    buffer_load_dwordx4 v6, s[16:19], s52 offen lds
    buffer_load_dwordx4 v6, s[16:19], s52 offen offset:1024 lds
    s_waitcnt vmcnt(0)
    s_barrier
    s_cmp_ge_u32 s58, s49
    s_cbranch_scc1 b_maxskip
    """)
    for n in range(8):
        a(f"ds_read_b128 v[{FR+4*n}:{FR+4*n+3}], v1 offset:{n*1024}")
    a("s_waitcnt lgkmcnt(0)")
    for n in range(8):
        S = S_[0]
        c = "0" if n == 0 else f"v[{S}:{S+15}]"
        a(f"{MFMA} v[{S}:{S+15}], v[{FR+4*n}:{FR+4*n+3}], v[{QF+4*n}:{QF+4*n+3}], {c}")
    a("""
    s_nop 15
    s_add_u32 s28, s58, 1
    s_cmp_lg_u32 s28, s49
    s_cbranch_scc1 b_maxnomask
    """)
    apply_mask(S_[0])
    a.label("b_maxnomask")
    for r in range(0, 16, 2):
        a(f"v_max3_f32 v22, v22, v{S_[0]+r}, v{S_[0]+r+1}")
    a.label("b_maxskip")
    a("""
    s_barrier
    s_add_u32 s58, s58, 1
    s_cmp_lt_u32 s58, s50
    s_cbranch_scc1 b_maxloop
    v_mov_b32 v19, v22
    s_nop 1
    v_permlane32_swap_b32 v19, v22
    s_nop 1
    v_max_f32 v22, v22, v19
    """)
    for r in range(16): a(f"v_sub_f32 v{NEGM+r}, 0, v22")
    a("s_mov_b32 s52, 0")
    a("s_mov_b32 s53, s45")
    a("s_mov_b32 s61, 0")
    for i in range(3):
        for o in c_dma_ops(): a(o)
    a("s_branch b_task")
    a.label("b_ok")
    a("""
    s_waitcnt vmcnt(0)
    v_mul_f32 v26, v26, v25
    s_mov_b32 s60, 0
    s_add_u32 s46, s46, 1
    s_cmp_ge_u32 s46, 2
    s_cbranch_scc1 b_nonext
    """)
    task_setup()
    a("s_mov_b32 s53, s45")
    a("s_mov_b32 s61, 0")
    for i in range(3):
        for o in c_dma_ops(): a(o)
    a.label("b_nonext")
    for r in range(64):
        a(f"v_mul_f32 v{O_+r}, v26, v{O_+r}")
    a(f"""
    s_lshr_b32 s28, s48, 5
    s_mul_i32 s28, s28, {ZF_RG}
    s_lshl_b32 s29, s6, 13
    s_add_u32 s28, s28, s29
    s_add_u32 s28, s28, {ZF_OFF}
    s_add_u32 s29, s28, 4096
    """)
    for kk in range(8):
        t = FR + 4 * kk
        pack8(a, t, O_ + 8 * kk)
        a(f"buffer_store_dwordx4 v[{t}:{t+3}], v1, s[20:23], s{28 + (kk >> 2)} offen offset:{(kk & 3) * 1024}")
    a("""
    s_cmp_lt_u32 s46, 2
    s_cbranch_scc1 b_task
    """)
    stamp(a, 3); stamp(a, 14, real=True)
    a("s_endpgm")

def gen_k2_A(a):
    srd(a, 12, 6, 512 * 1024)
    stamp(a, 0, tv=250); stamp(a, 15, real=True, tv=250)
    AQ = 8
    ANEG = (32, 48); AO = (64, 80); AS = (96, 112); AP = (16, 24)
    AKV = 128
    XF = 128
    BUF = 24576
    a("""
    s_sub_u32 s28, s2, 256
    s_and_b32 s6, s28, 15
    s_lshr_b32 s7, s28, 4
    v_and_b32 v3, 31, v0
    v_lshrrev_b32 v4, 5, v0
    v_lshrrev_b32 v5, 2, v0
    s_lshl_b32 s28, s3, 7
    v_add_u32 v5, s28, v5
    v_lshlrev_b32 v5, 10, v5
    v_and_b32 v6, 3, v0
    v_lshl_add_u32 v5, v6, 4, v5
    s_lshl_b32 s28, s6, 6
    v_add_u32 v5, s28, v5
    s_lshl_b32 s29, s3, 13
    """)
    for g in range(2):
        a(f"s_add_u32 m0, s29, {g*4096}")
        for i in range(4):
            j = g * 4 + i
            a(f"s_mov_b32 s28, {j*16384 - i*1024}")
            a(f"buffer_load_dwordx4 v5, s[12:15], s28 offen offset:{i*1024} lds")
    a(f"""
    s_lshl_b32 s28, s7, 7
    s_lshl_b32 s29, s3, 5
    s_add_u32 s48, s28, s29
    s_lshl_b32 s28, s48, 10
    s_add_u32 s28, s28, {XF_OFF}
    v_bfe_u32 v6, v0, 2, 2
    v_lshl_add_u32 v7, v4, 3, v6
    v_lshlrev_b32 v7, 6, v7
    v_bfe_u32 v6, v0, 4, 1
    v_lshl_add_u32 v7, v6, 5, v7
    v_and_b32 v6, 3, v0
    v_lshl_add_u32 v7, v6, 3, v7
    s_lshl_b32 s44, s3, 11
    s_lshl_b32 s45, s3, 12
    s_add_u32 s45, s45, 8192
    """)
    for s in range(32):
        if s and s % 4 == 0: a("s_add_u32 s28, s28, 4096")
        a(f"buffer_load_dwordx4 v[{XF+4*s}:{XF+4*s+3}], v1, s[20:23], s28 offen offset:{(s&3)*1024}")
    def kv_ops():
        return ["s_add_u32 m0, s53, s44",
                "s_add_u32 s28, s53, s45",
                "buffer_load_dwordx4 v1, s[20:23], s50 offen lds",
                "buffer_load_dwordx4 v1, s[20:23], s50 offen offset:1024 lds",
                "s_mov_b32 m0, s28",
                "s_add_u32 s50, s50, 8192",
                "buffer_load_dwordx4 v1, s[20:23], s51 offen lds",
                "buffer_load_dwordx4 v1, s[20:23], s51 offen offset:1024 lds",
                "buffer_load_dwordx4 v1, s[20:23], s51 offen offset:2048 lds",
                "buffer_load_dwordx4 v1, s[20:23], s51 offen offset:3072 lds",
                "s_add_u32 s51, s51, 16384",
                f"s_add_u32 s53, s53, {BUF}",
                f"s_cmp_ge_u32 s53, {3*BUF}",
                "s_cselect_b32 s53, 0, s53"]
    def kv_init(first_buf):
        a(f"s_add_u32 s50, s44, {KA_OFF}")
        a(f"s_add_u32 s51, s45, {VA_OFF - 8192}")
        a(f"s_mov_b32 s53, {first_buf*BUF}")
    kv_init(2)
    for o in kv_ops(): a(o)
    a("s_waitcnt vmcnt(38)")
    a("s_barrier")
    WF = 64
    def wr(s):
        f = WF + 4 * (s & 3)
        a(f"ds_read_b64_tr_b16 v[{f}:{f+1}], v7 offset:{s*1024}")
        a(f"ds_read_b64_tr_b16 v[{f+2}:{f+3}], v7 offset:{s*1024+256}")
    wr(0); wr(1)
    for s in range(32):
        if s + 2 < 32:
            wr(s + 2); a(f"s_waitcnt lgkmcnt(4) vmcnt({37-s})")
        else:
            a(f"s_waitcnt lgkmcnt({2*(31-s)}) vmcnt({37-s})")
        f = WF + 4 * (s & 3)
        cin = "0" if s == 0 else f"v[{AS[0]}:{AS[0]+15}]"
        a(f"{MFMA} v[{AS[0]}:{AS[0]+15}], v[{f}:{f+3}], v[{XF+4*s}:{XF+4*s+3}], {cin}")
    a("s_mov_b32 s60, 0")
    a(f"s_mov_b32 s28, {f32hex(LOG2E * 0.25)}")
    a("s_nop 15")
    for r in range(16):
        a(f"v_mul_f32 v{AS[0]+r}, s28, v{AS[0]+r}")
    pack8(a, AQ, AS[0]); pack8(a, AQ + 4, AS[0] + 8)
    a.label("a_start")
    a("s_waitcnt vmcnt(0)")
    a("s_barrier")
    for o in kv_ops(): a(o)
    a(f"""
    v_add_u32 v5, {2*BUF}, v1
    v_mov_b32 v6, v1
    s_mov_b32 s54, {BUF}
    ds_read_b128 v[{AKV+12}:{AKV+15}], v5
    """)
    def stage_reads(j, st):
        f = AKV + 12 * st
        if j < 8:
            k = f"v5 offset:{(j+1)*1024}" if j < 7 else "v6"
            return [f"ds_read_b128 v[{f}:{f+3}], {k}",
                    f"ds_read_b128 v[{f+4}:{f+7}], v5 offset:{8192 + j*2048}",
                    f"ds_read_b128 v[{f+8}:{f+11}], v5 offset:{8192 + j*2048 + 1024}"]
        return [f"ds_read_b128 v[{f}:{f+3}], v6 offset:1024",
                f"ds_read_b128 v[{f+4}:{f+7}], v6 offset:8192",
                f"ds_read_b128 v[{f+8}:{f+11}], v6 offset:{8192 + 1024}"]
    for o in stage_reads(0, 0): a(o)
    for X in range(2):
        for r in range(16):
            a(f"v_mov_b32 v{AO[X]+r}, 0")
    a("s_waitcnt lgkmcnt(3)")
    K0 = AKV + 12
    a("s_cmp_eq_u32 s60, 0")
    a("s_cbranch_scc1 a_raw")
    for X in range(2):
        a(f"{MFMA} v[{AS[X]}:{AS[X]+15}], v[{K0}:{K0+3}], v[{AQ+4*X}:{AQ+4*X+3}], v[{ANEG[X]}:{ANEG[X]+15}]")
    a("s_nop 15")
    a("s_branch a_go")
    a.label("a_raw")
    for X in range(2):
        a(f"{MFMA} v[{AS[X]}:{AS[X]+15}], v[{K0}:{K0+3}], v[{AQ+4*X}:{AQ+4*X+3}], 0")
    a("s_nop 15")
    for X in range(2):
        S = AS[X]
        a(f"v_max3_f32 v2, v{S}, v{S+1}, v{S+2}")
        for r in range(3, 15, 2):
            a(f"v_max3_f32 v2, v2, v{S+r}, v{S+r+1}")
        a(f"v_max_f32 v2, v2, v{S+15}")
        a("""
        v_mov_b32 v7, v2
        s_nop 1
        v_permlane32_swap_b32 v7, v2
        s_nop 1
        v_max_f32 v2, v2, v7
        """)
        for r in range(16):
            a(f"v_sub_f32 v{S+r}, v{S+r}, v2")
        for r in range(16):
            a(f"v_sub_f32 v{ANEG[X]+r}, 0, v2")
    a.label("a_go")
    a("s_mov_b32 s52, 0")
    stamp(a, 1, tv=250)
    def valu(X):
        S = AS[X]; P = AP[X]
        ops = []
        for r in range(16):
            ops.append(f"v_exp_f32 v{S+r}, v{S+r}")
            if r >= 2 and (r & 1) == 0: ops.append(f"v_cvt_pk_bf16_f32 v{P+(r>>1)-1}, v{S+r-2}, v{S+r-1}")
        ops.append("s_nop 0")
        ops.append(f"v_cvt_pk_bf16_f32 v{P+7}, v{S+14}, v{S+15}")
        return ops
    def phase(X, f, extra=(), grp=()):
        Y = X ^ 1
        ops = valu(X)
        m = [f"{MFMA} v[{AS[Y]}:{AS[Y]+15}], v[{f}:{f+3}], v[{AQ+4*Y}:{AQ+4*Y+3}], v[{ANEG[Y]}:{ANEG[Y]+15}]",
             f"{MFMA} v[{AO[Y]}:{AO[Y]+15}], v[{f+4}:{f+7}], v[{AP[Y]}:{AP[Y]+3}], v[{AO[Y]}:{AO[Y]+15}]",
             f"{MFMA} v[{AO[Y]}:{AO[Y]+15}], v[{f+8}:{f+11}], v[{AP[Y]+4}:{AP[Y]+7}], v[{AO[Y]}:{AO[Y]+15}]"]
        extra = list(extra)
        for i, o in enumerate(ops):
            if i == 0:
                a(m[0])
                for g in grp: a(g)
            if i == 5: a(m[1])
            if i == 11: a(m[2])
            a(o)
            if i >= 1 and extra: a(extra.pop(0))
        for o in extra: a(o)
    for o in valu(0): a(o)
    a.label("a_loop")
    a("s_waitcnt vmcnt(0)")
    a("s_barrier")
    for j in range(8):
        st = j & 1
        f = AKV + 12 * st
        a("s_waitcnt lgkmcnt(0)")
        phase(1, f, extra=(kv_ops() if j == 0 else ()), grp=stage_reads(j + 1, st ^ 1))
        ex = []
        if j == 7:
            ex = ["v_mov_b32 v5, v6", "v_add_u32 v6, s54, v1", f"s_add_u32 s54, s54, {BUF}", f"s_cmp_ge_u32 s54, {3*BUF}", "s_cselect_b32 s54, 0, s54",
                  "s_add_u32 s52, s52, 1", "s_cmp_lt_u32 s52, 8"]
        phase(0, f, extra=ex)
    a("s_cbranch_scc1 a_loop")
    stamp(a, 2, tv=250)
    a(f"""
    s_nop 15
    v_lshlrev_b32 v5, 2, v3
    ds_bpermute_b32 v6, v5, v{AO[0]+8}
    ds_bpermute_b32 v7, v5, v{AO[1]+8}
    v_add_u32 v2, s48, v3
    v_lshlrev_b32 v2, 3, v2
    s_mov_b32 s28, {G_OFF}
    buffer_load_dword v2, v2, s[20:23], s28 offen
    v_mov_b32 v4, 0
    """)
    for X in range(2):
        for r in range(8): a(f"v_fma_f32 v4, v{AO[X]+r}, 0, v4")
    a(f"""
    s_mov_b32 s28, {f32hex(2.0**THR)}
    s_waitcnt lgkmcnt(0) vmcnt(0)
    v_cmp_nle_f32 vcc, v6, s28
    v_cmp_nle_f32 s[62:63], v7, s28
    s_or_b64 s[62:63], s[62:63], vcc
    v_cmp_u_f32 vcc, v4, v4
    s_or_b64 s[62:63], s[62:63], vcc
    s_cmp_lg_u64 s[62:63], 0
    s_cselect_b32 s28, 1, 0
    v_mov_b32 v4, s28
    s_lshl_b32 s29, s3, 2
    v_mov_b32 v5, s29
    v_add_u32 v5, {3*BUF}, v5
    ds_write_b32 v5, v4
    v_mov_b32 v5, {3*BUF}
    s_waitcnt lgkmcnt(0)
    s_barrier
    ds_read_b128 v[{AKV}:{AKV+3}], v5
    s_waitcnt lgkmcnt(0)
    v_or_b32 v4, v{AKV}, v{AKV+1}
    v_or3_b32 v4, v4, v{AKV+2}, v{AKV+3}
    s_nop 0
    v_readfirstlane_b32 s28, v4
    s_cmp_eq_u32 s28, 0
    s_cbranch_scc1 a_ok
    s_cmp_lg_u32 s60, 0
    s_cbranch_scc1 a_ok
    s_mov_b32 s60, 1
    s_mov_b32 s50, {KA_OFF}
    s_mov_b32 s52, 0
    v_mov_b32 v6, 0xff800000
    v_mov_b32 v7, 0xff800000
    """)
    a.label("a_maxloop")
    a(f"buffer_load_dwordx4 v[{AKV}:{AKV+3}], v1, s[20:23], s50 offen")
    a("s_add_u32 s50, s50, 1024")
    a("s_waitcnt vmcnt(0)")
    for X in range(2):
        a(f"{MFMA} v[{AS[X]}:{AS[X]+15}], v[{AKV}:{AKV+3}], v[{AQ+4*X}:{AQ+4*X+3}], 0")
    a("s_nop 15")
    for X in range(2):
        for r in range(0, 16, 2):
            a(f"v_max3_f32 v{6+X}, v{6+X}, v{AS[X]+r}, v{AS[X]+r+1}")
    a("""
    s_add_u32 s52, s52, 1
    s_cmp_lt_u32 s52, 64
    s_cbranch_scc1 a_maxloop
    """)
    for X in range(2):
        a(f"""
        v_mov_b32 v5, v{6+X}
        s_nop 1
        v_permlane32_swap_b32 v5, v{6+X}
        s_nop 1
        v_max_f32 v{6+X}, v{6+X}, v5
        """)
        for r in range(16): a(f"v_sub_f32 v{ANEG[X]+r}, 0, v{6+X}")
    kv_init(2)
    for o in kv_ops(): a(o)
    a("s_branch a_start")
    a.label("a_ok")
    a(f"""
    v_rcp_f32 v6, v6
    v_rcp_f32 v7, v7
    s_nop 0
    v_mul_f32 v6, v6, v2
    v_mul_f32 v7, v7, v2
    s_lshr_b32 s28, s48, 5
    s_mul_i32 s28, s28, {ZF_RG}
    s_lshl_b32 s29, s6, 11
    s_add_u32 s28, s28, s29
    s_add_u32 s28, s28, {ZF_OFF + 256*1024}
    """)
    for X in range(2):
        for r in range(8):
            a(f"v_mul_f32 v{AO[X]+r}, v{6+X}, v{AO[X]+r}")
        pack8(a, AP[X], AO[X])
        a(f"buffer_store_dwordx4 v[{AP[X]}:{AP[X]+3}], v1, s[20:23], s28 offen offset:{X*1024}")
    stamp(a, 3, tv=250); stamp(a, 14, real=True, tv=250)
    a("s_endpgm")
```

```python
from gen2 import *
from gen2 import _stamp
import gen1
def stamp3(a, idx, **kw):
    if os.environ.get("STK") == "3": _stamp(a, idx, **kw)

def gen_k3(a):
    name = "k3_kernel"
    kernel_begin(a, name)
    a(f"""
    s_cmp_ge_u32 s2, 512
    s_cbranch_scc1 k3_end
    s_load_dwordx2 s[6:7], s[0:1], {KA_WQ}
    s_load_dwordx2 s[4:5], s[0:1], {KA_WO}
    s_load_dwordx2 s[24:25], s[0:1], {KA_BWO}
    s_load_dwordx4 s[32:35], s[0:1], {KA_OUT}
    s_load_dwordx2 s[30:31], s[0:1], {KA_WS}
    v_lshrrev_b32 v2, 6, v0
    v_and_b32 v0, 63, v0
    v_lshlrev_b32 v1, 4, v0
    v_readfirstlane_b32 s3, v2
    s_waitcnt lgkmcnt(0)
    """)
    srd(a, 20, 30, WS_BYTES)
    touch_code(a, "k3c", "code_end", 8, 1, 15, 14)
    a("s_cmp_ge_u32 s2, 256")
    a("s_cbranch_scc1 k3_gemm")
    if os.environ.get("NOA3"): a("s_endpgm")
    gen_k3_A(a)
    a.label("k3_gemm")
    gen_k3_G(a)
    a.label("k3_end")
    a("s_endpgm")
    return name, "grid=(512,1,1) block=(512,1,1) lds=81920", kernel_desc(name, 128)

def gen_k3_G(a):
    a("""
    s_sub_u32 s64, s2, 256
    s_and_b32 s28, s64, 7
    s_lshr_b32 s29, s64, 3
    s_and_b32 s7, s29, 7
    s_lshr_b32 s29, s29, 3
    s_lshl_b32 s6, s28, 2
    s_add_u32 s6, s6, s29
    """)
    srd(a, 8, 24, 4*MB)
    srd(a, 12, 4, 512*1024)
    srd(a, 16, 32, 2*MB)
    a(f"""
    v_lshrrev_b32 v3, 3, v0
    s_lshl_b32 s28, s3, 5
    v_add_u32 v3, s28, v3
    v_lshlrev_b32 v3, 10, v3
    v_bfe_u32 v4, v0, 4, 1
    v_lshlrev_b32 v4, 2, v4
    v_and_b32 v5, 7, v0
    v_xor_b32 v4, v4, v5
    v_lshl_add_u32 v3, v4, 4, v3
    s_lshl_b32 s28, s7, 7
    v_add_u32 v3, s28, v3
    v_mov_b32 v4, v3
    s_mul_i32 s44, s6, {2*ZF_RG}
    s_lshl_b32 s28, s3, 11
    s_add_u32 s44, s44, s28
    s_add_u32 s44, s44, {ZF_OFF}
    s_add_u32 s45, s44, {ZF_RG}
    s_lshl_b32 s46, s3, 13
    """)
    for jj in range(4):
        a(f"s_mov_b32 s{40+jj}, {jj*7168}")
    ACC = 64; ZR = 32; WF = 16
    def issue_w(i):
        slot = i & 1
        a(f"s_add_u32 m0, s46, {slot*4096}")
        a("s_nop 0")
        if i < 16: va, sd = "v3", 8
        else:      va, sd = "v4", 12
        for jj in range(4):
            a(f"buffer_load_dwordx4 {va}, s[{sd}:{sd+3}], s{40+jj} offen offset:{jj*1024} lds")
        a(f"v_add_u32 {va}, 0x40000, {va}")
    def issue_z(i):
        z = ZR + 16 * (i & 1)
        sc = " sc1" if i >= 16 else ""
        a(f"buffer_load_dwordx4 v[{z}:{z+3}], v1, s[20:23], s44 offen{sc}")
        a(f"buffer_load_dwordx4 v[{z+4}:{z+7}], v1, s[20:23], s44 offen offset:1024{sc}")
        a(f"buffer_load_dwordx4 v[{z+8}:{z+11}], v1, s[20:23], s45 offen{sc}")
        a(f"buffer_load_dwordx4 v[{z+12}:{z+15}], v1, s[20:23], s45 offen offset:1024{sc}")
        a("s_add_u32 s44, s44, 16384")
        a("s_add_u32 s45, s45, 16384")
    issue_w(0); issue_z(0)
    a("""
    v_lshrrev_b32 v5, 5, v0
    v_bfe_u32 v6, v0, 2, 2
    v_lshl_add_u32 v5, v5, 2, v6
    v_lshlrev_b32 v5, 7, v5
    v_bfe_u32 v6, v0, 3, 1
    v_lshl_add_u32 v5, v6, 6, v5
    v_bfe_u32 v6, v0, 4, 1
    v_lshl_add_u32 v5, v6, 5, v5
    v_and_b32 v6, 3, v0
    v_lshl_add_u32 v5, v6, 3, v5
    v_add_u32 v5, s46, v5
    v_xor_b32 v6, 64, v5
    """)
    issue_w(1); issue_z(1)
    stamp3(a, 0, tv=12, wavereg="s3"); stamp3(a, 15, real=True, tv=12)
    for r in range(64): a(f"v_mov_b32 v{ACC+r}, 0")
    def step(i, waitn, nxt_w, nxt_z):
        slot = i & 1
        a(f"s_waitcnt vmcnt({waitn})")
        for s in range(2):
            for m in range(2):
                f = WF + 8 * s + 4 * m
                a(f"ds_read_b64_tr_b16 v[{f}:{f+1}], v{5+m} offset:{slot*4096 + s*2048}")
                a(f"ds_read_b64_tr_b16 v[{f+2}:{f+3}], v{5+m} offset:{slot*4096 + s*2048 + 1024}")
        for s in range(2):
            a(f"s_waitcnt lgkmcnt({4*(1-s)})")
            if s == 1 and nxt_w is not None: issue_w(nxt_w)
            for m in range(2):
                f = WF + 8 * s + 4 * m
                for rg in range(2):
                    z = ZR + 16 * slot + 8 * rg + 4 * s
                    acc = ACC + 16 * (2 * m + rg)
                    a(f"{MFMA} v[{acc}:{acc+15}], v[{f}:{f+3}], v[{z}:{z+3}], v[{acc}:{acc+15}]")
        if nxt_z is not None: issue_z(nxt_z)
    a("s_mov_b32 s47, 0")
    a.label("g_loop")
    step(0, 8, 2, 2)
    step(1, 8, 3, 3)
    a("""
    s_add_u32 s47, s47, 1
    s_cmp_lt_u32 s47, 7
    s_cbranch_scc1 g_loop
    """)
    SPLIT = not os.environ.get("NOSPLIT")
    if SPLIT:
        step(14, 8, 16, 16)
        step(15, 8, 17, None)
        step(16, 4, None, None)
    else:
        step(14, 8, 16, None)
        step(15, 4, 17, None)
    stamp3(a, 1, tv=12)
    a(f"""
    s_lshl_b32 s28, s6, 8
    s_add_u32 s28, s28, {CNT_OFF}
    v_mov_b32 v7, 0
    s_mov_b32 s65, 0
    s_cmp_lg_u32 s3, 0
    s_cbranch_scc1 g_ready
    s_mov_b64 exec, 1
    """)
    a.label("g_poll")
    a("""
    buffer_load_dword v8, v7, s[20:23], s28 offen sc1
    s_waitcnt vmcnt(0)
    v_readfirstlane_b32 s29, v8
    s_cmp_ge_u32 s29, 8
    s_cbranch_scc1 g_ready1
    s_sleep 16
    s_add_u32 s65, s65, 1
    s_cmp_lt_u32 s65, 0x100000
    s_cbranch_scc1 g_poll
    """)
    a.label("g_ready1")
    a("s_mov_b64 exec, -1")
    a.label("g_ready")
    a("s_barrier")
    stamp3(a, 2, tv=12)
    if SPLIT:
        issue_z(17)
    else:
        issue_z(16); issue_z(17)
        step(16, 4, None, None)
    step(17, 0, None, None)
    a("s_nop 15")
    a("""
    s_barrier
    s_and_b32 s28, s3, 3
    s_lshl_b32 s28, s28, 14
    v_add_u32 v7, s28, v1
    s_cmp_lt_u32 s3, 4
    s_cbranch_scc1 g_r1lo
    """)
    for bk in range(16):
        a(f"ds_write_b128 v7, v[{ACC+4*bk}:{ACC+4*bk+3}] offset:{bk*1024}")
    a("s_waitcnt lgkmcnt(0)")
    a("s_barrier")
    a("s_branch g_r2")
    a.label("g_r1lo")
    a("s_barrier")
    for h in range(2):
        for bk in range(8):
            a(f"ds_read_b128 v[{16+4*bk}:{19+4*bk}], v7 offset:{(8*h+bk)*1024}")
        a("s_waitcnt lgkmcnt(0)")
        for r in range(32):
            a(f"v_add_f32 v{ACC+32*h+r}, v{ACC+32*h+r}, v{16+r}")
    for bk in range(16):
        a(f"ds_write_b128 v7, v[{ACC+4*bk}:{ACC+4*bk+3}] offset:{bk*1024}")
    a("s_waitcnt lgkmcnt(0)")
    a.label("g_r2")
    a("""
    s_barrier
    s_lshl_b32 s28, s3, 11
    v_add_u32 v7, s28, v1
    """)
    for e in range(2):
        for w in range(4):
            d = 16 + 16 * e + 4 * w
            a(f"ds_read_b128 v[{d}:{d+3}], v7 offset:{w*16384 + e*1024}")
    a("""
    s_lshr_b32 s28, s3, 1
    s_and_b32 s28, s28, 1
    s_lshl_b32 s28, s28, 5
    s_lshl_b32 s29, s6, 6
    s_add_u32 s28, s28, s29
    v_and_b32 v9, 31, v0
    v_add_u32 v9, s28, v9
    v_lshlrev_b32 v9, 10, v9
    v_lshrrev_b32 v10, 5, v0
    v_lshl_add_u32 v9, v10, 3, v9
    s_lshl_b32 s28, s7, 7
    s_lshr_b32 s29, s3, 2
    s_lshl_b32 s29, s29, 6
    s_add_u32 s28, s28, s29
    s_and_b32 s29, s3, 1
    s_lshl_b32 s29, s29, 5
    s_add_u32 s28, s28, s29
    """)
    for e in range(2):
        a(f"s_waitcnt lgkmcnt({4*(1-e)})")
        d = 16 + 16 * e
        for w in range(1, 4):
            for j in range(4):
                a(f"v_add_f32 v{d+j}, v{d+j}, v{d+4*w+j}")
        a(f"v_cvt_pk_bf16_f32 v{12+2*e}, v{d}, v{d+1}")
        a(f"v_cvt_pk_bf16_f32 v{13+2*e}, v{d+2}, v{d+3}")
        a(f"buffer_store_dwordx2 v[{12+2*e}:{13+2*e}], v9, s[16:19], s28 offen offset:{16*e}")
    if os.environ.get("STK") == "3" and STAMP:
        a("s_waitcnt vmcnt(0)"); stamp3(a, 3, tv=4); stamp3(a, 14, real=True, tv=4)

def gen_k3_A(a):
    srd(a, 12, 6, 512 * 1024)
    AQ = 8; ANEG = 16; AO = 32; AS = (48, 64); AP = (80, 88); AKV = 96
    XF = 64
    BUF = 24576
    a("""
    s_and_b32 s28, s2, 7
    s_lshr_b32 s29, s2, 3
    s_and_b32 s7, s29, 7
    s_lshr_b32 s29, s29, 3
    s_lshl_b32 s6, s28, 2
    s_add_u32 s6, s6, s29
    v_and_b32 v3, 31, v0
    v_lshrrev_b32 v4, 5, v0
    """)
    a("""
    v_lshrrev_b32 v5, 3, v0
    s_lshl_b32 s28, s3, 6
    v_add_u32 v5, s28, v5
    v_lshlrev_b32 v5, 10, v5
    v_bfe_u32 v6, v0, 4, 1
    v_lshlrev_b32 v6, 2, v6
    v_and_b32 v7, 7, v0
    v_xor_b32 v6, v6, v7
    v_lshl_add_u32 v5, v6, 4, v5
    s_lshl_b32 s28, s7, 7
    v_add_u32 v5, s28, v5
    s_lshl_b32 s29, s3, 13
    """)
    for g in range(2):
        a(f"s_add_u32 m0, s29, {g*4096}")
        for i in range(4):
            j = g * 4 + i
            a(f"s_mov_b32 s28, {j*8192 - i*1024}")
            a(f"buffer_load_dwordx4 v5, s[12:15], s28 offen offset:{i*1024} lds")
    a(f"""
    s_lshl_b32 s28, s6, 6
    s_and_b32 s29, s3, 1
    s_lshl_b32 s29, s29, 5
    s_add_u32 s48, s28, s29
    s_lshl_b32 s28, s48, 10
    s_lshr_b32 s49, s3, 2
    s_lshl_b32 s29, s49, 14
    s_add_u32 s28, s28, s29
    s_add_u32 s28, s28, {XF_OFF}
    """)
    for s in range(16):
        if s and s % 4 == 0: a("s_add_u32 s28, s28, 4096")
        a(f"buffer_load_dwordx4 v[{XF+4*s}:{XF+4*s+3}], v1, s[20:23], s28 offen offset:{(s&3)*1024}")
    stamp3(a, 0, tv=12); stamp3(a, 15, real=True, tv=12)
    a("""
    v_bfe_u32 v6, v0, 2, 2
    v_lshl_add_u32 v7, v4, 3, v6
    v_lshlrev_b32 v7, 7, v7
    v_bfe_u32 v6, v0, 3, 1
    v_lshl_add_u32 v7, v6, 6, v7
    v_bfe_u32 v6, v0, 4, 1
    v_lshl_add_u32 v7, v6, 5, v7
    v_and_b32 v6, 3, v0
    v_lshl_add_u32 v7, v6, 3, v7
    s_lshr_b32 s28, s3, 1
    s_and_b32 s28, s28, 1
    s_lshl_b32 s28, s28, 6
    v_xor_b32 v7, s28, v7
    s_lshl_b32 s28, s49, 15
    v_add_u32 v7, s28, v7
    s_lshl_b32 s44, s3, 10
    s_lshl_b32 s45, s3, 11
    s_add_u32 s45, s45, 8192
    """)
    a("s_waitcnt vmcnt(16)")
    a("s_barrier")
    WF = 16
    def wr(s):
        f = WF + 4 * (s & 3)
        a(f"ds_read_b64_tr_b16 v[{f}:{f+1}], v7 offset:{s*2048}")
        a(f"ds_read_b64_tr_b16 v[{f+2}:{f+3}], v7 offset:{s*2048+512}")
    wr(0); wr(1)
    for s in range(16):
        if s + 2 < 16:
            wr(s + 2); a(f"s_waitcnt lgkmcnt(4) vmcnt({15-s})")
        else:
            a(f"s_waitcnt lgkmcnt({2*(15-s)}) vmcnt({15-s})")
        f = WF + 4 * (s & 3)
        cin = "0" if s == 0 else f"v[{AO}:{AO+15}]"
        a(f"{MFMA} v[{AO}:{AO+15}], v[{f}:{f+3}], v[{XF+4*s}:{XF+4*s+3}], {cin}")
    a("""
    s_lshl_b32 s28, s3, 11
    v_add_u32 v5, s28, v1
    v_add_u32 v5, 0x10000, v5
    v_xor_b32 v6, 0x2000, v5
    s_nop 7
    s_cmp_lg_u32 s49, 0
    s_cbranch_scc1 a3_kh1
    """)
    a(f"ds_write_b128 v5, v[{AO+8}:{AO+11}]")
    a(f"ds_write_b128 v5, v[{AO+12}:{AO+15}] offset:1024")
    a("s_branch a3_khd")
    a.label("a3_kh1")
    a(f"ds_write_b128 v5, v[{AO}:{AO+3}]")
    a(f"ds_write_b128 v5, v[{AO+4}:{AO+7}] offset:1024")
    a("s_nop 1")
    for r in range(8): a(f"v_mov_b32 v{AO+r}, v{AO+8+r}")
    a.label("a3_khd")
    a("s_waitcnt lgkmcnt(0)")
    a("s_barrier")
    def kv_ops():
        return ["s_add_u32 m0, s53, s44",
                "s_add_u32 s28, s53, s45",
                "buffer_load_dwordx4 v1, s[20:23], s50 offen lds",
                "s_mov_b32 m0, s28",
                "s_add_u32 s50, s50, 8192",
                "buffer_load_dwordx4 v1, s[20:23], s51 offen lds",
                "buffer_load_dwordx4 v1, s[20:23], s51 offen offset:1024 lds",
                "s_add_u32 s51, s51, 16384",
                f"s_add_u32 s53, s53, {BUF}",
                f"s_cmp_ge_u32 s53, {3*BUF}",
                "s_cselect_b32 s53, 0, s53"]
    def kv_init():
        a(f"s_add_u32 s50, s44, {KA_OFF}")
        a(f"s_add_u32 s51, s45, {VA_OFF - 8192}")
        a("s_mov_b32 s53, 0")
        for o in kv_ops() + kv_ops(): a(o)
    kv_init()
    a(f"ds_read_b128 v[{AS[0]}:{AS[0]+3}], v6")
    a(f"ds_read_b128 v[{AS[0]+4}:{AS[0]+7}], v6 offset:1024")
    a(f"s_mov_b32 s28, {f32hex(LOG2E * 0.25)}")
    a("s_mov_b32 s60, 0")
    a("s_waitcnt lgkmcnt(0)")
    for r in range(8): a(f"v_add_f32 v{AO+r}, v{AO+r}, v{AS[0]+r}")
    for r in range(8): a(f"v_mul_f32 v{AO+r}, s28, v{AO+r}")
    pack8(a, AQ, AO)
    a.label("a3_start")
    a("s_waitcnt vmcnt(0)")
    a("s_barrier")
    a(f"""
    v_mov_b32 v5, v1
    v_add_u32 v6, {BUF}, v1
    v_mov_b32 v7, v1
    s_mov_b32 s54, {2*BUF}
    ds_read_b128 v[{AKV+12}:{AKV+15}], v5
    ds_read_b128 v[{AKV}:{AKV+3}], v5 offset:1024
    """)
    for r in range(16): a(f"v_mov_b32 v{AO+r}, 0")
    for r in range(8): a(f"v_mov_b32 v{AP[1]+r}, 0")
    for r in range(8): a(f"v_mov_b32 v{AKV+4+r}, 0")
    a("s_waitcnt lgkmcnt(1)")
    K0 = AKV + 12; S = AS[0]
    a("s_cmp_eq_u32 s60, 0")
    a("s_cbranch_scc1 a3_raw")
    a(f"{MFMA} v[{S}:{S+15}], v[{K0}:{K0+3}], v[{AQ}:{AQ+3}], v[{ANEG}:{ANEG+15}]")
    a("s_nop 15")
    a("s_branch a3_go")
    a.label("a3_raw")
    a(f"{MFMA} v[{S}:{S+15}], v[{K0}:{K0+3}], v[{AQ}:{AQ+3}], 0")
    a("s_nop 15")
    a(f"v_max3_f32 v2, v{S}, v{S+1}, v{S+2}")
    for r in range(3, 15, 2): a(f"v_max3_f32 v2, v2, v{S+r}, v{S+r+1}")
    a(f"v_max_f32 v2, v2, v{S+15}")
    a("""
    v_mov_b32 v12, v2
    s_nop 1
    v_permlane32_swap_b32 v12, v2
    s_nop 1
    v_max_f32 v2, v2, v12
    """)
    for r in range(16): a(f"v_sub_f32 v{S+r}, v{S+r}, v2")
    for r in range(16): a(f"v_sub_f32 v{ANEG+r}, 0, v2")
    a.label("a3_go")
    a("s_mov_b32 s52, 0")
    stamp3(a, 1, tv=12)
    def stage_reads(j, st):
        f = AKV + 12 * st
        if j <= 6: k = f"v5 offset:{(j+1)*1024}"
        else:      k = f"v6 offset:{(j-7)*1024}"
        vo = 8192 + (j - 1) * 2048
        return [f"ds_read_b128 v[{f}:{f+3}], {k}",
                f"ds_read_b128 v[{f+4}:{f+7}], v5 offset:{vo}",
                f"ds_read_b128 v[{f+8}:{f+11}], v5 offset:{vo + 1024}"]
    def stepA(par, f, grp, extra):
        Sx = AS[par]; Px = AP[par]; Py = AP[par ^ 1]; Sn = AS[par ^ 1]
        ops = []
        for r in range(16):
            ops.append(f"v_exp_f32 v{Sx+r}, v{Sx+r}")
            if r >= 2 and (r & 1) == 0: ops.append(f"v_cvt_pk_bf16_f32 v{Px+(r>>1)-1}, v{Sx+r-2}, v{Sx+r-1}")
        ops.append("s_nop 0")
        ops.append(f"v_cvt_pk_bf16_f32 v{Px+7}, v{Sx+14}, v{Sx+15}")
        m = [f"{MFMA} v[{Sn}:{Sn+15}], v[{f}:{f+3}], v[{AQ}:{AQ+3}], v[{ANEG}:{ANEG+15}]",
             f"{MFMA} v[{AO}:{AO+15}], v[{f+4}:{f+7}], v[{Py}:{Py+3}], v[{AO}:{AO+15}]",
             f"{MFMA} v[{AO}:{AO+15}], v[{f+8}:{f+11}], v[{Py+4}:{Py+7}], v[{AO}:{AO+15}]"]
        extra = list(extra)
        for i, o in enumerate(ops):
            if i == 0:
                a(m[0])
                for g in grp: a(g)
            if i == 5: a(m[1])
            if i == 11: a(m[2])
            a(o)
            if i >= 1 and extra: a(extra.pop(0))
        for o in extra: a(o)
    a.label("a3_loop")
    for j in range(8):
        st = j & 1
        f = AKV + 12 * st
        if j == 1:
            a("s_waitcnt vmcnt(0) lgkmcnt(0)")
            a("s_barrier")
        else:
            a("s_waitcnt lgkmcnt(0)")
        ex = []
        if j == 1: ex = kv_ops()
        if j == 7:
            ex = ["v_mov_b32 v5, v6", "v_add_u32 v6, s54, v1", f"s_add_u32 s54, s54, {BUF}", f"s_cmp_ge_u32 s54, {3*BUF}", "s_cselect_b32 s54, 0, s54",
                  "s_add_u32 s52, s52, 1", "s_cmp_lt_u32 s52, 8"]
        stepA(st, f, stage_reads(j + 1, st ^ 1), ex)
    a("s_cbranch_scc1 a3_loop")
    a("s_waitcnt lgkmcnt(0)")
    a(f"{MFMA} v[{AO}:{AO+15}], v[{AKV+4}:{AKV+7}], v[{AP[1]}:{AP[1]+3}], v[{AO}:{AO+15}]")
    a(f"{MFMA} v[{AO}:{AO+15}], v[{AKV+8}:{AKV+11}], v[{AP[1]+4}:{AP[1]+7}], v[{AO}:{AO+15}]")
    stamp3(a, 2, tv=12)
    a(f"""
    v_add_u32 v2, s48, v3
    v_lshlrev_b32 v2, 3, v2
    s_mov_b32 s28, {G_OFF}
    buffer_load_dword v2, v2, s[20:23], s28 offen
    v_lshlrev_b32 v5, 2, v3
    s_nop 15
    ds_bpermute_b32 v6, v5, v{AO+8}
    v_mov_b32 v4, 0
    """)
    for r in range(8): a(f"v_fma_f32 v4, v{AO+r}, 0, v4")
    a(f"""
    s_mov_b32 s28, {f32hex(2.0**THR)}
    s_waitcnt lgkmcnt(0) vmcnt(0)
    v_cmp_nle_f32 vcc, v6, s28
    v_cmp_u_f32 s[62:63], v4, v4
    s_or_b64 s[62:63], s[62:63], vcc
    s_cmp_lg_u64 s[62:63], 0
    s_cselect_b32 s28, 1, 0
    v_mov_b32 v4, s28
    s_lshl_b32 s29, s3, 2
    v_mov_b32 v5, s29
    v_add_u32 v5, {3*BUF}, v5
    ds_write_b32 v5, v4
    v_mov_b32 v5, {3*BUF}
    s_waitcnt lgkmcnt(0)
    s_barrier
    ds_read_b128 v[{AKV}:{AKV+3}], v5
    ds_read_b128 v[{AKV+4}:{AKV+7}], v5 offset:16
    s_waitcnt lgkmcnt(0)
    v_or3_b32 v4, v{AKV}, v{AKV+1}, v{AKV+2}
    v_or3_b32 v4, v4, v{AKV+3}, v{AKV+4}
    v_or3_b32 v4, v4, v{AKV+5}, v{AKV+6}
    v_or_b32 v4, v4, v{AKV+7}
    s_nop 0
    v_readfirstlane_b32 s28, v4
    s_cmp_eq_u32 s28, 0
    s_cbranch_scc1 a3_ok
    s_cmp_lg_u32 s60, 0
    s_cbranch_scc1 a3_ok
    s_mov_b32 s60, 1
    s_mov_b32 s50, {KA_OFF}
    s_mov_b32 s52, 0
    v_mov_b32 v6, 0xff800000
    """)
    a.label("a3_maxloop")
    a(f"buffer_load_dwordx4 v[{AKV}:{AKV+3}], v1, s[20:23], s50 offen")
    a("s_add_u32 s50, s50, 1024")
    a("s_waitcnt vmcnt(0)")
    a(f"{MFMA} v[{S}:{S+15}], v[{AKV}:{AKV+3}], v[{AQ}:{AQ+3}], 0")
    a("s_nop 15")
    for r in range(0, 16, 2): a(f"v_max3_f32 v6, v6, v{S+r}, v{S+r+1}")
    a("""
    s_add_u32 s52, s52, 1
    s_cmp_lt_u32 s52, 64
    s_cbranch_scc1 a3_maxloop
    v_mov_b32 v5, v6
    s_nop 1
    v_permlane32_swap_b32 v5, v6
    s_nop 1
    v_max_f32 v6, v6, v5
    """)
    for r in range(16): a(f"v_sub_f32 v{ANEG+r}, 0, v6")
    kv_init()
    a("s_branch a3_start")
    a.label("a3_ok")
    a(f"""
    v_rcp_f32 v6, v6
    s_lshr_b32 s28, s48, 5
    s_mul_i32 s28, s28, {ZF_RG}
    s_lshl_b32 s29, s7, 12
    s_add_u32 s28, s28, s29
    s_lshr_b32 s29, s3, 1
    s_and_b32 s29, s29, 1
    s_lshl_b32 s29, s29, 11
    s_add_u32 s28, s28, s29
    s_lshl_b32 s29, s49, 10
    s_add_u32 s28, s28, s29
    s_add_u32 s28, s28, {ZF_OFF + 256*1024}
    v_mul_f32 v6, v6, v2
    """)
    for r in range(8): a(f"v_mul_f32 v{AO+r}, v6, v{AO+r}")
    pack8(a, AP[0], AO)
    a(f"""
    buffer_store_dwordx4 v[{AP[0]}:{AP[0]+3}], v1, s[20:23], s28 offen sc1
    s_waitcnt vmcnt(0)
    s_barrier
    s_cmp_lg_u32 s3, 0
    s_cbranch_scc1 a3_done
    s_lshl_b32 s28, s6, 8
    s_add_u32 s28, s28, {CNT_OFF}
    v_mov_b32 v4, 1
    v_mov_b32 v5, 0
    s_mov_b64 exec, 1
    buffer_atomic_add v4, v5, s[20:23], s28 offen sc1
    s_mov_b64 exec, -1
    """)
    a.label("a3_done")
    stamp3(a, 3, tv=12); stamp3(a, 14, real=True, tv=12)
    a("s_endpgm")

def gen_k2b(a):
    name = "k2_kernel"
    kernel_begin(a, name)
    a(f"""
    s_cmp_ge_u32 s2, 256
    s_cbranch_scc1 k2_end
    s_load_dwordx2 s[24:25], s[0:1], {KA_BWQ}
    s_load_dwordx2 s[30:31], s[0:1], {KA_WS}
    v_lshrrev_b32 v2, 6, v0
    v_and_b32 v0, 63, v0
    v_lshlrev_b32 v1, 4, v0
    v_readfirstlane_b32 s3, v2
    s_waitcnt lgkmcnt(0)
    """)
    srd(a, 20, 30, WS_BYTES)
    gen_k2_B(a)
    a.label("k2_end")
    a("s_endpgm")
    return name, "grid=(256,1,1) block=(256,1,1) lds=81920", kernel_desc(name, 256)

if __name__ == "__main__":
    build([gen1.gen_k1, gen_k2b, gen_k3], sys.argv[1] if len(sys.argv) > 1 else "out.s")
```

```python
from gen import *
_stamp1 = stamp
def stamp1(a, idx, **kw):
    if os.environ.get("STK") == "1": _stamp1(a, idx, tv=2, **kw)
    if os.environ.get("XST") and idx in (14, 15): _stamp1(a, idx + 2, tv=2, **kw)

STG = 49152
def gen_k1(a):
    name = "k1_kernel"
    kernel_begin(a, name)
    a(f"""
    s_cmp_ge_u32 s2, 256
    s_cbranch_scc1 k1_end
    s_load_dwordx2 s[4:5], s[0:1], {KA_CKV}
    s_load_dwordx4 s[24:27], s[0:1], {KA_WUK}
    s_load_dwordx2 s[30:31], s[0:1], {KA_WS}
    s_load_dwordx2 s[64:65], s[0:1], {KA_X}
    s_load_dwordx4 s[68:71], s[0:1], {KA_WK}
    s_load_dwordx2 s[72:73], s[0:1], {KA_GATE}
    s_load_dwordx2 s[54:55], s[0:1], {KA_BWQ}
    s_load_dwordx2 s[56:57], s[0:1], {KA_BWO}
    s_load_dwordx2 s[58:59], s[0:1], {KA_WQ}
    s_load_dwordx2 s[60:61], s[0:1], {KA_WO}
    v_lshrrev_b32 v2, 6, v0
    v_and_b32 v0, 63, v0
    v_lshlrev_b32 v1, 4, v0
    v_readfirstlane_b32 s3, v2
    s_and_b32 s6, s2, 31
    s_lshr_b32 s7, s2, 5
    s_waitcnt lgkmcnt(0)
    """)
    srd(a, 8, 4, 2*MB)
    srd(a, 20, 30, WS_BYTES)
    stamp1(a, 0); stamp1(a, 15, real=True)
    a(f"""
    s_lshl_b32 s45, s3, 13
    s_mov_b32 s39, 0x00020000
    s_mov_b32 s42, 0
    s_cmp_ge_u32 s3, 4
    s_cbranch_scc1 k1_roleW
    v_lshrrev_b32 v3, 3, v0
    v_lshrrev_b32 v4, 4, v0
    v_and_b32 v5, 7, v0
    v_xor_b32 v6, v5, v4
    v_xor_b32 v7, 4, v6
    s_lshl_b32 s28, s7, 8
    s_lshl_b32 s29, s3, 6
    s_add_u32 s28, s28, s29
    v_add_u32 v3, s28, v3
    v_lshlrev_b32 v3, 10, v3
    v_lshl_add_u32 v8, v6, 4, v3
    v_lshl_add_u32 v9, v7, 4, v3
    s_mov_b32 s36, s4
    s_mov_b32 s37, s5
    s_mov_b32 s38, {2*MB}
    s_mov_b32 s43, 128
    s_mov_b32 s44, 1023
    s_mov_b32 s47, 8192
    s_branch k1_roled
    k1_roleW:
    s_mov_b32 s36, s24
    s_mov_b32 s37, s25
    s_mov_b32 s38, {4*MB}
    s_mov_b32 s43, 0x80000
    s_mov_b32 s44, 0x3fffff
    s_mov_b32 s47, 32768
    s_cmp_ge_u32 s3, 6
    s_cbranch_scc1 k1_roleT
    v_lshrrev_b32 v4, 4, v0
    v_and_b32 v5, 15, v0
    v_lshlrev_b32 v6, 2, v4
    v_xor_b32 v5, v5, v6
    s_sub_u32 s28, s3, 4
    s_lshl_b32 s28, s28, 5
    v_add_u32 v6, s28, v4
    v_lshlrev_b32 v6, 13, v6
    v_lshl_add_u32 v6, v5, 4, v6
    s_lshl_b32 s28, s6, 8
    v_add_u32 v8, s28, v6
    v_mov_b32 v9, v8
    s_branch k1_roled
    k1_roleT:
    v_bfe_u32 v8, v0, 1, 3
    s_lshl_b32 s28, s7, 3
    v_add_u32 v8, s28, v8
    v_lshlrev_b32 v8, 13, v8
    v_and_b32 v3, 1, v0
    v_lshl_add_u32 v8, v3, 7, v8
    s_lshl_b32 s28, s6, 8
    v_add_u32 v8, s28, v8
    v_lshlrev_b32 v9, 7, v0
    s_mov_b32 s42, 0x100000
    s_cmp_eq_u32 s3, 7
    s_cbranch_scc1 k1_roled
    s_lshr_b32 s28, s2, 3
    s_lshl_b32 s28, s28, 6
    v_add_u32 v8, s28, v0
    v_lshlrev_b32 v8, 10, v8
    s_mov_b32 s36, s4
    s_mov_b32 s37, s5
    s_mov_b32 s38, {2*MB}
    s_mov_b32 s43, 128
    s_mov_b32 s44, 1023
    s_mov_b32 s42, 256
    k1_roled:
    """)
    for j in range(8):
        a(f"s_mul_i32 s{12+j}, s47, {j}")
        if j & 3: a(f"s_sub_u32 s{12+j}, s{12+j}, {(j&3)*1024}")
    def wswitch():
        a("s_cmp_eq_u32 s43, 0x80000")
        a("s_cselect_b32 s36, s26, s36")
        a("s_cselect_b32 s37, s27, s37")
    def dma(k):
        st = k % 3
        if k == 8: wswitch()
        for g in range(2):
            a(f"s_add_u32 m0, s45, {st*STG + g*4096}")
            for i in range(4):
                j = 4 * g + i
                a(f"s_add_u32 s40, s42, s{12+j}")
                a(f"buffer_load_dwordx4 v{8 + (j & 1)}, s[36:39], s40 offen offset:{i*1024} lds")
        a("s_add_u32 s42, s42, s43")
        a("s_and_b32 s42, s42, s44")
    def touch(kk):
        if kk == 8: wswitch()
        a(f"buffer_load_dword v10, v8, s[36:39], s42 offen")
        a("s_add_u32 s42, s42, s43")
        a("s_and_b32 s42, s42, s44")
    def t2(i):
        ptr, size = ((54, 4*MB), (56, 4*MB), (58, 512*1024), (60, 512*1024))[i]
        a(f"""
        s_lshl_b32 s28, s2, 1
        s_and_b32 s29, s3, 1
        s_add_u32 s28, s28, s29
        s_lshl_b32 s28, s28, 13
        s_mov_b32 s92, s{ptr}
        s_mov_b32 s93, s{ptr+1}
        s_mov_b32 s94, {size}
        s_mov_b32 s95, 0x00020000
        buffer_load_dword v10, v9, s[92:95], s28 offen
        """)
    a("s_cmp_ge_u32 s2, 64")
    a("s_cbranch_scc1 k1_noxl")
    srd(a, 76, 64, 2*MB)
    srd(a, 80, 68, 16384)
    srd(a, 84, 70, 16384)
    srd(a, 88, 72, 1024)
    a(f"""
    v_and_b32 v30, 31, v0
    v_lshrrev_b32 v31, 5, v0
    s_lshl_b32 s28, s2, 15
    s_lshl_b32 s29, s3, 7
    s_add_u32 s28, s28, s29
    v_lshlrev_b32 v30, 10, v30
    v_lshlrev_b32 v31, 4, v31
    v_add_u32 v30, v31, v30
    """)
    for s in range(4):
        a(f"buffer_load_dwordx4 v[{112+4*s}:{115+4*s}], v30, s[76:79], s28 offen offset:{s*32}")
    a.label("k1_noxl")
    a("s_cmp_ge_u32 s3, 6")
    a("s_cbranch_scc1 k1_pt")
    dma(0); dma(1)
    a("s_branch k1_pd")
    a.label("k1_pt")
    for kk in (2, 3, 4): touch(kk)
    a.label("k1_pd")
    a("""
    v_and_b32 v3, 31, v0
    s_lshr_b32 s28, s3, 1
    s_lshl_b32 s28, s28, 6
    v_add_u32 v3, s28, v3
    v_lshlrev_b32 v3, 7, v3
    v_lshrrev_b32 v5, 5, v0
    v_bfe_u32 v6, v0, 1, 3
    v_xor_b32 v5, v5, v6
    v_lshl_add_u32 v12, v5, 4, v3
    v_xor_b32 v13, 32, v12
    v_xor_b32 v14, 64, v12
    v_xor_b32 v15, 96, v12
    """)
    for st in (1, 2):
        for s in range(4): a(f"v_add_u32 v{12+4*st+s}, {st*STG}, v{12+s}")
    a("""
    v_lshrrev_b32 v3, 5, v0
    v_bfe_u32 v5, v0, 2, 2
    v_lshl_add_u32 v3, v3, 3, v5
    v_lshlrev_b32 v3, 8, v3
    v_bfe_u32 v6, v0, 4, 1
    v_lshl_add_u32 v3, v6, 5, v3
    v_and_b32 v6, 3, v0
    v_lshl_add_u32 v3, v6, 3, v3
    v_lshl_add_u32 v3, v5, 6, v3
    s_and_b32 s28, s3, 1
    s_lshl_b32 s28, s28, 7
    v_xor_b32 v3, s28, v3
    v_add_u32 v24, 32768, v3
    v_xor_b32 v25, 64, v24
    """)
    for st in (1, 2):
        for m in range(2): a(f"v_add_u32 v{24+2*st+m}, {st*STG}, v{24+m}")
    ACC = (128, 192)
    a(f"""
    s_lshl_b32 s28, s6, 19
    s_lshl_b32 s29, s7, 16
    s_add_u32 s28, s28, s29
    s_lshr_b32 s29, s3, 1
    s_lshl_b32 s29, s29, 14
    s_add_u32 s28, s28, s29
    s_and_b32 s29, s3, 1
    s_lshl_b32 s48, s29, 12
    s_add_u32 s48, s48, s28
    s_add_u32 s48, s48, {KF_OFF}
    s_add_u32 s49, s48, 8192
    s_lshl_b32 s50, s29, 11
    s_add_u32 s50, s50, s28
    s_add_u32 s50, s50, {VF_OFF}
    s_add_u32 s51, s50, 4096
    s_add_u32 s52, s50, 8192
    s_add_u32 s53, s50, 12288
    """)
    FB = 64
    def read_ops(u):
        k = u >> 2; s = u & 3; st = k % 3
        f = FB + 16 * (u % 3)
        ca = 12 + 4 * st + s
        ops = [f"ds_read_b128 v[{f}:{f+3}], v{ca}",
               f"ds_read_b128 v[{f+4}:{f+7}], v{ca} offset:4096"]
        for m in range(2):
            wa = 24 + 2 * st + m
            ops.append(f"ds_read_b64_tr_b16 v[{f+8+4*m}:{f+9+4*m}], v{wa} offset:{s*4096}")
            ops.append(f"ds_read_b64_tr_b16 v[{f+10+4*m}:{f+11+4*m}], v{wa} offset:{s*4096+1024}")
        return ops
    def epi_ops(ps):
        ops = []
        n = 0
        for m in range(2):
            for kb in range(2):
                acc = ACC[ps] + 16 * (m * 2 + kb)
                for g in range(2):
                    tmp = 32 + 4 * (n % 8); n += 1
                    for i in range(4):
                        ops.append(f"v_cvt_pk_bf16_f32 v{tmp+i}, v{acc+8*g+2*i}, v{acc+8*g+2*i+1}")
                    if ps == 0: sreg, off = 48 + kb, (2 * m + g) * 1024
                    else:       sreg, off = 50 + 2 * kb + g, m * 1024
                    fl = os.environ.get("K1ST%d" % ps, "")
                    if fl == "none": continue
                    ops.append(f"buffer_store_dwordx4 v[{tmp}:{tmp+3}], v1, s[20:23], s{sreg} offen offset:{off} {fl}")
        return ops
    a.label("k1_nox")
    a(f"""
    s_sub_u32 s28, s2, 64
    s_cmp_ge_u32 s28, 32
    s_cbranch_scc1 k1_nocnt
    s_cmp_lg_u32 s3, 0
    s_cbranch_scc1 k1_nocnt
    s_lshl_b32 s28, s28, 8
    s_add_u32 s28, s28, {CNT_OFF}
    v_mov_b32 v30, 0
    v_lshlrev_b32 v31, 2, v0
    buffer_store_dword v30, v31, s[20:23], s28 offen
    """)
    a.label("k1_nocnt")
    a("s_cmp_ge_u32 s3, 6")
    a("s_cbranch_scc1 k1_pw")
    a("s_waitcnt vmcnt(0)")
    a.label("k1_pw")
    a("s_barrier")
    stamp1(a, 1)
    for o in read_ops(0) + read_ops(1): a(o)
    stores_pending = 0
    for k in range(16):
        ps = k >> 3
        if k > 0:
            if k != 14:
                a("s_cmp_ge_u32 s3, 6")
                a(f"s_cbranch_scc1 k1_nw{k}")
            a(f"s_waitcnt vmcnt({ {10: 8, 15: 8}.get(k, 0) })")
            a.label(f"k1_nw{k}")
            a("s_barrier")
            if os.environ.get("KST") and k in (1, 2, 3, 4, 6, 8, 10, 12): stamp1(a, 5 + (1, 2, 3, 4, 6, 8, 10, 12).index(k))
        if k + 2 < 16:
            a("s_cmp_ge_u32 s3, 6")
            a(f"s_cbranch_scc1 k1_t{k}")
            dma(k + 2)
            a(f"s_branch k1_d{k}")
            a.label(f"k1_t{k}")
            if k + 5 < 16: touch(k + 5)
            if k == 0:
                a("s_cmp_lg_u32 s3, 7")
                a("s_cbranch_scc1 k1_tc")
                a("s_mov_b32 s3, 0")
                touch_code(a, "k1c", "code_end", 1, 5, 2, 7)
                a("s_mov_b32 s3, 7")
                a.label("k1_tc")
            if k == 1:
                a("s_cmp_ge_u32 s2, 64")
                a("s_cbranch_scc1 k1_tx")
                a("""
                s_and_b32 s28, s3, 1
                s_lshl_b32 s28, s28, 13
                buffer_load_dword v10, v9, s[80:83], s28 offen
                buffer_load_dword v10, v9, s[84:87], s28 offen
                buffer_load_dword v10, v9, s[88:91], 0 offen
                """)
                a.label("k1_tx")
            if 4 <= k < 8 and not (k == 4 and os.environ.get("WQL2")): t2(k - 4)
            if os.environ.get("WQL2") and 6 <= k < 14:
                a("s_cmp_lg_u32 s3, 7")
                a(f"s_cbranch_scc1 k1_tq{k}")
                a(f"""
                s_mov_b32 s92, s54
                s_mov_b32 s93, s55
                s_mov_b32 s94, {4*MB}
                s_mov_b32 s95, 0x00020000
                s_mov_b32 s28, {(k-6)*0x80000}
                buffer_load_dword v10, v8, s[92:95], s28 offen
                """)
                a.label(f"k1_tq{k}")
            a.label(f"k1_d{k}")
        if k == 14:
            a("s_cmp_ge_u32 s2, 64")
            a("s_cbranch_scc1 k1_nox2")
            a(f"""
            s_mul_i32 s28, s3, 6144
            s_add_u32 m0, s28, {STG}
            s_lshl_b32 s41, s3, 11
            buffer_load_dwordx4 v1, s[84:87], s41 offen lds
            buffer_load_dwordx4 v1, s[84:87], s41 offen offset:1024 lds
            s_add_u32 m0, s28, {STG + 2048}
            s_lshl_b32 s29, s3, 7
            buffer_load_dwordx4 v1, s[80:83], s41 offen lds
            buffer_load_dwordx4 v1, s[80:83], s41 offen offset:1024 lds
            """)
            for s in range(4):
                a(f"buffer_load_dwordx4 v[{160+4*s}:{163+4*s}], v31, s[88:91], s29 offen offset:{s*32}")
            a.label("k1_nox2")
        extra = epi_ops(0) if k == 9 else []
        nslots = 16
        for s in range(4):
            u = 4 * k + s
            a(f"s_waitcnt lgkmcnt({6 if u + 1 < 64 else 0})")
            rq = read_ops(u + 2) if u + 2 < 64 else []
            f = FB + 16 * (u % 3)
            i = 0
            for m in range(2):
                for kb in range(2):
                    acc = ACC[ps] + 16 * (m * 2 + kb)
                    c = f"v[{f+4*kb}:{f+4*kb+3}]"; w = f"v[{f+8+4*m}:{f+11+4*m}]"
                    ci = "0" if (u & 31) == 0 else f"v[{acc}:{acc+15}]"
                    if ps: a(f"{MFMA} v[{acc}:{acc+15}], {c}, {w}, {ci}")
                    else:  a(f"{MFMA} v[{acc}:{acc+15}], {w}, {c}, {ci}")
                    for o in rq[2*i: 2*i+2]: a(o)
                    i += 1
                    ne = -(-len(extra) // nslots)
                    for o in extra[:ne]: a(o)
                    extra = extra[ne:]
                    nslots -= 1
        assert not extra
    stamp1(a, 2)
    a("s_nop 15")
    for o in epi_ops(1): a(o)
    stamp1(a, 4)
    XB = STG; GB = 3 * STG
    a("s_cmp_ge_u32 s2, 64")
    a("s_cbranch_scc1 k1_fin")
    a(f"""
    s_mul_i32 s28, s3, 6144
    s_add_u32 s28, s28, {XB}
    s_lshl_b32 s29, s2, 15
    s_lshl_b32 s41, s3, 12
    s_add_u32 s29, s29, s41
    s_add_u32 s29, s29, {XF_OFF}
    v_lshrrev_b32 v5, 4, v0
    v_and_b32 v6, 15, v0
    v_and_b32 v7, 1, v5
    v_lshlrev_b32 v7, 11, v7
    v_lshrrev_b32 v2, 1, v5
    v_lshlrev_b32 v2, 3, v2
    v_lshrrev_b32 v3, 2, v6
    v_add_u32 v2, v2, v3
    v_lshl_add_u32 v7, v2, 5, v7
    v_and_b32 v3, 3, v6
    v_lshl_add_u32 v7, v3, 3, v7
    v_add_u32 v7, s28, v7
    v_mov_b32 v11, 0
    s_waitcnt vmcnt(8)
    """)
    for s in range(4):
        a(f"buffer_store_dwordx4 v[{112+4*s}:{115+4*s}], v1, s[20:23], s29 offen offset:{s*1024}")
    for s in range(4):
        a(f"ds_read_b64_tr_b16 v[{64+4*s}:{65+4*s}], v7 offset:{s*512}")
        a(f"ds_read_b64_tr_b16 v[{66+4*s}:{67+4*s}], v7 offset:{s*512+128}")
    a("s_waitcnt lgkmcnt(0)")
    for s in range(4):
        xf = 112 + 4 * s; wf = 64 + 4 * s
        c1 = "0" if s == 0 else "v[128:143]"; c2 = "0" if s == 0 else "v[144:159]"
        a(f"{MFMA} v[128:143], v[{wf}:{wf+3}], v[{xf}:{xf+3}], {c1}")
        a(f"{MFMA} v[144:159], v[{xf}:{xf+3}], v[{wf}:{wf+3}], {c2}")
        for i in range(4):
            a(f"v_dot2_f32_bf16 v11, v{xf+i}, v{160+4*s+i}, v11")
    a(f"""
    s_nop 15
    v_add_u32 v2, s28, v1
    s_lshl_b32 s29, s3, 8
    v_lshlrev_b32 v3, 2, v0
    v_add_u32 v3, s29, v3
    v_add_u32 v3, {GB}, v3
    """)
    for b in range(6):
        a(f"ds_write_b128 v2, v[{136+4*b}:{139+4*b}] offset:{b*1024}")
    a("ds_write_b32 v3, v11")
    a("s_waitcnt lgkmcnt(0)")
    a("s_barrier")
    a("s_cmp_ge_u32 s3, 3")
    a("s_cbranch_scc1 k1_gate")
    a(f"""
    s_lshl_b32 s28, s3, 11
    v_add_u32 v2, s28, v1
    v_add_u32 v2, {XB}, v2
    """)
    for w in range(8):
        a(f"ds_read_b128 v[{128+8*w}:{131+8*w}], v2 offset:{w*6144}")
        a(f"ds_read_b128 v[{132+8*w}:{135+8*w}], v2 offset:{w*6144+1024}")
    a("s_waitcnt lgkmcnt(0)")
    for w in range(1, 8):
        for j in range(8): a(f"v_add_f32 v{128+j}, v{128+j}, v{128+8*w+j}")
    pack8(a, 32, 128)
    a("s_cmp_lg_u32 s3, 0")
    a("s_cbranch_scc1 k1_va")
    a(f"""
    s_lshl_b32 s28, s2, 10
    s_add_u32 s28, s28, {KA_OFF}
    buffer_store_dwordx4 v[32:35], v1, s[20:23], s28 offen
    s_branch k1_fin
    """)
    a.label("k1_va")
    a("""
    v_and_b32 v2, 31, v0
    v_mov_b32 v3, 0x3f803f80
    v_cmp_eq_u32 vcc, 16, v2
    s_nop 1
    v_cndmask_b32 v3, 0, v3, vcc
    v_cmp_gt_u32 vcc, 16, v2
    s_nop 1
    """)
    for i in range(4): a(f"v_cndmask_b32 v{32+i}, v3, v{32+i}, vcc")
    a(f"""
    s_lshl_b32 s28, s2, 11
    s_lshl_b32 s29, s3, 10
    s_add_u32 s28, s28, s29
    s_add_u32 s28, s28, {VA_OFF - 1024}
    buffer_store_dwordx4 v[32:35], v1, s[20:23], s28 offen
    s_branch k1_fin
    """)
    a.label("k1_gate")
    a("s_cmp_lg_u32 s3, 3")
    a("s_cbranch_scc1 k1_fin")
    a(f"""
    v_lshlrev_b32 v3, 2, v0
    v_add_u32 v3, {GB}, v3
    """)
    for w in range(8): a(f"ds_read_b32 v{128+w}, v3 offset:{w*256}")
    a("s_waitcnt lgkmcnt(0)")
    for w in range(1, 8): a(f"v_add_f32 v128, v128, v{128+w}")
    a(f"""
    v_mov_b32 v11, v128
    s_nop 1
    v_permlane32_swap_b32 v11, v128
    s_nop 1
    v_add_f32 v11, v11, v128
    v_cvt_pk_bf16_f32 v11, v11, v11
    v_lshlrev_b32 v11, 16, v11
    v_mul_f32 v11, {f32hex(-LOG2E)}, v11
    v_exp_f32 v11, v11
    s_nop 0
    v_add_f32 v11, 1.0, v11
    v_rcp_f32 v11, v11
    s_nop 0
    v_cvt_pk_bf16_f32 v11, v11, v11
    v_lshlrev_b32 v44, 16, v11
    v_sub_f32 v45, 1.0, v44
    v_cvt_pk_bf16_f32 v45, v45, v45
    v_lshlrev_b32 v45, 16, v45
    v_lshlrev_b32 v3, 3, v0
    s_lshl_b32 s28, s2, 8
    s_add_u32 s28, s28, {G_OFF}
    v_cmp_gt_u32 vcc, 32, v0
    s_and_saveexec_b64 s[38:39], vcc
    buffer_store_dwordx2 v[44:45], v3, s[20:23], s28 offen
    s_mov_b64 exec, s[38:39]
    """)
    a.label("k1_fin")
    if (os.environ.get("STK") == "1" or os.environ.get("XST")) and STAMP:
        a("s_waitcnt vmcnt(0)")
        stamp1(a, 3); stamp1(a, 14, real=True)
    a.label("k1_end")
    a("s_endpgm")
    return name, f"grid=(256,1,1) block=(512,1,1) lds={3*STG+2048}", kernel_desc(name, 256)
```

```python
from gen2 import *
from gen2 import _stamp
import gen1
def stamp3(a, idx, **kw):
    if os.environ.get("STK") == "3": _stamp(a, idx, **kw)
    if os.environ.get("XST") and idx in (14, 15): _stamp(a, idx + 4, **kw)

def gen_k3(a):
    name = "k3_kernel"
    kernel_begin(a, name)
    a(f"""
    s_cmp_ge_u32 s2, 512
    s_cbranch_scc1 k3_end
    s_load_dwordx2 s[6:7], s[0:1], {KA_WQ}
    s_load_dwordx2 s[4:5], s[0:1], {KA_WO}
    s_load_dwordx2 s[24:25], s[0:1], {KA_BWO}
    s_load_dwordx4 s[32:35], s[0:1], {KA_OUT}
    s_load_dwordx2 s[30:31], s[0:1], {KA_WS}
    v_lshrrev_b32 v2, 6, v0
    v_and_b32 v0, 63, v0
    v_lshlrev_b32 v1, 4, v0
    v_readfirstlane_b32 s3, v2
    s_waitcnt lgkmcnt(0)
    """)
    srd(a, 20, 30, WS_BYTES)
    touch_code(a, "k3c", "code_end", 8, 1, 15, 14)
    a("s_cmp_ge_u32 s2, 256")
    a("s_cbranch_scc1 k3_gemm")
    if os.environ.get("NOA3"): a("s_endpgm")
    gen_k3_A(a)
    a.label("k3_gemm")
    gen_k3_G(a)
    a.label("k3_end")
    a("s_endpgm")
    return name, "grid=(512,1,1) block=(512,1,1) lds=81920", kernel_desc(name, 128)

def gen_k3_G(a):
    a("""
    s_sub_u32 s64, s2, 256
    s_and_b32 s28, s64, 7
    s_lshr_b32 s29, s64, 3
    s_and_b32 s7, s29, 7
    s_lshr_b32 s29, s29, 3
    s_lshl_b32 s6, s28, 2
    s_add_u32 s6, s6, s29
    """)
    srd(a, 8, 24, 4*MB)
    srd(a, 12, 4, 512*1024)
    srd(a, 16, 32, 2*MB)
    a(f"""
    v_lshrrev_b32 v3, 3, v0
    s_lshl_b32 s28, s3, 5
    v_add_u32 v3, s28, v3
    v_lshlrev_b32 v3, 10, v3
    v_bfe_u32 v4, v0, 4, 1
    v_lshlrev_b32 v4, 2, v4
    v_and_b32 v5, 7, v0
    v_xor_b32 v4, v4, v5
    v_lshl_add_u32 v3, v4, 4, v3
    s_lshl_b32 s28, s7, 7
    v_add_u32 v3, s28, v3
    v_mov_b32 v4, v3
    s_mul_i32 s44, s6, {2*ZF_RG}
    s_lshl_b32 s28, s3, 11
    s_add_u32 s44, s44, s28
    s_add_u32 s44, s44, {ZF_OFF}
    s_add_u32 s45, s44, {ZF_RG}
    s_lshl_b32 s46, s3, 13
    """)
    for jj in range(4):
        a(f"s_mov_b32 s{40+jj}, {jj*7168}")
    ACC = 64; ZR = 32; WF = 16
    def issue_w(i):
        slot = i & 1
        a(f"s_add_u32 m0, s46, {slot*4096}")
        a("s_nop 0")
        if i < 16: va, sd = "v3", 8
        else:      va, sd = "v4", 12
        for jj in range(4):
            a(f"buffer_load_dwordx4 {va}, s[{sd}:{sd+3}], s{40+jj} offen offset:{jj*1024} lds")
        a(f"v_add_u32 {va}, 0x40000, {va}")
    def issue_z(i):
        z = ZR + 16 * (i & 1)
        sc = " sc1" if i >= 16 else ""
        a(f"buffer_load_dwordx4 v[{z}:{z+3}], v1, s[20:23], s44 offen{sc}")
        a(f"buffer_load_dwordx4 v[{z+4}:{z+7}], v1, s[20:23], s44 offen offset:1024{sc}")
        a(f"buffer_load_dwordx4 v[{z+8}:{z+11}], v1, s[20:23], s45 offen{sc}")
        a(f"buffer_load_dwordx4 v[{z+12}:{z+15}], v1, s[20:23], s45 offen offset:1024{sc}")
        a("s_add_u32 s44, s44, 16384")
        a("s_add_u32 s45, s45, 16384")
    issue_w(0); issue_z(0)
    a("""
    v_lshrrev_b32 v5, 5, v0
    v_bfe_u32 v6, v0, 2, 2
    v_lshl_add_u32 v5, v5, 2, v6
    v_lshlrev_b32 v5, 7, v5
    v_bfe_u32 v6, v0, 3, 1
    v_lshl_add_u32 v5, v6, 6, v5
    v_bfe_u32 v6, v0, 4, 1
    v_lshl_add_u32 v5, v6, 5, v5
    v_and_b32 v6, 3, v0
    v_lshl_add_u32 v5, v6, 3, v5
    v_add_u32 v5, s46, v5
    v_xor_b32 v6, 64, v5
    """)
    issue_w(1); issue_z(1)
    stamp3(a, 0, tv=12, wavereg="s3"); stamp3(a, 15, real=True, tv=12)
    for r in range(64): a(f"v_mov_b32 v{ACC+r}, 0")
    def step(i, waitn, nxt_w, nxt_z):
        slot = i & 1
        a(f"s_waitcnt vmcnt({waitn})")
        for s in range(2):
            for m in range(2):
                f = WF + 8 * s + 4 * m
                a(f"ds_read_b64_tr_b16 v[{f}:{f+1}], v{5+m} offset:{slot*4096 + s*2048}")
                a(f"ds_read_b64_tr_b16 v[{f+2}:{f+3}], v{5+m} offset:{slot*4096 + s*2048 + 1024}")
        for s in range(2):
            a(f"s_waitcnt lgkmcnt({4*(1-s)})")
            if s == 1 and nxt_w is not None: issue_w(nxt_w)
            for m in range(2):
                f = WF + 8 * s + 4 * m
                for rg in range(2):
                    z = ZR + 16 * slot + 8 * rg + 4 * s
                    acc = ACC + 16 * (2 * m + rg)
                    a(f"{MFMA} v[{acc}:{acc+15}], v[{f}:{f+3}], v[{z}:{z+3}], v[{acc}:{acc+15}]")
        if nxt_z is not None: issue_z(nxt_z)
    a("s_mov_b32 s47, 0")
    a.label("g_loop")
    step(0, 8, 2, 2)
    step(1, 8, 3, 3)
    a("""
    s_add_u32 s47, s47, 1
    s_cmp_lt_u32 s47, 7
    s_cbranch_scc1 g_loop
    """)
    SPLIT = not os.environ.get("NOSPLIT")
    if SPLIT:
        step(14, 8, 16, 16)
        step(15, 8, 17, None)
        step(16, 4, None, None)
    else:
        step(14, 8, 16, None)
        step(15, 4, 17, None)
    if os.environ.get("GSCALE"):
        a(f"""
        v_and_b32 v9, 31, v0
        s_lshl_b32 s28, s6, 6
        v_add_u32 v9, s28, v9
        v_lshlrev_b32 v9, 3, v9
        s_mov_b32 s28, {G_OFF}
        buffer_load_dword v10, v9, s[20:23], s28 offen offset:4
        buffer_load_dword v11, v9, s[20:23], s28 offen offset:260
        s_waitcnt vmcnt(0)
        s_nop 7
        """)
        for m in range(2):
            for rg in range(2):
                for r in range(16):
                    a(f"v_mul_f32 v{ACC+16*(2*m+rg)+r}, v{10+rg}, v{ACC+16*(2*m+rg)+r}")
    stamp3(a, 1, tv=12)
    a(f"""
    s_lshl_b32 s28, s6, 8
    s_add_u32 s28, s28, {CNT_OFF}
    v_mov_b32 v7, 0
    s_mov_b32 s65, 0
    s_cmp_lg_u32 s3, 0
    s_cbranch_scc1 g_ready
    s_mov_b64 exec, 1
    """)
    a.label("g_poll")
    a(f"""
    buffer_load_dword v8, v7, s[20:23], s28 offen sc1
    s_waitcnt vmcnt(0)
    v_readfirstlane_b32 s29, v8
    s_cmp_ge_u32 s29, 8
    s_cbranch_scc1 g_ready1
    s_sleep {int(os.environ.get('SLP', '16'))}
    s_add_u32 s65, s65, 1
    s_cmp_lt_u32 s65, 0x100000
    s_cbranch_scc1 g_poll
    """)
    a.label("g_ready1")
    a("s_mov_b64 exec, -1")
    a.label("g_ready")
    a("s_barrier")
    stamp3(a, 2, tv=12)
    if SPLIT:
        issue_z(17)
    else:
        issue_z(16); issue_z(17)
        step(16, 4, None, None)
    step(17, 0, None, None)
    a("s_nop 15")
    a("""
    s_barrier
    s_and_b32 s28, s3, 3
    s_lshl_b32 s28, s28, 14
    v_add_u32 v7, s28, v1
    s_cmp_lt_u32 s3, 4
    s_cbranch_scc1 g_r1lo
    """)
    for bk in range(16):
        a(f"ds_write_b128 v7, v[{ACC+4*bk}:{ACC+4*bk+3}] offset:{bk*1024}")
    a("s_waitcnt lgkmcnt(0)")
    a("s_barrier")
    a("s_branch g_r2")
    a.label("g_r1lo")
    a("s_barrier")
    for h in range(2):
        for bk in range(8):
            a(f"ds_read_b128 v[{16+4*bk}:{19+4*bk}], v7 offset:{(8*h+bk)*1024}")
        a("s_waitcnt lgkmcnt(0)")
        for r in range(32):
            a(f"v_add_f32 v{ACC+32*h+r}, v{ACC+32*h+r}, v{16+r}")
    for bk in range(16):
        a(f"ds_write_b128 v7, v[{ACC+4*bk}:{ACC+4*bk+3}] offset:{bk*1024}")
    a("s_waitcnt lgkmcnt(0)")
    a.label("g_r2")
    a("""
    s_barrier
    s_lshl_b32 s28, s3, 11
    v_add_u32 v7, s28, v1
    """)
    for e in range(2):
        for w in range(4):
            d = 16 + 16 * e + 4 * w
            a(f"ds_read_b128 v[{d}:{d+3}], v7 offset:{w*16384 + e*1024}")
    a("""
    s_lshr_b32 s28, s3, 1
    s_and_b32 s28, s28, 1
    s_lshl_b32 s28, s28, 5
    s_lshl_b32 s29, s6, 6
    s_add_u32 s28, s28, s29
    v_and_b32 v9, 31, v0
    v_add_u32 v9, s28, v9
    v_lshlrev_b32 v9, 10, v9
    v_lshrrev_b32 v10, 5, v0
    v_lshl_add_u32 v9, v10, 3, v9
    s_lshl_b32 s28, s7, 7
    s_lshr_b32 s29, s3, 2
    s_lshl_b32 s29, s29, 6
    s_add_u32 s28, s28, s29
    s_and_b32 s29, s3, 1
    s_lshl_b32 s29, s29, 5
    s_add_u32 s28, s28, s29
    """)
    for e in range(2):
        a(f"s_waitcnt lgkmcnt({4*(1-e)})")
        d = 16 + 16 * e
        for w in range(1, 4):
            for j in range(4):
                a(f"v_add_f32 v{d+j}, v{d+j}, v{d+4*w+j}")
        a(f"v_cvt_pk_bf16_f32 v{12+2*e}, v{d}, v{d+1}")
        a(f"v_cvt_pk_bf16_f32 v{13+2*e}, v{d+2}, v{d+3}")
        a(f"buffer_store_dwordx2 v[{12+2*e}:{13+2*e}], v9, s[16:19], s28 offen offset:{16*e}")
    if (os.environ.get("STK") == "3" or os.environ.get("XST")) and STAMP:
        a("s_waitcnt vmcnt(0)"); stamp3(a, 3, tv=4); stamp3(a, 14, real=True, tv=4)

def gen_k3_A(a):
    srd(a, 12, 6, 512 * 1024)
    if os.environ.get("APRIO"): a(f"s_setprio {os.environ['APRIO']}")
    AQ = 8; ANEG = 16; AO = 32; AS = (48, 64); AP = (80, 88); AKV = 96
    XF = 64
    BUF = 24576
    a("""
    s_and_b32 s28, s2, 7
    s_lshr_b32 s29, s2, 3
    s_and_b32 s7, s29, 7
    s_lshr_b32 s29, s29, 3
    s_lshl_b32 s6, s28, 2
    s_add_u32 s6, s6, s29
    v_and_b32 v3, 31, v0
    v_lshrrev_b32 v4, 5, v0
    """)
    a("""
    v_lshrrev_b32 v5, 3, v0
    s_lshl_b32 s28, s3, 6
    v_add_u32 v5, s28, v5
    v_lshlrev_b32 v5, 10, v5
    v_bfe_u32 v6, v0, 4, 1
    v_lshlrev_b32 v6, 2, v6
    v_and_b32 v7, 7, v0
    v_xor_b32 v6, v6, v7
    v_lshl_add_u32 v5, v6, 4, v5
    s_lshl_b32 s28, s7, 7
    v_add_u32 v5, s28, v5
    s_lshl_b32 s29, s3, 13
    """)
    for g in range(2):
        a(f"s_add_u32 m0, s29, {g*4096}")
        for i in range(4):
            j = g * 4 + i
            a(f"s_mov_b32 s28, {j*8192 - i*1024}")
            a(f"buffer_load_dwordx4 v5, s[12:15], s28 offen offset:{i*1024} lds")
    a(f"""
    s_lshl_b32 s28, s6, 6
    s_and_b32 s29, s3, 1
    s_lshl_b32 s29, s29, 5
    s_add_u32 s48, s28, s29
    s_lshl_b32 s28, s48, 10
    s_lshr_b32 s49, s3, 2
    s_lshl_b32 s29, s49, 14
    s_add_u32 s28, s28, s29
    s_add_u32 s28, s28, {XF_OFF}
    """)
    for s in range(16):
        if s and s % 4 == 0: a("s_add_u32 s28, s28, 4096")
        a(f"buffer_load_dwordx4 v[{XF+4*s}:{XF+4*s+3}], v1, s[20:23], s28 offen offset:{(s&3)*1024}")
    stamp3(a, 0, tv=12); stamp3(a, 15, real=True, tv=12)
    a("""
    v_bfe_u32 v6, v0, 2, 2
    v_lshl_add_u32 v7, v4, 3, v6
    v_lshlrev_b32 v7, 7, v7
    v_bfe_u32 v6, v0, 3, 1
    v_lshl_add_u32 v7, v6, 6, v7
    v_bfe_u32 v6, v0, 4, 1
    v_lshl_add_u32 v7, v6, 5, v7
    v_and_b32 v6, 3, v0
    v_lshl_add_u32 v7, v6, 3, v7
    s_lshr_b32 s28, s3, 1
    s_and_b32 s28, s28, 1
    s_lshl_b32 s28, s28, 6
    v_xor_b32 v7, s28, v7
    s_lshl_b32 s28, s49, 15
    v_add_u32 v7, s28, v7
    s_lshl_b32 s44, s3, 10
    s_lshl_b32 s45, s3, 11
    s_add_u32 s45, s45, 8192
    """)
    a("s_waitcnt vmcnt(16)")
    a("s_barrier")
    WF = 16
    def wr(s):
        f = WF + 4 * (s & 3)
        a(f"ds_read_b64_tr_b16 v[{f}:{f+1}], v7 offset:{s*2048}")
        a(f"ds_read_b64_tr_b16 v[{f+2}:{f+3}], v7 offset:{s*2048+512}")
    wr(0); wr(1)
    for s in range(16):
        if s + 2 < 16:
            wr(s + 2); a(f"s_waitcnt lgkmcnt(4) vmcnt({15-s})")
        else:
            a(f"s_waitcnt lgkmcnt({2*(15-s)}) vmcnt({15-s})")
        f = WF + 4 * (s & 3)
        cin = "0" if s == 0 else f"v[{AO}:{AO+15}]"
        a(f"{MFMA} v[{AO}:{AO+15}], v[{f}:{f+3}], v[{XF+4*s}:{XF+4*s+3}], {cin}")
    a("""
    s_lshl_b32 s28, s3, 11
    v_add_u32 v5, s28, v1
    v_add_u32 v5, 0x10000, v5
    v_xor_b32 v6, 0x2000, v5
    s_nop 7
    s_cmp_lg_u32 s49, 0
    s_cbranch_scc1 a3_kh1
    """)
    a(f"ds_write_b128 v5, v[{AO+8}:{AO+11}]")
    a(f"ds_write_b128 v5, v[{AO+12}:{AO+15}] offset:1024")
    a("s_branch a3_khd")
    a.label("a3_kh1")
    a(f"ds_write_b128 v5, v[{AO}:{AO+3}]")
    a(f"ds_write_b128 v5, v[{AO+4}:{AO+7}] offset:1024")
    a("s_nop 1")
    for r in range(8): a(f"v_mov_b32 v{AO+r}, v{AO+8+r}")
    a.label("a3_khd")
    a("s_waitcnt lgkmcnt(0)")
    a("s_barrier")
    def kv_ops():
        return ["s_add_u32 m0, s53, s44",
                "s_add_u32 s28, s53, s45",
                "buffer_load_dwordx4 v1, s[20:23], s50 offen lds",
                "s_mov_b32 m0, s28",
                "s_add_u32 s50, s50, 8192",
                "buffer_load_dwordx4 v1, s[20:23], s51 offen lds",
                "buffer_load_dwordx4 v1, s[20:23], s51 offen offset:1024 lds",
                "s_add_u32 s51, s51, 16384",
                f"s_add_u32 s53, s53, {BUF}",
                f"s_cmp_ge_u32 s53, {3*BUF}",
                "s_cselect_b32 s53, 0, s53"]
    def kv_init():
        a(f"s_add_u32 s50, s44, {KA_OFF}")
        a(f"s_add_u32 s51, s45, {VA_OFF - 8192}")
        a("s_mov_b32 s53, 0")
        for o in kv_ops() + kv_ops(): a(o)
    kv_init()
    a(f"ds_read_b128 v[{AS[0]}:{AS[0]+3}], v6")
    a(f"ds_read_b128 v[{AS[0]+4}:{AS[0]+7}], v6 offset:1024")
    a(f"s_mov_b32 s28, {f32hex(LOG2E * 0.25)}")
    a("s_mov_b32 s60, 0")
    a("s_waitcnt lgkmcnt(0)")
    for r in range(8): a(f"v_add_f32 v{AO+r}, v{AO+r}, v{AS[0]+r}")
    for r in range(8): a(f"v_mul_f32 v{AO+r}, s28, v{AO+r}")
    pack8(a, AQ, AO)
    a.label("a3_start")
    a("s_waitcnt vmcnt(0)")
    a("s_barrier")
    a(f"""
    v_mov_b32 v5, v1
    v_add_u32 v6, {BUF}, v1
    v_mov_b32 v7, v1
    s_mov_b32 s54, {2*BUF}
    ds_read_b128 v[{AKV+12}:{AKV+15}], v5
    ds_read_b128 v[{AKV}:{AKV+3}], v5 offset:1024
    """)
    for r in range(16): a(f"v_mov_b32 v{AO+r}, 0")
    for r in range(8): a(f"v_mov_b32 v{AP[1]+r}, 0")
    for r in range(8): a(f"v_mov_b32 v{AKV+4+r}, 0")
    a("s_waitcnt lgkmcnt(1)")
    K0 = AKV + 12; S = AS[0]
    a("s_cmp_eq_u32 s60, 0")
    a("s_cbranch_scc1 a3_raw")
    a(f"{MFMA} v[{S}:{S+15}], v[{K0}:{K0+3}], v[{AQ}:{AQ+3}], v[{ANEG}:{ANEG+15}]")
    a("s_nop 15")
    a("s_branch a3_go")
    a.label("a3_raw")
    a(f"{MFMA} v[{S}:{S+15}], v[{K0}:{K0+3}], v[{AQ}:{AQ+3}], 0")
    a("s_nop 15")
    a(f"v_max3_f32 v2, v{S}, v{S+1}, v{S+2}")
    for r in range(3, 15, 2): a(f"v_max3_f32 v2, v2, v{S+r}, v{S+r+1}")
    a(f"v_max_f32 v2, v2, v{S+15}")
    a("""
    v_mov_b32 v12, v2
    s_nop 1
    v_permlane32_swap_b32 v12, v2
    s_nop 1
    v_max_f32 v2, v2, v12
    """)
    for r in range(16): a(f"v_sub_f32 v{S+r}, v{S+r}, v2")
    for r in range(16): a(f"v_sub_f32 v{ANEG+r}, 0, v2")
    a.label("a3_go")
    a("s_mov_b32 s52, 0")
    stamp3(a, 1, tv=12)
    def stage_reads(j, st):
        f = AKV + 12 * st
        if j <= 6: k = f"v5 offset:{(j+1)*1024}"
        else:      k = f"v6 offset:{(j-7)*1024}"
        vo = 8192 + (j - 1) * 2048
        return [f"ds_read_b128 v[{f}:{f+3}], {k}",
                f"ds_read_b128 v[{f+4}:{f+7}], v5 offset:{vo}",
                f"ds_read_b128 v[{f+8}:{f+11}], v5 offset:{vo + 1024}"]
    def stepA(par, f, grp, extra):
        Sx = AS[par]; Px = AP[par]; Py = AP[par ^ 1]; Sn = AS[par ^ 1]
        ops = []
        for r in range(16):
            ops.append(f"v_exp_f32 v{Sx+r}, v{Sx+r}")
            if r >= 2 and (r & 1) == 0: ops.append(f"v_cvt_pk_bf16_f32 v{Px+(r>>1)-1}, v{Sx+r-2}, v{Sx+r-1}")
        ops.append("s_nop 0")
        ops.append(f"v_cvt_pk_bf16_f32 v{Px+7}, v{Sx+14}, v{Sx+15}")
        m = [f"{MFMA} v[{Sn}:{Sn+15}], v[{f}:{f+3}], v[{AQ}:{AQ+3}], v[{ANEG}:{ANEG+15}]",
             f"{MFMA} v[{AO}:{AO+15}], v[{f+4}:{f+7}], v[{Py}:{Py+3}], v[{AO}:{AO+15}]",
             f"{MFMA} v[{AO}:{AO+15}], v[{f+8}:{f+11}], v[{Py+4}:{Py+7}], v[{AO}:{AO+15}]"]
        extra = list(extra)
        for i, o in enumerate(ops):
            if i == 0:
                a(m[0])
                for g in grp: a(g)
            if i == 5: a(m[1])
            if i == 11: a(m[2])
            a(o)
            if i >= 1 and extra: a(extra.pop(0))
        for o in extra: a(o)
    a.label("a3_loop")
    for j in range(8):
        st = j & 1
        f = AKV + 12 * st
        if j == 1:
            a("s_waitcnt vmcnt(0) lgkmcnt(0)")
            a("s_barrier")
        else:
            a("s_waitcnt lgkmcnt(0)")
        ex = []
        if j == 1: ex = kv_ops()
        if j == 7:
            ex = ["v_mov_b32 v5, v6", "v_add_u32 v6, s54, v1", f"s_add_u32 s54, s54, {BUF}", f"s_cmp_ge_u32 s54, {3*BUF}", "s_cselect_b32 s54, 0, s54",
                  "s_add_u32 s52, s52, 1", "s_cmp_lt_u32 s52, 8"]
        stepA(st, f, stage_reads(j + 1, st ^ 1), ex)
    a("s_cbranch_scc1 a3_loop")
    a("s_waitcnt lgkmcnt(0)")
    a(f"{MFMA} v[{AO}:{AO+15}], v[{AKV+4}:{AKV+7}], v[{AP[1]}:{AP[1]+3}], v[{AO}:{AO+15}]")
    a(f"{MFMA} v[{AO}:{AO+15}], v[{AKV+8}:{AKV+11}], v[{AP[1]+4}:{AP[1]+7}], v[{AO}:{AO+15}]")
    stamp3(a, 2, tv=12)
    a(f"""
    v_add_u32 v2, s48, v3
    v_lshlrev_b32 v2, 3, v2
    s_mov_b32 s28, {G_OFF}
    buffer_load_dword v2, v2, s[20:23], s28 offen
    v_lshlrev_b32 v5, 2, v3
    s_nop 15
    ds_bpermute_b32 v6, v5, v{AO+8}
    v_mov_b32 v4, 0
    """)
    for r in range(8): a(f"v_fma_f32 v4, v{AO+r}, 0, v4")
    a(f"""
    s_mov_b32 s28, {f32hex(2.0**THR)}
    s_waitcnt lgkmcnt(0) vmcnt(0)
    v_cmp_nle_f32 vcc, v6, s28
    v_cmp_u_f32 s[62:63], v4, v4
    s_or_b64 s[62:63], s[62:63], vcc
    s_cmp_lg_u64 s[62:63], 0
    s_cselect_b32 s28, 1, 0
    v_mov_b32 v4, s28
    s_lshl_b32 s29, s3, 2
    v_mov_b32 v5, s29
    v_add_u32 v5, {3*BUF}, v5
    ds_write_b32 v5, v4
    v_mov_b32 v5, {3*BUF}
    s_waitcnt lgkmcnt(0)
    s_barrier
    ds_read_b128 v[{AKV}:{AKV+3}], v5
    ds_read_b128 v[{AKV+4}:{AKV+7}], v5 offset:16
    s_waitcnt lgkmcnt(0)
    v_or3_b32 v4, v{AKV}, v{AKV+1}, v{AKV+2}
    v_or3_b32 v4, v4, v{AKV+3}, v{AKV+4}
    v_or3_b32 v4, v4, v{AKV+5}, v{AKV+6}
    v_or_b32 v4, v4, v{AKV+7}
    s_nop 0
    v_readfirstlane_b32 s28, v4
    s_cmp_eq_u32 s28, 0
    s_cbranch_scc1 a3_ok
    s_cmp_lg_u32 s60, 0
    s_cbranch_scc1 a3_ok
    s_mov_b32 s60, 1
    s_mov_b32 s50, {KA_OFF}
    s_mov_b32 s52, 0
    v_mov_b32 v6, 0xff800000
    """)
    a.label("a3_maxloop")
    a(f"buffer_load_dwordx4 v[{AKV}:{AKV+3}], v1, s[20:23], s50 offen")
    a("s_add_u32 s50, s50, 1024")
    a("s_waitcnt vmcnt(0)")
    a(f"{MFMA} v[{S}:{S+15}], v[{AKV}:{AKV+3}], v[{AQ}:{AQ+3}], 0")
    a("s_nop 15")
    for r in range(0, 16, 2): a(f"v_max3_f32 v6, v6, v{S+r}, v{S+r+1}")
    a("""
    s_add_u32 s52, s52, 1
    s_cmp_lt_u32 s52, 64
    s_cbranch_scc1 a3_maxloop
    v_mov_b32 v5, v6
    s_nop 1
    v_permlane32_swap_b32 v5, v6
    s_nop 1
    v_max_f32 v6, v6, v5
    """)
    for r in range(16): a(f"v_sub_f32 v{ANEG+r}, 0, v6")
    kv_init()
    a("s_branch a3_start")
    a.label("a3_ok")
    a(f"""
    v_rcp_f32 v6, v6
    s_lshr_b32 s28, s48, 5
    s_mul_i32 s28, s28, {ZF_RG}
    s_lshl_b32 s29, s7, 12
    s_add_u32 s28, s28, s29
    s_lshr_b32 s29, s3, 1
    s_and_b32 s29, s29, 1
    s_lshl_b32 s29, s29, 11
    s_add_u32 s28, s28, s29
    s_lshl_b32 s29, s49, 10
    s_add_u32 s28, s28, s29
    s_add_u32 s28, s28, {ZF_OFF + 256*1024}
    v_mul_f32 v6, v6, v2
    """)
    for r in range(8): a(f"v_mul_f32 v{AO+r}, v6, v{AO+r}")
    pack8(a, AP[0], AO)
    a(f"""
    buffer_store_dwordx4 v[{AP[0]}:{AP[0]+3}], v1, s[20:23], s28 offen sc1
    s_waitcnt vmcnt(0)
    s_barrier
    s_cmp_lg_u32 s3, 0
    s_cbranch_scc1 a3_done
    s_lshl_b32 s28, s6, 8
    s_add_u32 s28, s28, {CNT_OFF}
    v_mov_b32 v4, 1
    v_mov_b32 v5, 0
    s_mov_b64 exec, 1
    buffer_atomic_add v4, v5, s[20:23], s28 offen sc1
    s_mov_b64 exec, -1
    """)
    a.label("a3_done")
    stamp3(a, 3, tv=12); stamp3(a, 14, real=True, tv=12)
    a("s_endpgm")

def gen_k2b(a):
    name = "k2_kernel"
    kernel_begin(a, name)
    a(f"""
    s_cmp_ge_u32 s2, 256
    s_cbranch_scc1 k2_end
    s_load_dwordx2 s[24:25], s[0:1], {KA_BWQ}
    s_load_dwordx2 s[30:31], s[0:1], {KA_WS}
    v_lshrrev_b32 v2, 6, v0
    v_and_b32 v0, 63, v0
    v_lshlrev_b32 v1, 4, v0
    v_readfirstlane_b32 s3, v2
    s_waitcnt lgkmcnt(0)
    """)
    srd(a, 20, 30, WS_BYTES)
    gen_k2_B(a)
    a.label("k2_end")
    a("s_endpgm")
    return name, "grid=(256,1,1) block=(256,1,1) lds=81920", kernel_desc(name, 256)

if __name__ == "__main__":
    build([gen1.gen_k1, gen_k2b, gen_k3], sys.argv[1] if len(sys.argv) > 1 else "out.s")
```

```python
from gen4 import *
import gen4
from gen2 import _stamp, VM
def st7(a, idx, tv=2, **kw):
    if os.environ.get("STK", "2") == "2": _stamp(a, idx, tv=tv, **kw)

STG = 49152
SLOT = 16384; NSL = 9; RING = NSL * SLOT
MISC = RING; FLAG = MISC + 8192; QX = 5 * SLOT
O_ = 192; QF = 160; S_ = (128, 144); NEGM = 112; P_ = (96, 104); Q2 = 64; FR = 32
NK = 24

def gen_k12(a):
    name = "k1_kernel"
    kernel_begin(a, name)
    a(f"""
    s_cmp_ge_u32 s2, 256
    s_cbranch_scc1 k1_end
    s_load_dwordx2 s[4:5], s[0:1], {KA_CKV}
    s_load_dwordx4 s[24:27], s[0:1], {KA_WUK}
    s_load_dwordx4 s[8:11], s[0:1], {KA_DBG}
    s_load_dwordx2 s[64:65], s[0:1], {KA_X}
    s_load_dwordx4 s[68:71], s[0:1], {KA_WK}
    s_load_dwordx2 s[72:73], s[0:1], {KA_GATE}
    s_load_dwordx2 s[54:55], s[0:1], {KA_BWQ}
    s_load_dwordx2 s[56:57], s[0:1], {KA_BWO}
    s_load_dwordx2 s[58:59], s[0:1], {KA_WQ}
    s_load_dwordx2 s[60:61], s[0:1], {KA_WO}
    v_lshrrev_b32 v2, 6, v0
    v_and_b32 v0, 63, v0
    v_lshlrev_b32 v1, 4, v0
    v_readfirstlane_b32 s3, v2
    s_and_b32 s6, s2, 31
    s_lshr_b32 s7, s2, 5
    s_waitcnt lgkmcnt(0)
    s_mov_b32 s30, s10
    s_mov_b32 s31, s11
    """)
    srd(a, 20, 30, WS_BYTES)
    srd(a, 80, 8, 256)
    srd(a, 76, 64, 2*MB); srd(a, 88, 72, 1024)
    a(f"""
    s_lshl_b32 s28, s6, 19
    s_add_u32 s84, s30, s28
    s_addc_u32 s85, s31, 0
    s_mov_b32 s86, 524288
    s_mov_b32 s87, 0x00020000
    s_add_u32 s32, s84, {VF_OFF - 16384}
    s_addc_u32 s33, s85, 0
    s_mov_b32 s34, 524288
    s_mov_b32 s35, 0x00020000
    """)
    st7(a, 0); st7(a, 15, real=True)
    srd(a, 36, 4, 2*MB)
    srd(a, 12, 24, 4*MB)
    a(f"""
    v_mov_b32 v30, 0
    v_mov_b32 v31, 0
    v_lshrrev_b32 v3, 3, v0
    v_lshrrev_b32 v4, 4, v0
    v_and_b32 v5, 7, v0
    v_xor_b32 v6, v5, v4
    v_xor_b32 v7, 4, v6
    v_lshlrev_b32 v3, 10, v3
    v_lshl_add_u32 v6, v6, 4, v3
    v_lshl_add_u32 v7, v7, 4, v3
    s_lshl_b32 s28, s7, 8
    s_lshl_b32 s29, s3, 5
    s_add_u32 s28, s28, s29
    s_lshl_b32 s28, s28, 10
    v_add_u32 v8, s28, v6
    v_add_u32 v9, s28, v7
    s_sub_u32 s28, 15, s7
    s_cmp_lt_u32 s3, 4
    s_cselect_b32 s28, s28, s7
    s_lshl_b32 s28, s28, 7
    s_and_b32 s29, s3, 3
    s_lshl_b32 s29, s29, 5
    s_add_u32 s28, s28, s29
    s_lshl_b32 s44, s28, 10
    v_add_u32 v11, s44, v6
    s_sub_u32 s44, s44, 0
    v_add_u32 v2, s44, v7
    v_and_b32 v5, 15, v0
    v_lshlrev_b32 v6, 2, v4
    v_xor_b32 v5, v5, v6
    s_lshl_b32 s28, s3, 3
    v_add_u32 v6, s28, v4
    v_lshlrev_b32 v6, 13, v6
    v_lshl_add_u32 v6, v5, 4, v6
    s_lshl_b32 s28, s6, 8
    v_add_u32 v10, s28, v6
    v_mov_b32 v112, v11
    v_mov_b32 v113, v2
    s_lshl_b32 s45, s3, 12
    s_lshl_b32 s46, s3, 11
    s_add_u32 s46, s46, 32768
    """)
    a("""
    s_lshr_b32 s42, s6, 3
    s_lshl_b32 s42, s42, 1
    s_add_u32 s42, s42, s7
    s_and_b32 s42, s42, 7
    s_lshl_b32 s42, s42, 7
    s_lshl_b32 s43, s42, 12
    """ if not os.environ.get("NOROT") else """
    s_mov_b32 s42, 0
    s_mov_b32 s43, 0
    """)
    vm = VM()
    def dma_ops(k):
        kt = k & 7; st = k % 3
        ops = []
        if k == 8: ops += ["s_mov_b32 s12, s26", "s_mov_b32 s13, s27"]
        if k == 16: ops += ["s_mov_b32 s12, s54", "s_mov_b32 s13, s55", "s_mov_b32 s36, s64", "s_mov_b32 s37, s65", "v_mov_b32 v8, v112", "v_mov_b32 v9, v113"]
        ops.append(f"s_add_u32 m0, s45, {st*STG}")
        for jj in range(4):
            ops.append(f"s_add_u32 s40, s42, {jj*7168}")
            ops.append(f"buffer_load_dwordx4 v{8 + (jj & 1)}, s[36:39], s40 offen offset:{jj*1024} lds")
        ops.append(f"s_add_u32 m0, s46, {st*STG}")
        ops.append(f"s_add_u32 s40, s43, {32768 - 1024}")
        ops.append(f"buffer_load_dwordx4 v10, s[12:15], s43 offen lds")
        ops.append(f"buffer_load_dwordx4 v10, s[12:15], s40 offen offset:1024 lds")
        ops.append("s_add_u32 s42, s42, 128")
        ops.append("s_and_b32 s42, s42, 1023")
        ops.append("s_lshl_b32 s43, s42, 12")
        return ops
    def emit(o, tag):
        a(o)
        if o.startswith("buffer_"): vm.issue(tag)
    for k in range(3):
        for o in dma_ops(k): emit(o, ("d", k))
    def touch_ops(which):
        if which == 0:
            return ["s_lshr_b32 s28, s2, 3", "s_lshl_b32 s28, s28, 3", "s_add_u32 s28, s28, s3", "s_lshl_b32 s28, s28, 13",
                    "v_lshlrev_b32 v2, 7, v0",
                    "buffer_load_dword v114, v2, s[36:39], s28 offen",
                    "v_bfe_u32 v3, v0, 1, 3", "v_lshlrev_b32 v3, 13, v3", "v_and_b32 v4, 1, v0", "v_lshl_add_u32 v3, v4, 7, v3",
                    "s_lshl_b32 s29, s7, 19", "s_lshl_b32 s41, s3, 16", "s_add_u32 s29, s29, s41", "s_lshl_b32 s41, s6, 8", "s_add_u32 s29, s29, s41",
                    "buffer_load_dword v115, v3, s[12:15], s29 offen",
                    "s_mov_b32 s92, s26", "s_mov_b32 s93, s27", f"s_mov_b32 s94, {4*MB}", "s_mov_b32 s95, 0x00020000",
                    "buffer_load_dword v116, v3, s[92:95], s29 offen"]
        if which == 1:
            return ["s_lshr_b32 s28, s2, 3", "s_lshl_b32 s28, s28, 3", "s_add_u32 s28, s28, s3", "s_lshl_b32 s28, s28, 13",
                    "buffer_load_dword v114, v2, s[76:79], s28 offen",
                    "s_mov_b32 s92, s54", "s_mov_b32 s93, s55",
                    "buffer_load_dword v115, v3, s[92:95], s29 offen"]
        if which == 2:
            return ["s_lshl_b32 s28, s2, 3", "s_add_u32 s28, s28, s3", "s_lshl_b32 s28, s28, 11", "v_and_b32 v4, 15, v0", "v_lshlrev_b32 v4, 7, v4",
                    "s_mov_b32 s92, s56", "s_mov_b32 s93, s57",
                    "buffer_load_dword v114, v4, s[92:95], s28 offen",
                    "s_mov_b32 s92, s58", "s_mov_b32 s93, s59", f"s_mov_b32 s94, {512*1024}",
                    "buffer_load_dword v115, v4, s[92:95], s28 offen",
                    "s_mov_b32 s92, s60", "s_mov_b32 s93, s61",
                    "buffer_load_dword v116, v4, s[92:95], s28 offen"]
    a("""
    v_and_b32 v3, 31, v0
    s_lshr_b32 s28, s3, 1
    s_lshl_b32 s28, s28, 6
    v_add_u32 v3, s28, v3
    v_lshlrev_b32 v3, 7, v3
    v_lshrrev_b32 v5, 5, v0
    v_bfe_u32 v6, v0, 1, 3
    v_xor_b32 v5, v5, v6
    v_lshl_add_u32 v12, v5, 4, v3
    v_xor_b32 v13, 32, v12
    v_xor_b32 v14, 64, v12
    v_xor_b32 v15, 96, v12
    """)
    for st in (1, 2):
        for s in range(4): a(f"v_add_u32 v{12+4*st+s}, {st*STG}, v{12+s}")
    a("""
    v_lshrrev_b32 v3, 5, v0
    v_bfe_u32 v5, v0, 2, 2
    v_lshl_add_u32 v3, v3, 3, v5
    v_lshlrev_b32 v3, 8, v3
    v_bfe_u32 v6, v0, 4, 1
    v_lshl_add_u32 v3, v6, 5, v3
    v_and_b32 v6, 3, v0
    v_lshl_add_u32 v3, v6, 3, v3
    v_lshl_add_u32 v3, v5, 6, v3
    s_and_b32 s28, s3, 1
    s_lshl_b32 s28, s28, 7
    v_xor_b32 v3, s28, v3
    v_add_u32 v24, 32768, v3
    v_xor_b32 v25, 64, v24
    """)
    for st in (1, 2):
        for m in range(2): a(f"v_add_u32 v{24+2*st+m}, {st*STG}, v{24+m}")
    ACC = (128, 192, 128)
    a(f"""
    s_lshl_b32 s28, s6, 19
    s_lshl_b32 s29, s7, 16
    s_add_u32 s28, s28, s29
    s_lshr_b32 s29, s3, 1
    s_lshl_b32 s29, s29, 14
    s_add_u32 s28, s28, s29
    s_and_b32 s29, s3, 1
    s_lshl_b32 s48, s29, 12
    s_add_u32 s48, s48, s28
    s_add_u32 s48, s48, {KF_OFF}
    s_add_u32 s49, s48, 8192
    s_lshl_b32 s50, s29, 11
    s_add_u32 s50, s50, s28
    s_add_u32 s50, s50, {VF_OFF}
    s_add_u32 s51, s50, 4096
    s_add_u32 s52, s50, 8192
    s_add_u32 s53, s50, 12288
    """)
    FB = 64
    def read_ops(u):
        k = u >> 2; s = u & 3; st = k % 3
        f = FB + 16 * (u % 3)
        ca = 12 + 4 * st + s
        ops = [f"ds_read_b128 v[{f}:{f+3}], v{ca}",
               f"ds_read_b128 v[{f+4}:{f+7}], v{ca} offset:4096"]
        for m in range(2):
            wa = 24 + 2 * st + m
            ops.append(f"ds_read_b64_tr_b16 v[{f+8+4*m}:{f+9+4*m}], v{wa} offset:{s*4096}")
            ops.append(f"ds_read_b64_tr_b16 v[{f+10+4*m}:{f+11+4*m}], v{wa} offset:{s*4096+1024}")
        return ops
    def epi_ops(ps):
        ops = []; n = 0
        for m in range(2):
            for kb in range(2):
                acc = ACC[ps] + 16 * (m * 2 + kb)
                for g in range(2):
                    tmp = 32 + 4 * (n % 8); n += 1
                    for i in range(4):
                        ops.append(f"v_cvt_pk_bf16_f32 v{tmp+i}, v{acc+8*g+2*i}, v{acc+8*g+2*i+1}")
                    if ps == 0: sreg, off = 48 + kb, (2 * m + g) * 1024
                    else:       sreg, off = 50 + 2 * kb + g, m * 1024
                    ops.append(f"buffer_store_dwordx4 v[{tmp}:{tmp+3}], v1, s[20:23], s{sreg} offen offset:{off}" + ("" if os.environ.get("PLAINST") else " sc1"))
        return ops
    a(f"""
    s_sub_u32 s28, s2, 64
    s_cmp_ge_u32 s28, 32
    s_cbranch_scc1 k1_nocnt
    s_cmp_lg_u32 s3, 0
    s_cbranch_scc1 k1_nocnt
    s_lshl_b32 s28, s28, 8
    s_add_u32 s28, s28, {CNT_OFF}
    v_mov_b32 v30, 0
    v_lshlrev_b32 v31, 2, v0
    buffer_store_dword v30, v31, s[20:23], s28 offen
    s_waitcnt vmcnt(0)
    k1_nocnt:
    s_waitcnt vmcnt({vm.need({("d", 0)})})
    s_barrier
    """)
    st7(a, 4)
    for o in read_ops(0) + read_ops(1): a(o)
    def c_dma():
        for (sd, lo) in ((84, 0), (32, 8192)):
            for g in range(2):
                a(f"s_add_u32 m0, s53, {lo + g*4096}")
                a(f"s_add_u32 s28, s52, {g*4096}")
                for i in range(4):
                    a(f"buffer_load_dwordx4 v1, s[{sd}:{sd+3}], s28 offen offset:{i*1024} sc1 lds")
        a(f"""
        s_add_u32 s52, s52, 8192
        s_add_u32 s53, s53, {SLOT}
        s_cmp_ge_u32 s53, {RING}
        s_cselect_b32 s53, 0, s53
        """)
    def need_rb():
        l0 = a.newlabel("l_rbok"); l1 = a.newlabel("l_rbpoll"); l2 = a.newlabel("l_rbgot")
        a(f"""
        s_lshr_b32 s28, s52, 13
        s_add_u32 s28, s28, 4
        s_lshr_b32 s28, s28, 3
        s_min_u32 s28, s28, 7
        s_lshl_b32 s29, 2, s28
        s_sub_u32 s29, s29, 1
        s_and_b32 s28, s61, s29
        s_cmp_eq_u32 s28, s29
        s_cbranch_scc1 {l0}
        s_lshl_b32 s40, s6, 2
        v_mov_b32 v3, 0
        s_mov_b32 s41, 0
        {l1}:
        buffer_load_dword v2, v3, s[80:83], s40 offen sc1
        s_waitcnt vmcnt(0)
        v_readfirstlane_b32 s61, v2
        s_and_b32 s28, s61, s29
        s_cmp_eq_u32 s28, s29
        s_cbranch_scc1 {l2}
        s_sleep 4
        s_add_u32 s41, s41, 1
        s_cmp_lt_u32 s41, 0x100000
        s_cbranch_scc1 {l1}
        {l2}:
        {l0}:
        """)
    def task_setup():
        a("""
        s_sub_u32 s47, 15, s7
        s_cmp_eq_u32 s46, 0
        s_cselect_b32 s47, s47, s7
        s_lshl_b32 s50, s47, 2
        s_add_u32 s50, s50, 4
        """)
    XW = MISC
    XP = MISC + 8192 + 256
    def extra_loads(r):
        a(f"""
        s_sub_u32 s40, s3, 5
        s_lshl_b32 s28, s2, 15
        s_lshl_b32 s29, s40, 7
        s_add_u32 s29, s29, {r*256}
        s_add_u32 s28, s28, s29
        """)
        for s in range(4): a(f"buffer_load_dwordx4 v[{112+4*s}:{115+4*s}], v30, s[76:79], s28 offen offset:{s*32}")
        for s in range(4): a(f"buffer_load_dwordx4 v[{160+4*s}:{163+4*s}], v31, s[88:91], s29 offen offset:{s*32}")
        a(f"""
        s_lshl_b32 s28, s40, 12
        s_add_u32 m0, s28, {XW}
        s_lshl_b32 s29, s40, 11
        s_add_u32 s29, s29, {r*4096}
        s_mov_b32 s92, s70
        s_mov_b32 s93, s71
        s_mov_b32 s94, 16384
        s_mov_b32 s95, 0x00020000
        buffer_load_dwordx4 v1, s[92:95], s29 offen lds
        buffer_load_dwordx4 v1, s[92:95], s29 offen offset:1024 lds
        s_add_u32 m0, s28, {XW + 2048}
        s_mov_b32 s92, s68
        s_mov_b32 s93, s69
        buffer_load_dwordx4 v1, s[92:95], s29 offen lds
        buffer_load_dwordx4 v1, s[92:95], s29 offen offset:1024 lds
        """)
    def extra_compute(r):
        a(f"""
        s_sub_u32 s40, s3, 5
        s_lshl_b32 s29, s2, 15
        s_lshl_b32 s28, s40, 12
        s_add_u32 s29, s29, s28
        s_add_u32 s29, s29, {XF_OFF + r*8192}
        s_waitcnt vmcnt(0)
        """)
        for s in range(4):
            a(f"ds_read_b64_tr_b16 v[{176+4*s}:{177+4*s}], v6 offset:{s*512}")
            a(f"ds_read_b64_tr_b16 v[{178+4*s}:{179+4*s}], v6 offset:{s*512+128}")
        for s in range(4): a(f"buffer_store_dwordx4 v[{112+4*s}:{115+4*s}], v1, s[20:23], s29 offen offset:{s*1024}")
        a("s_waitcnt lgkmcnt(0)")
        for s in range(4):
            xf = 112 + 4 * s; wf = 176 + 4 * s
            first = (r == 0 and s == 0)
            a(f"{MFMA} v[128:143], v[{wf}:{wf+3}], v[{xf}:{xf+3}], {'0' if first else 'v[128:143]'}")
            a(f"{MFMA} v[144:159], v[{xf}:{xf+3}], v[{wf}:{wf+3}], {'0' if first else 'v[144:159]'}")
            for i in range(4): a(f"v_dot2_f32_bf16 v7, v{xf+i}, v{160+4*s+i}, v7")
    def extra_part(k):
        l = f"k1_x{k}"
        if k == 10:
            a(f"""
            v_and_b32 v30, 31, v0
            v_lshrrev_b32 v31, 5, v0
            v_lshlrev_b32 v30, 10, v30
            v_lshlrev_b32 v31, 4, v31
            v_add_u32 v30, v31, v30
            v_lshrrev_b32 v5, 4, v0
            v_and_b32 v4, 15, v0
            v_and_b32 v6, 1, v5
            v_lshlrev_b32 v6, 11, v6
            v_lshrrev_b32 v2, 1, v5
            v_lshlrev_b32 v2, 3, v2
            v_lshrrev_b32 v3, 2, v4
            v_add_u32 v2, v2, v3
            v_lshl_add_u32 v6, v2, 5, v6
            v_and_b32 v3, 3, v4
            v_lshl_add_u32 v6, v3, 3, v6
            s_sub_u32 s40, s3, 5
            s_lshl_b32 s28, s40, 12
            s_add_u32 s28, s28, {XW}
            v_add_u32 v6, s28, v6
            v_mov_b32 v7, 0
            """)
            extra_loads(0)
        if 11 <= k <= 14:
            extra_compute(k - 11)
            if k < 14:
                a("s_nop 3")
                extra_loads(k - 10)
        if k == 14:
            a(f"""
            s_cmp_lg_u32 s3, 6
            s_cbranch_scc1 {l}
            v_add_u32 v2, {XP}, v1
            v_lshlrev_b32 v3, 2, v0
            v_add_u32 v3, {XP + 6144}, v3
            s_nop 15
            """)
            for b in range(6): a(f"ds_write_b128 v2, v[{136+4*b}:{139+4*b}] offset:{b*1024}")
            a("ds_write_b32 v3, v7")
            a("s_waitcnt lgkmcnt(0)")
        if k == 15:
            a(f"""
            s_cmp_lg_u32 s3, 5
            s_cbranch_scc1 {l}
            v_add_u32 v2, {XP}, v1
            v_lshlrev_b32 v3, 2, v0
            v_add_u32 v3, {XP + 6144}, v3
            """)
            for b in range(6): a(f"ds_read_b128 v[{160+4*b}:{163+4*b}], v2 offset:{b*1024}")
            a("ds_read_b32 v184, v3")
            a("s_waitcnt lgkmcnt(0)")
            for r in range(24): a(f"v_add_f32 v{136+r}, v{136+r}, v{160+r}")
            a("v_add_f32 v7, v7, v184")
            pack8(a, 160, 136); pack8(a, 164, 144); pack8(a, 168, 152)
            a(f"""
            s_lshl_b32 s28, s2, 10
            s_add_u32 s28, s28, {KA_OFF}
            buffer_store_dwordx4 v[160:163], v1, s[20:23], s28 offen
            v_and_b32 v2, 31, v0
            v_mov_b32 v3, 0x3f803f80
            v_cmp_eq_u32 vcc, 16, v2
            s_nop 1
            v_cndmask_b32 v3, 0, v3, vcc
            v_cmp_gt_u32 vcc, 16, v2
            s_nop 1
            """)
            for i in range(8): a(f"v_cndmask_b32 v{164+i}, v3, v{164+i}, vcc")
            a(f"""
            s_lshl_b32 s28, s2, 11
            s_add_u32 s28, s28, {VA_OFF}
            buffer_store_dwordx4 v[164:167], v1, s[20:23], s28 offen
            buffer_store_dwordx4 v[168:171], v1, s[20:23], s28 offen offset:1024
            v_mov_b32 v2, v7
            s_nop 1
            v_permlane32_swap_b32 v2, v7
            s_nop 1
            v_add_f32 v7, v7, v2
            v_cvt_pk_bf16_f32 v7, v7, v7
            v_lshlrev_b32 v7, 16, v7
            v_mul_f32 v7, {f32hex(-LOG2E)}, v7
            v_exp_f32 v7, v7
            s_nop 0
            v_add_f32 v7, 1.0, v7
            v_rcp_f32 v7, v7
            s_nop 0
            v_cvt_pk_bf16_f32 v7, v7, v7
            v_lshlrev_b32 v172, 16, v7
            v_sub_f32 v173, 1.0, v172
            v_cvt_pk_bf16_f32 v173, v173, v173
            v_lshlrev_b32 v173, 16, v173
            v_lshlrev_b32 v3, 3, v0
            s_lshl_b32 s28, s2, 8
            s_add_u32 s28, s28, {G_OFF}
            v_cmp_gt_u32 vcc, 32, v0
            s_and_saveexec_b64 s[62:63], vcc
            buffer_store_dwordx2 v[172:173], v3, s[20:23], s28 offen
            s_mov_b64 exec, s[62:63]
            """)
        a.label(l)
    epiK = epi_ops(0); epiV = epi_ops(1)
    SIG = 20
    for k in range(NK):
        ps = k >> 3
        for s in range(4):
            u = 4 * k + s
            extra = []
            if s == 2 and k + 1 < NK:
                if k == SIG - 1: vm.q = []; a("s_waitcnt vmcnt(0) lgkmcnt(0)")
                elif ('d', k + 1) not in vm.q: a("s_waitcnt lgkmcnt(0)")
                elif k == 22:
                    a("s_cmp_eq_u32 s3, 7")
                    a("s_cbranch_scc1 k1_w22")
                    a(f"s_waitcnt vmcnt({vm.need({('d', k + 1)})})")
                    a.label("k1_w22")
                    a("s_waitcnt lgkmcnt(0)")
                else: a(f"s_waitcnt vmcnt({vm.need({('d', k + 1)})}) lgkmcnt(0)")
                a("s_barrier")
                if k in (7, 15): st7(a, 5 + (k >> 3)); vm.issue("st") if STAMP else None
                if k >= 17: st7(a, 7 + k - 17); vm.issue("st") if STAMP else None
                if k == SIG - 1:
                    a(f"""
                    s_cmp_lg_u32 s3, 0
                    s_cbranch_scc1 k1_nosig
                    s_lshl_b32 s28, s6, 2
                    s_lshl_b32 s29, 1, s7
                    v_mov_b32 v2, s29
                    v_mov_b32 v3, 0
                    s_mov_b64 exec, 1
                    buffer_atomic_or v2, v3, s[80:83], s28 offen sc1
                    s_mov_b64 exec, -1
                    k1_nosig:
                    """)
                if k + 3 < NK: extra = [(o, ("d", k + 3)) for o in dma_ops(k + 3)]
                if k >= 21:
                    a("s_cmp_lg_u32 s3, 7")
                    a(f"s_cbranch_scc1 k1_d{k}")
                    if k == 21:
                        a("""
                        s_mov_b32 s46, 0
                        s_mov_b32 s60, 0
                        s_mov_b32 s61, 0
                        """)
                        task_setup()
                        a("""
                        s_lshl_b32 s86, s50, 13
                        s_add_u32 s34, s86, 16384
                        s_mov_b32 s52, 0
                        s_mov_b32 s53, 0
                        """)
                        need_rb(); c_dma(); c_dma(); c_dma()
                    if k == 22:
                        c_dma(); c_dma()
                    a.label(f"k1_d{k}")
            else:
                a(f"s_waitcnt lgkmcnt({6 if u + 1 < 4*NK else 0})")
            if s == 0:
                if k == 0: extra = [(o, "t") for o in touch_ops(0) if not (o.startswith("buffer") and "v116" not in o and (os.environ.get("NOT0") or not os.environ.get("NOROT")))]
                if k == 4: extra = [(o, "t") for o in touch_ops(1)]
                if k == 11: extra = [(o, "t") for o in touch_ops(2)]
            if s < 2 and 8 <= k < 12:
                i = (k - 8) * 2 + s; extra = extra + [(o, "s") for o in epiK[5*i:5*i+5]]
            if s == 3: extra = carry
            if s == 2: carry = extra[len(extra)//2:]; extra = extra[:len(extra)//2]
            if 16 <= k < 18:
                i = (k - 16) * 4 + s; extra = extra + [(o, "s") for o in epiV[5*i:5*i+5]]
            rq = read_ops(u + 2) if u + 2 < 4 * NK else []
            f = FB + 16 * (u % 3)
            i = 0
            for m in range(2):
                for kb in range(2):
                    acc = ACC[ps] + 16 * (m * 2 + kb)
                    c = f"v[{f+4*kb}:{f+4*kb+3}]"; w = f"v[{f+8+4*m}:{f+11+4*m}]"
                    ci = "0" if (u & 31) == 0 else f"v[{acc}:{acc+15}]"
                    if ps == 1: a(f"{MFMA} v[{acc}:{acc+15}], {c}, {w}, {ci}")
                    else:       a(f"{MFMA} v[{acc}:{acc+15}], {w}, {c}, {ci}")
                    for o in rq[2*i: 2*i+2]: a(o)
                    ne = -(-len(extra) // (4 - i))
                    for o, t in extra[:ne]: emit(o, t)
                    extra = extra[ne:]
                    i += 1
    a(f"""
    s_barrier
    s_mov_b32 s28, {f32hex(LOG2E * 128 ** -0.5)}
    s_lshr_b32 s29, s3, 1
    s_lshl_b32 s29, s29, 14
    s_and_b32 s40, s3, 1
    s_lshl_b32 s40, s40, 12
    s_add_u32 s29, s29, s40
    s_add_u32 s29, s29, {QX}
    v_add_u32 v2, s29, v1
    s_nop 7
    """)
    for r in range(64): a(f"v_mul_f32 v{128+r}, s28, v{128+r}")
    n = 0
    for m in range(2):
        for kb in range(2):
            for g in range(2):
                tmp = 32 + 4 * n; n += 1
                pack8(a, tmp, 128 + 16 * (m * 2 + kb) + 8 * g)
                a(f"ds_write_b128 v2, v[{tmp}:{tmp+3}] offset:{kb*8192 + (2*m+g)*1024}")
    a("""
    s_waitcnt lgkmcnt(0)
    s_barrier
    s_cmp_eq_u32 s3, 7
    s_cbranch_scc1 l_task
    s_cmp_ge_u32 s3, 4
    s_cbranch_scc1 k1_side
    """)
    attn_compute(a, task_setup)
    a.label("k1_side")
    a("""
    s_cmp_eq_u32 s3, 4
    s_cbranch_scc1 k1_end
    s_cmp_ge_u32 s2, 64
    s_cbranch_scc1 k1_end
    s_waitcnt vmcnt(0)
    """)
    for k in range(10, 16):
        extra_part(k)
        if k < 15: a("s_barrier")
    a("s_endpgm")
    attn_loader(a, task_setup, c_dma, need_rb)
    a.label("k1_end")
    a("s_endpgm")
    return name, f"grid=(256,1,1) block=(512,1,1) lds={RING + 16384}", kernel_desc(name, 256)

def read_flags(a, tmp):
    a(f"""
    v_mov_b32 v{tmp}, {FLAG}
    ds_read_b128 v[{tmp+2}:{tmp+5}], v{tmp}
    s_waitcnt lgkmcnt(0)
    v_or3_b32 v{tmp}, v{tmp+2}, v{tmp+3}, v{tmp+4}
    v_or_b32 v{tmp}, v{tmp}, v{tmp+5}
    s_nop 0
    v_readfirstlane_b32 s28, v{tmp}
    """)

def attn_loader(a, task_setup, c_dma, need_rb):
    a.label("l_task")
    a("s_mov_b32 s58, 0")
    a.label("l_loop")
    a("s_waitcnt vmcnt(0)")
    a("s_barrier")
    a("s_mov_b32 s59, 0")
    need_rb()
    a.label("l_in")
    c_dma()
    a("""
    s_add_u32 s59, s59, 1
    s_cmp_lt_u32 s59, 4
    s_cbranch_scc1 l_in
    s_add_u32 s58, s58, 4
    s_add_u32 s28, s50, 2
    s_cmp_lt_u32 s58, s28
    s_cbranch_scc1 l_loop
    s_waitcnt vmcnt(0)
    s_barrier
    """)
    read_flags(a, 32)
    a("""
    s_cmp_eq_u32 s28, 0
    s_cbranch_scc1 l_ok
    s_cmp_lg_u32 s60, 0
    s_cbranch_scc1 l_ok
    s_mov_b32 s60, 1
    s_mov_b32 s58, 0
    """)
    a.label("l_max")
    a("s_lshl_b32 s52, s58, 13")
    for g in range(2):
        a(f"s_mov_b32 m0, {g*4096}")
        a(f"s_add_u32 s28, s52, {g*4096}")
        for i in range(4): a(f"buffer_load_dwordx4 v1, s[84:87], s28 offen offset:{i*1024} sc1 lds")
    a("""
    s_waitcnt vmcnt(0)
    s_barrier
    s_barrier
    s_add_u32 s58, s58, 1
    s_cmp_lt_u32 s58, s50
    s_cbranch_scc1 l_max
    s_branch l_pro
    """)
    a.label("l_ok")
    a("""
    s_mov_b32 s60, 0
    s_add_u32 s46, s46, 1
    s_cmp_ge_u32 s46, 2
    s_cbranch_scc1 k1_end
    """)
    task_setup()
    a("s_lshl_b32 s86, s50, 13")
    a("s_add_u32 s34, s86, 16384")
    a.label("l_pro")
    a("""
    s_mov_b32 s52, 0
    s_mov_b32 s53, 0
    s_mov_b32 s59, 0
    """)
    a.label("l_pro1")
    c_dma()
    a("""
    s_add_u32 s59, s59, 1
    s_cmp_lt_u32 s59, 5
    s_cbranch_scc1 l_pro1
    s_branch l_task
    """)

def attn_compute(a, task_setup):
    a(f"""
    s_lshl_b32 s28, s3, 13
    s_add_u32 s28, s28, {QX}
    v_add_u32 v2, s28, v1
    v_and_b32 v3, 31, v0
    v_lshrrev_b32 v4, 5, v0
    v_lshlrev_b32 v18, 2, v4
    v_sub_u32 v18, v3, v18
    s_mov_b32 s46, 0
    s_mov_b32 s60, 0
    """)
    for s in range(8): a(f"ds_read_b128 v[{QF+4*s}:{QF+4*s+3}], v2 offset:{s*1024}")
    for s in range(8): a(f"ds_read_b128 v[{Q2+4*s}:{Q2+4*s+3}], v2 offset:{32768 + s*1024}")
    task_setup()
    a("s_waitcnt lgkmcnt(0)")
    st7(a, 1, tv=28)
    a.label("b_task")
    a("""
    s_lshl_b32 s28, s47, 7
    s_lshl_b32 s29, s3, 5
    s_add_u32 s48, s28, s29
    s_sub_u32 s49, s50, 3
    s_add_u32 s49, s49, s3
    """)
    for r in range(64): a(f"v_mov_b32 v{O_+r}, 0")
    for r in range(4): a(f"v_mov_b32 v{24+r}, 0")
    a(f"""
    s_mov_b32 s56, {SLOT}
    s_mov_b32 s58, 0
    v_mov_b32 v20, v1
    """)
    def apply_mask(base):
        a("v_mov_b32 v19, 0xff800000")
        for r in range(16):
            a(f"v_cmp_gt_i32 vcc, {8*(r>>2)+(r&3)}, v18")
            a("s_nop 1")
            a(f"v_cndmask_b32 v{base+r}, v{base+r}, v19, vcc")
    def sm_ops(par):
        S = S_[par]; P = P_[par]
        ops = []
        for r in range(16):
            ops.append(f"v_exp_f32 v{S+r}, v{S+r}")
            if r >= 1: ops.append(f"v_add_f32 v{24+((r-1)&3)}, v{24+((r-1)&3)}, v{S+r-1}")
            if r & 1: ops.append(f"v_cvt_pk_bf16_f32 v{P+(r>>1)}, v{S+r-1}, v{S+r}")
        ops.append(f"v_add_f32 v27, v27, v{S+15}")
        return ops
    def cost(o): return 8 if o.startswith("v_exp") else 4
    def iteration(par, doQK, doSM, doPV, prefetched, extra=(), cinit=None, last=()):
        M = (list(range(8)) if doQK else []) + (list(range(8, 16)) if doPV else [])
        seq = M + (list(range(16, 20)) if doQK else [])
        book = [f"v_add_u32 v{20+(par^1)}, s56, v1",
                f"s_add_u32 s56, s56, {SLOT}",
                f"s_cmp_ge_u32 s56, {RING}",
                "s_cselect_b32 s56, 0, s56"] + list(extra)
        fill = sm_ops(par ^ 1) if doSM else []
        nM = len(M)
        if nM == 0:
            for o in book + fill + list(last): a(o)
            return
        def rdi(idx):
            j = seq[idx]; f = FR + 4 * (idx & 7)
            if j < 16: return f"ds_read_b128 v[{f}:{f+3}], v{20+par} offset:{j*1024}"
            return f"ds_read_b128 v[{f}:{f+3}], v{20+(par^1)} offset:{(j-16)*1024}"
        def mfi(idx):
            n = seq[idx]; f = FR + 4 * (idx & 7)
            if n < 8:
                S = S_[par]
                c = (cinit or f"v[{NEGM}:{NEGM+15}]") if n == 0 else f"v[{S}:{S+15}]"
                return f"{MFMA} v[{S}:{S+15}], v[{f}:{f+3}], v[{QF+4*n}:{QF+4*n+3}], {c}"
            k = n - 8; ks = k >> 2; b = k & 3
            P = P_[par]
            return f"{MFMA} v[{O_+16*b}:{O_+16*b+15}], v[{f}:{f+3}], v[{P+4*ks}:{P+4*ks+3}], v[{O_+16*b}:{O_+16*b+15}]"
        if not (prefetched and doQK):
            for idx in range(4): a(rdi(idx))
        nv = nM - nM // 4
        tot = sum(cost(o) for o in fill)
        done = 0; gi = 0
        for p in range(nM):
            if p % 4 == 0: a("s_waitcnt lgkmcnt(0)")
            a(mfi(p))
            if p == nM - 1:
                for o in last: a(o)
            if p % 4 == 0:
                if p == 0:
                    for o in book: a(o)
                for idx in range(p + 4, min(p + 8, len(seq))): a(rdi(idx))
            else:
                gi += 1
                tgt = tot * gi / nv
                while fill and (done + cost(fill[0]) / 2 <= tgt or gi == nv):
                    done += cost(fill[0]); a(fill.pop(0))
        assert not fill
    a.label("b_loop")
    a("""
    s_and_b32 s28, s58, 3
    s_cmp_lg_u32 s28, 0
    s_cbranch_scc1 b_slow2
    s_cmp_lt_u32 s58, 4
    s_cbranch_scc1 b_slow
    s_add_u32 s28, s58, 8
    s_cmp_gt_u32 s28, s50
    s_cbranch_scc1 b_slow
    s_sub_u32 s59, s50, 4
    """)
    a.label("b_fast")
    a("s_barrier")
    iteration(0, True, True, True, True)
    iteration(1, True, True, True, True)
    iteration(0, True, True, True, True)
    iteration(1, True, True, True, True, ["s_add_u32 s58, s58, 4"], last=["s_cmp_lt_u32 s58, s59"])
    a("s_cbranch_scc1 b_fast")
    a.label("b_slow")
    a("s_barrier")
    a.label("b_slow2")
    for par in (0, 1):
        lnext = a.newlabel("b_next"); lns = a.newlabel("b_nonsteady"); ld = a.newlabel("b_nodiag")
        a("s_add_u32 s28, s58, 1")
        a("s_cmp_lg_u32 s28, s49")
        a(f"s_cbranch_scc1 {ld}")
        apply_mask(NEGM)
        a.label(ld)
        a("s_cmp_lt_u32 s58, 2")
        a(f"s_cbranch_scc1 {lns}")
        a("s_cmp_ge_u32 s58, s49")
        a(f"s_cbranch_scc1 {lns}")
        iteration(par, True, True, True, True)
        a(f"s_branch {lnext}")
        a.label(lns)
        l_g = a.newlabel("b_ge"); l_pv = a.newlabel("b_pv"); l_none = a.newlabel("b_none"); l_sm = a.newlabel("b_sm")
        a("s_cmp_ge_u32 s58, s49")
        a(f"s_cbranch_scc1 {l_g}")
        if par == 0:
            lr = a.newlabel("b_g0raw")
            a("s_cmp_eq_u32 s60, 0")
            a(f"s_cbranch_scc1 {lr}")
            iteration(0, True, False, False, False)
            a(f"s_branch {lnext}")
            a.label(lr)
            iteration(0, True, False, False, False, cinit="0")
            a("s_nop 15")
            lm = a.newlabel("b_nomask0")
            a("s_cmp_lg_u32 s49, 1")
            a(f"s_cbranch_scc1 {lm}")
            apply_mask(S_[0])
            a.label(lm)
            S = S_[0]
            a(f"v_max3_f32 v22, v{S}, v{S+1}, v{S+2}")
            for r in range(3, 15, 2): a(f"v_max3_f32 v22, v22, v{S+r}, v{S+r+1}")
            a(f"v_max_f32 v22, v22, v{S+15}")
            a("""
            v_mov_b32 v19, v22
            s_nop 1
            v_permlane32_swap_b32 v19, v22
            s_nop 1
            v_max_f32 v22, v22, v19
            """)
            for r in range(16): a(f"v_sub_f32 v{S+r}, v{S+r}, v22")
            for r in range(16): a(f"v_sub_f32 v{NEGM+r}, 0, v22")
        else:
            iteration(1, True, True, False, True)
        a(f"s_branch {lnext}")
        a.label(l_g)
        a("s_cmp_eq_u32 s58, s49")
        a(f"s_cbranch_scc0 {l_pv}")
        a("s_cmp_lt_u32 s58, 2")
        a(f"s_cbranch_scc1 {l_sm}")
        iteration(par, False, True, True, False)
        a(f"s_branch {lnext}")
        a.label(l_sm)
        iteration(par, False, True, False, False)
        a(f"s_branch {lnext}")
        a.label(l_pv)
        a("s_add_u32 s28, s49, 1")
        a("s_cmp_eq_u32 s58, s28")
        a(f"s_cbranch_scc0 {l_none}")
        a("s_nop 1")
        iteration(par, False, False, True, False)
        a(f"s_branch {lnext}")
        a.label(l_none)
        iteration(par, False, False, False, False)
        a.label(lnext)
        a("s_add_u32 s58, s58, 1")
    a("s_add_u32 s28, s50, 2")
    a("s_cmp_lt_u32 s58, s28")
    a("s_cbranch_scc1 b_loop")
    if STAMP:
        a("s_cmp_lg_u32 s46, 0"); a("s_cbranch_scc1 b_st2"); st7(a, 2, tv=28); a.label("b_st2")
    a(f"""
    s_nop 7
    v_add_f32 v24, v24, v25
    v_add_f32 v26, v26, v27
    v_add_f32 v24, v24, v26
    v_mov_b32 v19, v24
    s_nop 1
    v_permlane32_swap_b32 v19, v24
    s_nop 1
    v_add_f32 v24, v24, v19
    v_rcp_f32 v26, v24
    v_mov_b32 v19, 0
    """)
    for r in range(64): a(f"v_fma_f32 v19, v{O_+r}, 0, v19")
    a(f"""
    s_mov_b32 s28, {f32hex(2.0**THR)}
    v_cmp_nle_f32 vcc, v24, s28
    v_cmp_u_f32 s[62:63], v19, v19
    s_or_b64 s[62:63], s[62:63], vcc
    s_cmp_lg_u64 s[62:63], 0
    s_cselect_b32 s28, 1, 0
    v_mov_b32 v19, s28
    s_lshl_b32 s29, s3, 2
    s_lshl_b32 s40, s46, 4
    s_add_u32 s29, s29, {FLAG}
    v_mov_b32 v22, s29
    ds_write_b32 v22, v19
    s_waitcnt lgkmcnt(0)
    s_barrier
    """)
    read_flags(a, 32)
    a("""
    s_cmp_eq_u32 s28, 0
    s_cbranch_scc1 b_ok
    s_cmp_lg_u32 s60, 0
    s_cbranch_scc1 b_ok
    s_mov_b32 s60, 1
    s_mov_b32 s58, 0
    v_mov_b32 v22, 0xff800000
    """)
    a.label("b_maxloop")
    a("""
    s_barrier
    s_cmp_ge_u32 s58, s49
    s_cbranch_scc1 b_maxskip
    """)
    for n in range(8): a(f"ds_read_b128 v[{FR+4*n}:{FR+4*n+3}], v1 offset:{n*1024}")
    a("s_waitcnt lgkmcnt(0)")
    for n in range(8):
        S = S_[0]
        c = "0" if n == 0 else f"v[{S}:{S+15}]"
        a(f"{MFMA} v[{S}:{S+15}], v[{FR+4*n}:{FR+4*n+3}], v[{QF+4*n}:{QF+4*n+3}], {c}")
    a("""
    s_nop 15
    s_add_u32 s28, s58, 1
    s_cmp_lg_u32 s28, s49
    s_cbranch_scc1 b_maxnomask
    """)
    apply_mask(S_[0])
    a.label("b_maxnomask")
    for r in range(0, 16, 2): a(f"v_max3_f32 v22, v22, v{S_[0]+r}, v{S_[0]+r+1}")
    a.label("b_maxskip")
    a("""
    s_barrier
    s_add_u32 s58, s58, 1
    s_cmp_lt_u32 s58, s50
    s_cbranch_scc1 b_maxloop
    v_mov_b32 v19, v22
    s_nop 1
    v_permlane32_swap_b32 v19, v22
    s_nop 1
    v_max_f32 v22, v22, v19
    """)
    for r in range(16): a(f"v_sub_f32 v{NEGM+r}, 0, v22")
    a("s_branch b_task")
    a.label("b_ok")
    a("""
    s_mov_b32 s60, 0
    s_add_u32 s46, s46, 1
    """)
    task_setup()
    for r in range(64): a(f"v_mul_f32 v{O_+r}, v26, v{O_+r}")
    a(f"""
    s_lshr_b32 s28, s48, 5
    s_mul_i32 s28, s28, {ZF_RG}
    s_lshl_b32 s29, s6, 13
    s_add_u32 s28, s28, s29
    s_add_u32 s28, s28, {ZF_OFF}
    s_add_u32 s29, s28, 4096
    """)
    for kk in range(8):
        t = FR + 4 * kk
        pack8(a, t, O_ + 8 * kk)
        a(f"buffer_store_dwordx4 v[{t}:{t+3}], v1, s[20:23], s{28 + (kk >> 2)} offen offset:{(kk & 3) * 1024}")
    for r in range(32): a(f"v_mov_b32 v{QF+r}, v{Q2+r}")
    a("""
    s_cmp_lt_u32 s46, 2
    s_cbranch_scc1 b_task
    """)
    st7(a, 3, tv=28); st7(a, 14, real=True, tv=28)
    a("s_endpgm")

if __name__ == "__main__":
    os.environ["NOSPLIT"] = "1"; os.environ["GSCALE"] = "1"
    if not os.environ.get("ROT"): os.environ["NOROT"] = "1"
    build([gen_k12, gen4.gen_k3], sys.argv[1] if len(sys.argv) > 1 else "out.s")
```

```python
from gen4 import *
import gen4
from gen2 import _stamp, VM
def st7(a, idx, tv=2, **kw):
    if os.environ.get("STK", "2") == "2": _stamp(a, idx, tv=tv, **kw)

STG = 49152
SLOT = 16384; NSL = 9; RING = NSL * SLOT
MISC = RING; FLAG = MISC + 8192; QX = 5 * SLOT
O_ = 192; QF = 160; S_ = (128, 144); NEGM = 112; P_ = (96, 104); Q2 = 64; FR = 32
NK = 24

def gen_k12(a):
    name = "mega_kernel"
    kernel_begin(a, name)
    a(f"""
    s_cmp_ge_u32 s2, 256
    s_cbranch_scc1 k1_end
    s_load_dwordx2 s[4:5], s[0:1], {KA_CKV}
    s_load_dwordx4 s[24:27], s[0:1], {KA_WUK}
    s_load_dwordx4 s[8:11], s[0:1], {KA_DBG}
    s_load_dwordx2 s[64:65], s[0:1], {KA_X}
    s_load_dwordx4 s[68:71], s[0:1], {KA_WK}
    s_load_dwordx2 s[72:73], s[0:1], {KA_GATE}
    s_load_dwordx2 s[54:55], s[0:1], {KA_BWQ}
    s_load_dwordx2 s[56:57], s[0:1], {KA_BWO}
    s_load_dwordx2 s[58:59], s[0:1], {KA_WQ}
    s_load_dwordx2 s[60:61], s[0:1], {KA_WO}
    s_load_dwordx2 s[74:75], s[0:1], {KA_OUT}
    v_lshrrev_b32 v2, 6, v0
    v_and_b32 v0, 63, v0
    v_lshlrev_b32 v1, 4, v0
    v_readfirstlane_b32 s3, v2
    s_and_b32 s6, s2, 31
    s_lshr_b32 s7, s2, 5
    s_waitcnt lgkmcnt(0)
    s_mov_b32 s30, s10
    s_mov_b32 s31, s11
    """)
    srd(a, 20, 30, WS_BYTES)
    srd(a, 80, 8, 256)
    srd(a, 76, 64, 2*MB); srd(a, 88, 72, 1024)
    a(f"""
    s_lshl_b32 s28, s6, 19
    s_add_u32 s84, s30, s28
    s_addc_u32 s85, s31, 0
    s_mov_b32 s86, 524288
    s_mov_b32 s87, 0x00020000
    s_add_u32 s32, s84, {VF_OFF - 16384}
    s_addc_u32 s33, s85, 0
    s_mov_b32 s34, 524288
    s_mov_b32 s35, 0x00020000
    """)
    st7(a, 0); st7(a, 15, real=True)
    srd(a, 36, 4, 2*MB)
    srd(a, 12, 24, 4*MB)
    a(f"""
    v_mov_b32 v30, 0
    v_mov_b32 v31, 0
    v_lshrrev_b32 v3, 3, v0
    v_lshrrev_b32 v4, 4, v0
    v_and_b32 v5, 7, v0
    v_xor_b32 v6, v5, v4
    v_xor_b32 v7, 4, v6
    v_lshlrev_b32 v3, 10, v3
    v_lshl_add_u32 v6, v6, 4, v3
    v_lshl_add_u32 v7, v7, 4, v3
    s_lshl_b32 s28, s7, 8
    s_lshl_b32 s29, s3, 5
    s_add_u32 s28, s28, s29
    s_lshl_b32 s28, s28, 10
    v_add_u32 v8, s28, v6
    v_add_u32 v9, s28, v7
    s_sub_u32 s28, 15, s7
    s_cmp_lt_u32 s3, 4
    s_cselect_b32 s28, s28, s7
    s_lshl_b32 s28, s28, 7
    s_and_b32 s29, s3, 3
    s_lshl_b32 s29, s29, 5
    s_add_u32 s28, s28, s29
    s_lshl_b32 s44, s28, 10
    v_add_u32 v11, s44, v6
    s_sub_u32 s44, s44, 0
    v_add_u32 v2, s44, v7
    v_and_b32 v5, 15, v0
    v_lshlrev_b32 v6, 2, v4
    v_xor_b32 v5, v5, v6
    s_lshl_b32 s28, s3, 3
    v_add_u32 v6, s28, v4
    v_lshlrev_b32 v6, 13, v6
    v_lshl_add_u32 v6, v5, 4, v6
    s_lshl_b32 s28, s6, 8
    v_add_u32 v10, s28, v6
    v_mov_b32 v112, v11
    v_mov_b32 v113, v2
    s_lshl_b32 s45, s3, 12
    s_lshl_b32 s46, s3, 11
    s_add_u32 s46, s46, 32768
    """)
    a("""
    s_lshr_b32 s42, s6, 3
    s_lshl_b32 s42, s42, 1
    s_add_u32 s42, s42, s7
    s_and_b32 s42, s42, 7
    s_lshl_b32 s42, s42, 7
    s_lshl_b32 s43, s42, 12
    """ if not os.environ.get("NOROT") else """
    s_mov_b32 s42, 0
    s_mov_b32 s43, 0
    """)
    vm = VM()
    def dma_ops(k):
        kt = k & 7; st = k % 3
        ops = []
        if k == 8: ops += ["s_mov_b32 s12, s26", "s_mov_b32 s13, s27"]
        if k == 16: ops += ["s_mov_b32 s12, s54", "s_mov_b32 s13, s55", "s_mov_b32 s36, s64", "s_mov_b32 s37, s65", "v_mov_b32 v8, v112", "v_mov_b32 v9, v113"]
        ops.append(f"s_add_u32 m0, s45, {st*STG}")
        for jj in range(4):
            ops.append(f"s_add_u32 s40, s42, {jj*7168}")
            ops.append(f"buffer_load_dwordx4 v{8 + (jj & 1)}, s[36:39], s40 offen offset:{jj*1024} lds")
        ops.append(f"s_add_u32 m0, s46, {st*STG}")
        ops.append(f"s_add_u32 s40, s43, {32768 - 1024}")
        ops.append(f"buffer_load_dwordx4 v10, s[12:15], s43 offen lds")
        ops.append(f"buffer_load_dwordx4 v10, s[12:15], s40 offen offset:1024 lds")
        ops.append("s_add_u32 s42, s42, 128")
        ops.append("s_and_b32 s42, s42, 1023")
        ops.append("s_lshl_b32 s43, s42, 12")
        return ops
    def emit(o, tag):
        a(o)
        if o.startswith("buffer_"): vm.issue(tag)
    for k in range(3):
        for o in dma_ops(k): emit(o, ("d", k))
    def touch_ops(which):
        if which == 0:
            return ["s_lshr_b32 s28, s2, 3", "s_lshl_b32 s28, s28, 3", "s_add_u32 s28, s28, s3", "s_lshl_b32 s28, s28, 13",
                    "v_lshlrev_b32 v2, 7, v0",
                    "buffer_load_dword v114, v2, s[36:39], s28 offen",
                    "v_bfe_u32 v3, v0, 1, 3", "v_lshlrev_b32 v3, 13, v3", "v_and_b32 v4, 1, v0", "v_lshl_add_u32 v3, v4, 7, v3",
                    "s_lshl_b32 s29, s7, 19", "s_lshl_b32 s41, s3, 16", "s_add_u32 s29, s29, s41", "s_lshl_b32 s41, s6, 8", "s_add_u32 s29, s29, s41",
                    "buffer_load_dword v115, v3, s[12:15], s29 offen",
                    "s_mov_b32 s92, s26", "s_mov_b32 s93, s27", f"s_mov_b32 s94, {4*MB}", "s_mov_b32 s95, 0x00020000",
                    "buffer_load_dword v116, v3, s[92:95], s29 offen"]
        if which == 1:
            return ["s_lshr_b32 s28, s2, 3", "s_lshl_b32 s28, s28, 3", "s_add_u32 s28, s28, s3", "s_lshl_b32 s28, s28, 13",
                    "buffer_load_dword v114, v2, s[76:79], s28 offen",
                    "s_mov_b32 s92, s54", "s_mov_b32 s93, s55",
                    "buffer_load_dword v115, v3, s[92:95], s29 offen"]
        if which == 2:
            return ["s_lshl_b32 s28, s2, 3", "s_add_u32 s28, s28, s3", "s_lshl_b32 s28, s28, 11", "v_and_b32 v4, 15, v0", "v_lshlrev_b32 v4, 7, v4",
                    "s_mov_b32 s92, s56", "s_mov_b32 s93, s57",
                    "buffer_load_dword v114, v4, s[92:95], s28 offen",
                    "s_mov_b32 s92, s58", "s_mov_b32 s93, s59", f"s_mov_b32 s94, {512*1024}",
                    "buffer_load_dword v115, v4, s[92:95], s28 offen",
                    "s_mov_b32 s92, s60", "s_mov_b32 s93, s61",
                    "buffer_load_dword v116, v4, s[92:95], s28 offen"]
    a("""
    v_and_b32 v3, 31, v0
    s_lshr_b32 s28, s3, 1
    s_lshl_b32 s28, s28, 6
    v_add_u32 v3, s28, v3
    v_lshlrev_b32 v3, 7, v3
    v_lshrrev_b32 v5, 5, v0
    v_bfe_u32 v6, v0, 1, 3
    v_xor_b32 v5, v5, v6
    v_lshl_add_u32 v12, v5, 4, v3
    v_xor_b32 v13, 32, v12
    v_xor_b32 v14, 64, v12
    v_xor_b32 v15, 96, v12
    """)
    for st in (1, 2):
        for s in range(4): a(f"v_add_u32 v{12+4*st+s}, {st*STG}, v{12+s}")
    a("""
    v_lshrrev_b32 v3, 5, v0
    v_bfe_u32 v5, v0, 2, 2
    v_lshl_add_u32 v3, v3, 3, v5
    v_lshlrev_b32 v3, 8, v3
    v_bfe_u32 v6, v0, 4, 1
    v_lshl_add_u32 v3, v6, 5, v3
    v_and_b32 v6, 3, v0
    v_lshl_add_u32 v3, v6, 3, v3
    v_lshl_add_u32 v3, v5, 6, v3
    s_and_b32 s28, s3, 1
    s_lshl_b32 s28, s28, 7
    v_xor_b32 v3, s28, v3
    v_add_u32 v24, 32768, v3
    v_xor_b32 v25, 64, v24
    """)
    for st in (1, 2):
        for m in range(2): a(f"v_add_u32 v{24+2*st+m}, {st*STG}, v{24+m}")
    ACC = (128, 192, 128)
    a(f"""
    s_lshl_b32 s28, s6, 19
    s_lshl_b32 s29, s7, 16
    s_add_u32 s28, s28, s29
    s_lshr_b32 s29, s3, 1
    s_lshl_b32 s29, s29, 14
    s_add_u32 s28, s28, s29
    s_and_b32 s29, s3, 1
    s_lshl_b32 s48, s29, 12
    s_add_u32 s48, s48, s28
    s_add_u32 s48, s48, {KF_OFF}
    s_add_u32 s49, s48, 8192
    s_lshl_b32 s50, s29, 11
    s_add_u32 s50, s50, s28
    s_add_u32 s50, s50, {VF_OFF}
    s_add_u32 s51, s50, 4096
    s_add_u32 s52, s50, 8192
    s_add_u32 s53, s50, 12288
    """)
    FB = 64
    def read_ops(u):
        k = u >> 2; s = u & 3; st = k % 3
        f = FB + 16 * (u % 3)
        ca = 12 + 4 * st + s
        ops = [f"ds_read_b128 v[{f}:{f+3}], v{ca}",
               f"ds_read_b128 v[{f+4}:{f+7}], v{ca} offset:4096"]
        for m in range(2):
            wa = 24 + 2 * st + m
            ops.append(f"ds_read_b64_tr_b16 v[{f+8+4*m}:{f+9+4*m}], v{wa} offset:{s*4096}")
            ops.append(f"ds_read_b64_tr_b16 v[{f+10+4*m}:{f+11+4*m}], v{wa} offset:{s*4096+1024}")
        return ops
    def epi_ops(ps):
        ops = []; n = 0
        for m in range(2):
            for kb in range(2):
                acc = ACC[ps] + 16 * (m * 2 + kb)
                for g in range(2):
                    tmp = 32 + 4 * (n % 8); n += 1
                    for i in range(4):
                        ops.append(f"v_cvt_pk_bf16_f32 v{tmp+i}, v{acc+8*g+2*i}, v{acc+8*g+2*i+1}")
                    if ps == 0: sreg, off = 48 + kb, (2 * m + g) * 1024
                    else:       sreg, off = 50 + 2 * kb + g, m * 1024
                    ops.append(f"buffer_store_dwordx4 v[{tmp}:{tmp+3}], v1, s[20:23], s{sreg} offen offset:{off}" + ("" if os.environ.get("PLAINST") else " sc1"))
        return ops
    a(f"""
    s_waitcnt vmcnt({vm.need({("d", 0)})})
    s_barrier
    """)
    a(f"""
    s_cmp_lg_u32 s2, 0
    s_cbranch_scc1 k1_noinit
    s_cmp_lg_u32 s3, 6
    s_cbranch_scc1 k1_noinit
    v_lshlrev_b32 v2, 8, v0
    v_mov_b32 v3, 0
    s_mov_b32 s28, {CNT_OFF}
    buffer_store_dword v3, v2, s[20:23], s28 offen sc1
    s_waitcnt vmcnt(0)
    v_mov_b32 v2, 1
    s_mov_b32 s28, 248
    s_mov_b64 exec, 1
    buffer_atomic_add v2, v3, s[80:83], s28 offen sc1
    s_mov_b64 exec, -1
    s_waitcnt vmcnt(0)
    k1_noinit:
    """)
    st7(a, 4)
    for o in read_ops(0) + read_ops(1): a(o)
    def c_dma():
        for (sd, lo) in ((84, 0), (32, 8192)):
            for g in range(2):
                a(f"s_add_u32 m0, s53, {lo + g*4096}")
                a(f"s_add_u32 s28, s52, {g*4096}")
                for i in range(4):
                    a(f"buffer_load_dwordx4 v1, s[{sd}:{sd+3}], s28 offen offset:{i*1024} sc1 lds")
        a(f"""
        s_add_u32 s52, s52, 8192
        s_add_u32 s53, s53, {SLOT}
        s_cmp_ge_u32 s53, {RING}
        s_cselect_b32 s53, 0, s53
        """)
    def need_rb():
        l0 = a.newlabel("l_rbok"); l1 = a.newlabel("l_rbpoll"); l2 = a.newlabel("l_rbgot")
        a(f"""
        s_lshr_b32 s28, s52, 13
        s_add_u32 s28, s28, 4
        s_lshr_b32 s28, s28, 3
        s_min_u32 s28, s28, 7
        s_lshl_b32 s29, 2, s28
        s_sub_u32 s29, s29, 1
        s_and_b32 s28, s61, s29
        s_cmp_eq_u32 s28, s29
        s_cbranch_scc1 {l0}
        s_lshr_b32 s40, s6, 2
        s_lshl_b32 s40, s40, 2
        v_mov_b32 v3, 0
        s_mov_b32 s41, 0
        {l1}:
        buffer_load_dword v2, v3, s[80:83], s40 offen sc1
        s_and_b32 s28, s6, 3
        s_lshl_b32 s28, s28, 3
        s_waitcnt vmcnt(0)
        v_readfirstlane_b32 s61, v2
        s_lshr_b32 s61, s61, s28
        s_and_b32 s28, s61, s29
        s_cmp_eq_u32 s28, s29
        s_cbranch_scc1 {l2}
        s_sleep 4
        s_add_u32 s41, s41, 1
        s_cmp_lt_u32 s41, 0x100000
        s_cbranch_scc1 {l1}
        {l2}:
        {l0}:
        """)
    def task_setup():
        a("""
        s_sub_u32 s47, 15, s7
        s_cmp_eq_u32 s46, 0
        s_cselect_b32 s47, s47, s7
        s_lshl_b32 s50, s47, 2
        s_add_u32 s50, s50, 4
        """)
    XW = MISC
    XP = MISC + 8192 + 256
    def extra_loads(r):
        a(f"""
        s_sub_u32 s40, s3, 5
        s_lshl_b32 s28, s2, 15
        s_lshl_b32 s29, s40, 7
        s_add_u32 s29, s29, {r*256}
        s_add_u32 s28, s28, s29
        """)
        for s in range(4): a(f"buffer_load_dwordx4 v[{112+4*s}:{115+4*s}], v30, s[76:79], s28 offen offset:{s*32}")
        for s in range(4): a(f"buffer_load_dwordx4 v[{160+4*s}:{163+4*s}], v31, s[88:91], s29 offen offset:{s*32}")
        a(f"""
        s_lshl_b32 s28, s40, 12
        s_add_u32 m0, s28, {XW}
        s_lshl_b32 s29, s40, 11
        s_add_u32 s29, s29, {r*4096}
        s_mov_b32 s92, s70
        s_mov_b32 s93, s71
        s_mov_b32 s94, 16384
        s_mov_b32 s95, 0x00020000
        buffer_load_dwordx4 v1, s[92:95], s29 offen lds
        buffer_load_dwordx4 v1, s[92:95], s29 offen offset:1024 lds
        s_add_u32 m0, s28, {XW + 2048}
        s_mov_b32 s92, s68
        s_mov_b32 s93, s69
        buffer_load_dwordx4 v1, s[92:95], s29 offen lds
        buffer_load_dwordx4 v1, s[92:95], s29 offen offset:1024 lds
        """)
    def extra_compute(r):
        a(f"""
        s_sub_u32 s40, s3, 5
        s_lshl_b32 s29, s2, 15
        s_lshl_b32 s28, s40, 12
        s_add_u32 s29, s29, s28
        s_add_u32 s29, s29, {XF_OFF + r*8192}
        s_waitcnt vmcnt(0)
        """)
        for s in range(4):
            a(f"ds_read_b64_tr_b16 v[{176+4*s}:{177+4*s}], v6 offset:{s*512}")
            a(f"ds_read_b64_tr_b16 v[{178+4*s}:{179+4*s}], v6 offset:{s*512+128}")
        a("s_waitcnt lgkmcnt(0)")
        for s in range(4):
            xf = 112 + 4 * s; wf = 176 + 4 * s
            first = (r == 0 and s == 0)
            a(f"{MFMA} v[128:143], v[{wf}:{wf+3}], v[{xf}:{xf+3}], {'0' if first else 'v[128:143]'}")
            a(f"{MFMA} v[144:159], v[{xf}:{xf+3}], v[{wf}:{wf+3}], {'0' if first else 'v[144:159]'}")
            for i in range(4): a(f"v_dot2_f32_bf16 v7, v{xf+i}, v{160+4*s+i}, v7")
    def extra_part(k):
        l = f"k1_x{k}"
        if k == 10:
            a(f"""
            v_and_b32 v30, 31, v0
            v_lshrrev_b32 v31, 5, v0
            v_lshlrev_b32 v30, 10, v30
            v_lshlrev_b32 v31, 4, v31
            v_add_u32 v30, v31, v30
            v_lshrrev_b32 v5, 4, v0
            v_and_b32 v4, 15, v0
            v_and_b32 v6, 1, v5
            v_lshlrev_b32 v6, 11, v6
            v_lshrrev_b32 v2, 1, v5
            v_lshlrev_b32 v2, 3, v2
            v_lshrrev_b32 v3, 2, v4
            v_add_u32 v2, v2, v3
            v_lshl_add_u32 v6, v2, 5, v6
            v_and_b32 v3, 3, v4
            v_lshl_add_u32 v6, v3, 3, v6
            s_sub_u32 s40, s3, 5
            s_lshl_b32 s28, s40, 12
            s_add_u32 s28, s28, {XW}
            v_add_u32 v6, s28, v6
            v_mov_b32 v7, 0
            """)
            extra_loads(0)
        if 11 <= k <= 14:
            extra_compute(k - 11)
            if k < 14:
                a("s_nop 3")
                extra_loads(k - 10)
        if k == 14:
            a(f"""
            s_cmp_lg_u32 s3, 6
            s_cbranch_scc1 {l}
            v_add_u32 v2, {XP}, v1
            v_lshlrev_b32 v3, 2, v0
            v_add_u32 v3, {XP + 6144}, v3
            s_nop 15
            """)
            for b in range(6): a(f"ds_write_b128 v2, v[{136+4*b}:{139+4*b}] offset:{b*1024}")
            a("ds_write_b32 v3, v7")
            a("s_waitcnt lgkmcnt(0)")
        if k == 15:
            a(f"""
            s_cmp_lg_u32 s3, 5
            s_cbranch_scc1 {l}
            v_add_u32 v2, {XP}, v1
            v_lshlrev_b32 v3, 2, v0
            v_add_u32 v3, {XP + 6144}, v3
            """)
            for b in range(6): a(f"ds_read_b128 v[{160+4*b}:{163+4*b}], v2 offset:{b*1024}")
            a("ds_read_b32 v184, v3")
            a("s_waitcnt lgkmcnt(0)")
            for r in range(24): a(f"v_add_f32 v{136+r}, v{136+r}, v{160+r}")
            a("v_add_f32 v7, v7, v184")
            pack8(a, 160, 136); pack8(a, 164, 144); pack8(a, 168, 152)
            a(f"""
            s_lshl_b32 s28, s2, 10
            s_add_u32 s29, s28, {KA_OFF}
            buffer_store_dwordx4 v[160:163], v1, s[20:23], s29 offen sc1
            v_and_b32 v2, 31, v0
            v_lshrrev_b32 v3, 5, v0
            v_lshl_add_u32 v3, v3, 4, v2
            v_lshlrev_b32 v3, 4, v3
            s_add_u32 s29, s28, {VA_OFF}
            v_cmp_gt_u32 vcc, 16, v2
            s_and_saveexec_b64 s[62:63], vcc
            buffer_store_dwordx4 v[164:167], v3, s[20:23], s29 offen sc1
            buffer_store_dwordx4 v[168:171], v3, s[20:23], s29 offen offset:512 sc1
            s_mov_b64 exec, s[62:63]
            v_mov_b32 v2, v7
            s_nop 1
            v_permlane32_swap_b32 v2, v7
            s_nop 1
            v_add_f32 v7, v7, v2
            v_cvt_pk_bf16_f32 v7, v7, v7
            v_lshlrev_b32 v7, 16, v7
            v_mul_f32 v7, {f32hex(-LOG2E)}, v7
            v_exp_f32 v7, v7
            s_nop 0
            v_add_f32 v7, 1.0, v7
            v_rcp_f32 v7, v7
            s_nop 0
            v_cvt_pk_bf16_f32 v7, v7, v7
            v_lshlrev_b32 v172, 16, v7
            v_sub_f32 v173, 1.0, v172
            v_cvt_pk_bf16_f32 v173, v173, v173
            v_lshlrev_b32 v173, 16, v173
            v_lshlrev_b32 v3, 3, v0
            s_lshl_b32 s28, s2, 8
            s_add_u32 s28, s28, {G_OFF}
            v_cmp_gt_u32 vcc, 32, v0
            s_and_saveexec_b64 s[62:63], vcc
            buffer_store_dwordx2 v[172:173], v3, s[20:23], s28 offen sc1
            s_mov_b64 exec, s[62:63]
            """)
            signal(a, 32)
        a.label(l)
    epiK = epi_ops(0); epiV = epi_ops(1)
    SIG = 20
    for k in range(NK):
        ps = k >> 3
        for s in range(4):
            u = 4 * k + s
            extra = []
            if s == 2 and k + 1 < NK:
                if k == SIG - 1: vm.q = []; a("s_waitcnt vmcnt(0) lgkmcnt(0)")
                elif ('d', k + 1) not in vm.q: a("s_waitcnt lgkmcnt(0)")
                elif k == 22:
                    a("s_cmp_eq_u32 s3, 7")
                    a("s_cbranch_scc1 k1_w22")
                    a(f"s_waitcnt vmcnt({vm.need({('d', k + 1)})})")
                    a.label("k1_w22")
                    a("s_waitcnt lgkmcnt(0)")
                else: a(f"s_waitcnt vmcnt({vm.need({('d', k + 1)})}) lgkmcnt(0)")
                a("s_barrier")
                if k in (7, 15): st7(a, 5 + (k >> 3)); vm.issue("st") if STAMP else None
                if k >= 17: st7(a, 7 + k - 17); vm.issue("st") if STAMP else None
                if k == SIG - 1:
                    a(f"""
                    s_cmp_lg_u32 s3, 0
                    s_cbranch_scc1 k1_nosig
                    s_and_b32 s28, s6, 3
                    s_lshl_b32 s28, s28, 3
                    s_add_u32 s28, s28, s7
                    s_lshl_b32 s29, 1, s28
                    s_lshr_b32 s28, s6, 2
                    s_lshl_b32 s28, s28, 2
                    v_mov_b32 v2, s29
                    v_mov_b32 v3, 0
                    s_mov_b64 exec, 1
                    buffer_atomic_or v2, v3, s[80:83], s28 offen sc1
                    s_mov_b64 exec, -1
                    k1_nosig:
                    """)
                if k + 3 < NK: extra = [(o, ("d", k + 3)) for o in dma_ops(k + 3)]
                if k >= 21:
                    a("s_cmp_lg_u32 s3, 7")
                    a(f"s_cbranch_scc1 k1_d{k}")
                    if k == 21:
                        a("""
                        s_mov_b32 s46, 0
                        s_mov_b32 s60, 0
                        s_mov_b32 s61, 0
                        """)
                        task_setup()
                        a("""
                        s_lshl_b32 s86, s50, 13
                        s_add_u32 s34, s86, 16384
                        s_mov_b32 s52, 0
                        s_mov_b32 s53, 0
                        """)
                        need_rb(); c_dma(); c_dma(); c_dma()
                    if k == 22:
                        c_dma(); c_dma()
                    a.label(f"k1_d{k}")
            else:
                a(f"s_waitcnt lgkmcnt({6 if u + 1 < 4*NK else 0})")
            if s == 0:
                if k == 0: extra = [(o, "t") for o in touch_ops(0) if not (o.startswith("buffer") and "v116" not in o and (os.environ.get("NOT0") or not os.environ.get("NOROT")))]
                if k == 4: extra = [(o, "t") for o in touch_ops(1)]
                if k == 11: extra = [(o, "t") for o in touch_ops(2)]
            if s < 2 and 8 <= k < 12:
                i = (k - 8) * 2 + s; extra = extra + [(o, "s") for o in epiK[5*i:5*i+5]]
            if s == 3: extra = carry
            if s == 2: carry = extra[len(extra)//2:]; extra = extra[:len(extra)//2]
            if 16 <= k < 18:
                i = (k - 16) * 4 + s; extra = extra + [(o, "s") for o in epiV[5*i:5*i+5]]
            rq = read_ops(u + 2) if u + 2 < 4 * NK else []
            f = FB + 16 * (u % 3)
            i = 0
            for m in range(2):
                for kb in range(2):
                    acc = ACC[ps] + 16 * (m * 2 + kb)
                    c = f"v[{f+4*kb}:{f+4*kb+3}]"; w = f"v[{f+8+4*m}:{f+11+4*m}]"
                    ci = "0" if (u & 31) == 0 else f"v[{acc}:{acc+15}]"
                    if ps == 1: a(f"{MFMA} v[{acc}:{acc+15}], {c}, {w}, {ci}")
                    else:       a(f"{MFMA} v[{acc}:{acc+15}], {w}, {c}, {ci}")
                    for o in rq[2*i: 2*i+2]: a(o)
                    ne = -(-len(extra) // (4 - i))
                    for o, t in extra[:ne]: emit(o, t)
                    extra = extra[ne:]
                    i += 1
    a(f"""
    s_barrier
    s_mov_b32 s28, {f32hex(LOG2E * 128 ** -0.5)}
    s_lshr_b32 s29, s3, 1
    s_lshl_b32 s29, s29, 14
    s_and_b32 s40, s3, 1
    s_lshl_b32 s40, s40, 12
    s_add_u32 s29, s29, s40
    s_add_u32 s29, s29, {QX}
    v_add_u32 v2, s29, v1
    s_nop 7
    """)
    for r in range(64): a(f"v_mul_f32 v{128+r}, s28, v{128+r}")
    n = 0
    for m in range(2):
        for kb in range(2):
            for g in range(2):
                tmp = 32 + 4 * n; n += 1
                pack8(a, tmp, 128 + 16 * (m * 2 + kb) + 8 * g)
                a(f"ds_write_b128 v2, v[{tmp}:{tmp+3}] offset:{kb*8192 + (2*m+g)*1024}")
    a("""
    s_waitcnt lgkmcnt(0)
    s_barrier
    s_cmp_eq_u32 s3, 7
    s_cbranch_scc1 l_task
    s_cmp_ge_u32 s3, 4
    s_cbranch_scc1 k1_side
    """)
    attn_compute(a, task_setup)
    side_workers(a, task_setup, extra_part)
    attn_loader(a, task_setup, c_dma, need_rb)
    phase3_A(a)
    phase3_G(a)
    a.label("k1_end")
    a("s_endpgm")
    return name, f"grid=(256,1,1) block=(512,1,1) lds={RING + 16384}", kernel_desc(name, 256)

def read_flags(a, tmp):
    a(f"""
    v_mov_b32 v{tmp}, {FLAG}
    ds_read_b128 v[{tmp+2}:{tmp+5}], v{tmp}
    s_waitcnt lgkmcnt(0)
    v_or3_b32 v{tmp}, v{tmp+2}, v{tmp+3}, v{tmp+4}
    v_or_b32 v{tmp}, v{tmp}, v{tmp+5}
    s_nop 0
    v_readfirstlane_b32 s28, v{tmp}
    """)

def attn_loader(a, task_setup, c_dma, need_rb):
    a.label("l_task")
    a("s_mov_b32 s58, 0")
    a.label("l_loop")
    a("s_waitcnt vmcnt(0)")
    a("s_barrier")
    a("s_mov_b32 s59, 0")
    need_rb()
    a.label("l_in")
    c_dma()
    a("""
    s_add_u32 s59, s59, 1
    s_cmp_lt_u32 s59, 4
    s_cbranch_scc1 l_in
    s_add_u32 s58, s58, 4
    s_add_u32 s28, s50, 2
    s_cmp_lt_u32 s58, s28
    s_cbranch_scc1 l_loop
    s_waitcnt vmcnt(0)
    s_barrier
    """)
    read_flags(a, 32)
    a("""
    s_cmp_eq_u32 s28, 0
    s_cbranch_scc1 l_ok
    s_cmp_lg_u32 s60, 0
    s_cbranch_scc1 l_ok
    s_mov_b32 s60, 1
    s_mov_b32 s58, 0
    """)
    a.label("l_max")
    a("s_lshl_b32 s52, s58, 13")
    for g in range(2):
        a(f"s_mov_b32 m0, {g*4096}")
        a(f"s_add_u32 s28, s52, {g*4096}")
        for i in range(4): a(f"buffer_load_dwordx4 v1, s[84:87], s28 offen offset:{i*1024} sc1 lds")
    a("""
    s_waitcnt vmcnt(0)
    s_barrier
    s_barrier
    s_add_u32 s58, s58, 1
    s_cmp_lt_u32 s58, s50
    s_cbranch_scc1 l_max
    s_branch l_pro
    """)
    a.label("l_ok")
    a("""
    s_mov_b32 s60, 0
    s_add_u32 s46, s46, 1
    s_cmp_ge_u32 s46, 2
    s_cbranch_scc1 p3_a
    """)
    task_setup()
    a("s_lshl_b32 s86, s50, 13")
    a("s_add_u32 s34, s86, 16384")
    a.label("l_pro")
    a("""
    s_mov_b32 s52, 0
    s_mov_b32 s53, 0
    s_mov_b32 s59, 0
    """)
    a.label("l_pro1")
    c_dma()
    a("""
    s_add_u32 s59, s59, 1
    s_cmp_lt_u32 s59, 5
    s_cbranch_scc1 l_pro1
    s_branch l_task
    """)

def attn_compute(a, task_setup):
    a(f"""
    s_lshl_b32 s28, s3, 13
    s_add_u32 s28, s28, {QX}
    v_add_u32 v2, s28, v1
    v_and_b32 v3, 31, v0
    v_lshrrev_b32 v4, 5, v0
    v_lshlrev_b32 v18, 2, v4
    v_sub_u32 v18, v3, v18
    s_mov_b32 s46, 0
    s_mov_b32 s60, 0
    """)
    for s in range(8): a(f"ds_read_b128 v[{QF+4*s}:{QF+4*s+3}], v2 offset:{s*1024}")
    for s in range(8): a(f"ds_read_b128 v[{Q2+4*s}:{Q2+4*s+3}], v2 offset:{32768 + s*1024}")
    task_setup()
    a("s_waitcnt lgkmcnt(0)")
    st7(a, 1, tv=28)
    a.label("b_task")
    a("""
    s_lshl_b32 s28, s47, 7
    s_lshl_b32 s29, s3, 5
    s_add_u32 s48, s28, s29
    s_sub_u32 s49, s50, 3
    s_add_u32 s49, s49, s3
    """)
    for r in range(64): a(f"v_mov_b32 v{O_+r}, 0")
    for r in range(4): a(f"v_mov_b32 v{24+r}, 0")
    a(f"""
    s_mov_b32 s56, {SLOT}
    s_mov_b32 s58, 0
    v_mov_b32 v20, v1
    """)
    def apply_mask(base):
        a("v_mov_b32 v19, 0xff800000")
        for r in range(16):
            a(f"v_cmp_gt_i32 vcc, {8*(r>>2)+(r&3)}, v18")
            a("s_nop 1")
            a(f"v_cndmask_b32 v{base+r}, v{base+r}, v19, vcc")
    def sm_ops(par):
        S = S_[par]; P = P_[par]
        ops = []
        for r in range(16):
            ops.append(f"v_exp_f32 v{S+r}, v{S+r}")
            if r >= 1: ops.append(f"v_add_f32 v{24+((r-1)&3)}, v{24+((r-1)&3)}, v{S+r-1}")
            if r & 1: ops.append(f"v_cvt_pk_bf16_f32 v{P+(r>>1)}, v{S+r-1}, v{S+r}")
        ops.append(f"v_add_f32 v27, v27, v{S+15}")
        return ops
    def cost(o): return 8 if o.startswith("v_exp") else 4
    def iteration(par, doQK, doSM, doPV, prefetched, extra=(), cinit=None, last=()):
        M = (list(range(8)) if doQK else []) + (list(range(8, 16)) if doPV else [])
        seq = M + (list(range(16, 20)) if doQK else [])
        book = [f"v_add_u32 v{20+(par^1)}, s56, v1",
                f"s_add_u32 s56, s56, {SLOT}",
                f"s_cmp_ge_u32 s56, {RING}",
                "s_cselect_b32 s56, 0, s56"] + list(extra)
        fill = sm_ops(par ^ 1) if doSM else []
        nM = len(M)
        if nM == 0:
            for o in book + fill + list(last): a(o)
            return
        def rdi(idx):
            j = seq[idx]; f = FR + 4 * (idx & 7)
            if j < 16: return f"ds_read_b128 v[{f}:{f+3}], v{20+par} offset:{j*1024}"
            return f"ds_read_b128 v[{f}:{f+3}], v{20+(par^1)} offset:{(j-16)*1024}"
        def mfi(idx):
            n = seq[idx]; f = FR + 4 * (idx & 7)
            if n < 8:
                S = S_[par]
                c = (cinit or f"v[{NEGM}:{NEGM+15}]") if n == 0 else f"v[{S}:{S+15}]"
                return f"{MFMA} v[{S}:{S+15}], v[{f}:{f+3}], v[{QF+4*n}:{QF+4*n+3}], {c}"
            k = n - 8; ks = k >> 2; b = k & 3
            P = P_[par]
            return f"{MFMA} v[{O_+16*b}:{O_+16*b+15}], v[{f}:{f+3}], v[{P+4*ks}:{P+4*ks+3}], v[{O_+16*b}:{O_+16*b+15}]"
        if not (prefetched and doQK):
            for idx in range(4): a(rdi(idx))
        nv = nM - nM // 4
        tot = sum(cost(o) for o in fill)
        done = 0; gi = 0
        for p in range(nM):
            if p % 4 == 0: a("s_waitcnt lgkmcnt(0)")
            a(mfi(p))
            if p == nM - 1:
                for o in last: a(o)
            if p % 4 == 0:
                if p == 0:
                    for o in book: a(o)
                for idx in range(p + 4, min(p + 8, len(seq))): a(rdi(idx))
            else:
                gi += 1
                tgt = tot * gi / nv
                while fill and (done + cost(fill[0]) / 2 <= tgt or gi == nv):
                    done += cost(fill[0]); a(fill.pop(0))
        assert not fill
    a.label("b_loop")
    a("""
    s_and_b32 s28, s58, 3
    s_cmp_lg_u32 s28, 0
    s_cbranch_scc1 b_slow2
    s_cmp_lt_u32 s58, 4
    s_cbranch_scc1 b_slow
    s_add_u32 s28, s58, 8
    s_cmp_gt_u32 s28, s50
    s_cbranch_scc1 b_slow
    s_sub_u32 s59, s50, 4
    """)
    a.label("b_fast")
    a("s_barrier")
    iteration(0, True, True, True, True)
    iteration(1, True, True, True, True)
    iteration(0, True, True, True, True)
    iteration(1, True, True, True, True, ["s_add_u32 s58, s58, 4"], last=["s_cmp_lt_u32 s58, s59"])
    a("s_cbranch_scc1 b_fast")
    a.label("b_slow")
    a("s_barrier")
    a.label("b_slow2")
    for par in (0, 1):
        lnext = a.newlabel("b_next"); lns = a.newlabel("b_nonsteady"); ld = a.newlabel("b_nodiag")
        a("s_add_u32 s28, s58, 1")
        a("s_cmp_lg_u32 s28, s49")
        a(f"s_cbranch_scc1 {ld}")
        apply_mask(NEGM)
        a.label(ld)
        a("s_cmp_lt_u32 s58, 2")
        a(f"s_cbranch_scc1 {lns}")
        a("s_cmp_ge_u32 s58, s49")
        a(f"s_cbranch_scc1 {lns}")
        iteration(par, True, True, True, True)
        a(f"s_branch {lnext}")
        a.label(lns)
        l_g = a.newlabel("b_ge"); l_pv = a.newlabel("b_pv"); l_none = a.newlabel("b_none"); l_sm = a.newlabel("b_sm")
        a("s_cmp_ge_u32 s58, s49")
        a(f"s_cbranch_scc1 {l_g}")
        if par == 0:
            lr = a.newlabel("b_g0raw")
            a("s_cmp_eq_u32 s60, 0")
            a(f"s_cbranch_scc1 {lr}")
            iteration(0, True, False, False, False)
            a(f"s_branch {lnext}")
            a.label(lr)
            iteration(0, True, False, False, False, cinit="0")
            a("s_nop 15")
            lm = a.newlabel("b_nomask0")
            a("s_cmp_lg_u32 s49, 1")
            a(f"s_cbranch_scc1 {lm}")
            apply_mask(S_[0])
            a.label(lm)
            S = S_[0]
            a(f"v_max3_f32 v22, v{S}, v{S+1}, v{S+2}")
            for r in range(3, 15, 2): a(f"v_max3_f32 v22, v22, v{S+r}, v{S+r+1}")
            a(f"v_max_f32 v22, v22, v{S+15}")
            a("""
            v_mov_b32 v19, v22
            s_nop 1
            v_permlane32_swap_b32 v19, v22
            s_nop 1
            v_max_f32 v22, v22, v19
            """)
            for r in range(16): a(f"v_sub_f32 v{S+r}, v{S+r}, v22")
            for r in range(16): a(f"v_sub_f32 v{NEGM+r}, 0, v22")
        else:
            iteration(1, True, True, False, True)
        a(f"s_branch {lnext}")
        a.label(l_g)
        a("s_cmp_eq_u32 s58, s49")
        a(f"s_cbranch_scc0 {l_pv}")
        a("s_cmp_lt_u32 s58, 2")
        a(f"s_cbranch_scc1 {l_sm}")
        iteration(par, False, True, True, False)
        a(f"s_branch {lnext}")
        a.label(l_sm)
        iteration(par, False, True, False, False)
        a(f"s_branch {lnext}")
        a.label(l_pv)
        a("s_add_u32 s28, s49, 1")
        a("s_cmp_eq_u32 s58, s28")
        a(f"s_cbranch_scc0 {l_none}")
        a("s_nop 1")
        iteration(par, False, False, True, False)
        a(f"s_branch {lnext}")
        a.label(l_none)
        iteration(par, False, False, False, False)
        a.label(lnext)
        a("s_add_u32 s58, s58, 1")
    a("s_add_u32 s28, s50, 2")
    a("s_cmp_lt_u32 s58, s28")
    a("s_cbranch_scc1 b_loop")
    if STAMP:
        a("s_cmp_lg_u32 s46, 0"); a("s_cbranch_scc1 b_st2"); st7(a, 2, tv=28); a.label("b_st2")
    a(f"""
    s_nop 7
    v_add_f32 v24, v24, v25
    v_add_f32 v26, v26, v27
    v_add_f32 v24, v24, v26
    v_mov_b32 v19, v24
    s_nop 1
    v_permlane32_swap_b32 v19, v24
    s_nop 1
    v_add_f32 v24, v24, v19
    v_rcp_f32 v26, v24
    v_mov_b32 v19, 0
    """)
    for r in range(64): a(f"v_fma_f32 v19, v{O_+r}, 0, v19")
    a(f"""
    s_mov_b32 s28, {f32hex(2.0**THR)}
    v_cmp_nle_f32 vcc, v24, s28
    v_cmp_u_f32 s[62:63], v19, v19
    s_or_b64 s[62:63], s[62:63], vcc
    s_cmp_lg_u64 s[62:63], 0
    s_cselect_b32 s28, 1, 0
    v_mov_b32 v19, s28
    s_lshl_b32 s29, s3, 2
    s_lshl_b32 s40, s46, 4
    s_add_u32 s29, s29, {FLAG}
    v_mov_b32 v22, s29
    ds_write_b32 v22, v19
    s_waitcnt lgkmcnt(0)
    s_barrier
    """)
    read_flags(a, 32)
    a("""
    s_cmp_eq_u32 s28, 0
    s_cbranch_scc1 b_ok
    s_cmp_lg_u32 s60, 0
    s_cbranch_scc1 b_ok
    s_mov_b32 s60, 1
    s_mov_b32 s58, 0
    v_mov_b32 v22, 0xff800000
    """)
    a.label("b_maxloop")
    a("""
    s_barrier
    s_cmp_ge_u32 s58, s49
    s_cbranch_scc1 b_maxskip
    """)
    for n in range(8): a(f"ds_read_b128 v[{FR+4*n}:{FR+4*n+3}], v1 offset:{n*1024}")
    a("s_waitcnt lgkmcnt(0)")
    for n in range(8):
        S = S_[0]
        c = "0" if n == 0 else f"v[{S}:{S+15}]"
        a(f"{MFMA} v[{S}:{S+15}], v[{FR+4*n}:{FR+4*n+3}], v[{QF+4*n}:{QF+4*n+3}], {c}")
    a("""
    s_nop 15
    s_add_u32 s28, s58, 1
    s_cmp_lg_u32 s28, s49
    s_cbranch_scc1 b_maxnomask
    """)
    apply_mask(S_[0])
    a.label("b_maxnomask")
    for r in range(0, 16, 2): a(f"v_max3_f32 v22, v22, v{S_[0]+r}, v{S_[0]+r+1}")
    a.label("b_maxskip")
    a("""
    s_barrier
    s_add_u32 s58, s58, 1
    s_cmp_lt_u32 s58, s50
    s_cbranch_scc1 b_maxloop
    v_mov_b32 v19, v22
    s_nop 1
    v_permlane32_swap_b32 v19, v22
    s_nop 1
    v_max_f32 v22, v22, v19
    """)
    for r in range(16): a(f"v_sub_f32 v{NEGM+r}, 0, v22")
    a("s_branch b_task")
    a.label("b_ok")
    a("""
    s_mov_b32 s60, 0
    s_add_u32 s46, s46, 1
    """)
    task_setup()
    for r in range(64): a(f"v_mul_f32 v{O_+r}, v26, v{O_+r}")
    a(f"""
    s_lshr_b32 s28, s48, 5
    s_mul_i32 s28, s28, {ZF_RG}
    s_lshl_b32 s29, s6, 13
    s_add_u32 s28, s28, s29
    s_add_u32 s28, s28, {ZF_OFF}
    s_add_u32 s29, s28, 4096
    """)
    for kk in range(8):
        t = FR + 4 * kk
        pack8(a, t, O_ + 8 * kk)
        a(f"buffer_store_dwordx4 v[{t}:{t+3}], v1, s[20:23], s{28 + (kk >> 2)} offen offset:{(kk & 3) * 1024} sc1")
    for r in range(32): a(f"v_mov_b32 v{QF+r}, v{Q2+r}")
    a("""
    s_cmp_lt_u32 s46, 2
    s_cbranch_scc1 b_task
    """)
    st7(a, 3, tv=28)
    a("""
    s_waitcnt vmcnt(0)
    s_mov_b32 s49, s7
    s_branch p3_g
    """)

def cidx(a, base, sreg=None):
    if sreg is None: a(f"s_mov_b32 s40, {CNT_OFF + base*256}")
    else:
        a(f"s_lshl_b32 s40, {sreg}, 8"); a(f"s_add_u32 s40, s40, {CNT_OFF + base*256}")

def signal(a, base, sreg=None, wait=True):
    if wait: a("s_waitcnt vmcnt(0)")
    cidx(a, base, sreg)
    a(f"""
    v_mov_b32 v2, 1
    v_mov_b32 v3, 0
    s_mov_b64 exec, 1
    buffer_atomic_add v2, v3, s[20:23], s40 offen sc1
    s_mov_b64 exec, -1
    """)

def poll(a, base, target, slp=8, sreg=None, dbg=False):
    l1 = a.newlabel("poll"); l2 = a.newlabel("polled")
    if dbg: a(f"s_mov_b32 s40, {base}")
    else: cidx(a, base, sreg)
    a(f"""
    v_mov_b32 v3, 0
    s_mov_b32 s41, 0
    {l1}:
    buffer_load_dword v2, v3, s[{80 if dbg else 20}:{83 if dbg else 23}], s40 offen sc1
    s_waitcnt vmcnt(0)
    v_readfirstlane_b32 s29, v2
    s_cmp_ge_u32 s29, {target}
    s_cbranch_scc1 {l2}
    s_sleep {slp}
    s_add_u32 s41, s41, 1
    s_cmp_lt_u32 s41, 0x100000
    s_cbranch_scc1 {l1}
    {l2}:
    """)

def amap(a):
    a("""
    s_and_b32 s28, s2, 7
    s_lshl_b32 s28, s28, 1
    s_lshr_b32 s29, s2, 7
    s_add_u32 s66, s28, s29
    s_lshr_b32 s67, s2, 3
    s_and_b32 s67, s67, 15
    """)

def side_workers(a, task_setup, extra_part):
    a.label("k1_side")
    amap(a)
    WB = MISC + 8192 + 256
    a(f"""
    s_waitcnt vmcnt(0)
    s_mov_b32 s46, 0
    s_mov_b32 s44, 0
    s_sub_u32 s45, s3, 4
    v_and_b32 v4, 31, v0
    v_lshrrev_b32 v5, 5, v0
    v_lshlrev_b32 v12, 10, v4
    v_lshl_add_u32 v12, v5, 4, v12
    s_lshl_b32 s28, s66, 2
    s_add_u32 s28, s28, s45
    s_lshl_b32 s48, s28, 15
    s_lshl_b32 s49, s66, 2
    s_add_u32 s49, s49, 3
    s_lshl_b32 s49, s49, 15
    v_bfe_u32 v6, v0, 2, 2
    v_lshl_add_u32 v13, v5, 3, v6
    v_lshlrev_b32 v13, 6, v13
    v_lshl_add_u32 v14, v5, 2, v6
    v_lshlrev_b32 v14, 6, v14
    v_bfe_u32 v6, v0, 4, 1
    v_lshlrev_b32 v6, 5, v6
    v_and_b32 v7, 3, v0
    v_lshl_add_u32 v6, v7, 3, v6
    v_add_u32 v13, v6, v13
    v_add_u32 v13, {MISC}, v13
    v_add_u32 v14, v6, v14
    s_lshl_b32 s28, s45, 10
    s_add_u32 s51, s28, {WB}
    v_add_u32 v14, s51, v14
    v_lshrrev_b32 v15, 2, v0
    v_lshlrev_b32 v15, 10, v15
    v_lshl_add_u32 v15, v7, 4, v15
    s_mov_b32 s92, s58
    s_mov_b32 s93, s59
    s_mov_b32 s94, {512*1024}
    s_mov_b32 s95, 0x00020000
    s_mul_i32 s52, s2, 18
    s_mul_i32 s28, s45, 6
    s_add_u32 s52, s52, s28
    s_mov_b32 s19, 0x00020000
    """)
    task_setup()
    a("s_cmp_lg_u32 s3, 5")
    a("s_cbranch_scc1 sw_ni")
    poll(a, 248, 1, dbg=True)
    a.label("sw_ni")
    QA0 = 128; QA1 = 144; XA = 64; XB = 80; WQF = 96
    for j in range(10):
        a("s_barrier")
        if j >= 1:
            a("s_waitcnt vmcnt(0)")
        if 1 <= j <= 8:
            p = j - 1
            for s in range(4):
                a(f"ds_read_b64_tr_b16 v[{WQF+4*s}:{WQF+4*s+1}], v13 offset:{(p&1)*4096 + s*1024}")
                a(f"ds_read_b64_tr_b16 v[{WQF+4*s+2}:{WQF+4*s+3}], v13 offset:{(p&1)*4096 + s*1024 + 256}")
        if 1 <= j <= 6:
            a("ds_read_b64_tr_b16 v[112:113], v14")
            a("ds_read_b64_tr_b16 v[114:115], v14 offset:512")
        if j >= 1: a("s_waitcnt lgkmcnt(0)")
        if 1 <= j <= 6:
            a(f"""
            s_lshl_b32 s28, s52, 10
            s_add_u32 s28, s28, {WF_OFF}
            buffer_store_dwordx4 v[112:115], v1, s[20:23], s28 offen sc1
            s_add_u32 s52, s52, 1
            """)
        if 1 <= j <= 8:
            for s in range(4):
                c = "0" if (j == 1 and s == 0) else f"v[{QA0}:{QA0+15}]"
                a(f"{MFMA} v[{QA0}:{QA0+15}], v[{WQF+4*s}:{WQF+4*s+3}], v[{XA+4*s}:{XA+4*s+3}], {c}")
            l = a.newlabel("sw_n2")
            a("s_cmp_lg_u32 s3, 4")
            a(f"s_cbranch_scc1 {l}")
            for s in range(4):
                c = "0" if (j == 1 and s == 0) else f"v[{QA1}:{QA1+15}]"
                a(f"{MFMA} v[{QA1}:{QA1+15}], v[{WQF+4*s}:{WQF+4*s+3}], v[{XB+4*s}:{XB+4*s+3}], {c}")
            a.label(l)
        if j <= 7:
            for s in range(4): a(f"buffer_load_dwordx4 v[{XA+4*s}:{XA+4*s+3}], v12, s[76:79], s48 offen offset:{j*128 + s*32}")
            l = a.newlabel("sw_n3"); l2 = a.newlabel("sw_n4")
            a("s_cmp_lg_u32 s3, 4")
            a(f"s_cbranch_scc1 {l}")
            for s in range(4): a(f"buffer_load_dwordx4 v[{XB+4*s}:{XB+4*s+3}], v12, s[76:79], s49 offen offset:{j*128 + s*32}")
            a.label(l)
            a("s_cmp_lg_u32 s3, 6")
            a(f"s_cbranch_scc1 {l2}")
            a(f"s_mov_b32 m0, {MISC + (j&1)*4096}")
            a("s_lshl_b32 s29, s67, 6")
            for i in range(4):
                a(f"s_add_u32 s28, s29, {j*65536 + i*16384 - i*1024}")
                a(f"buffer_load_dwordx4 v15, s[92:95], s28 offen offset:{i*1024} lds")
            a.label(l2)
        if j <= 5:
            a(f"""
            s_lshr_b32 s28, s52, 4
            s_and_b32 s29, s52, 15
            s_lshl_b32 s29, s29, 6
            s_cmp_lt_u32 s28, 256
            s_cselect_b32 s16, s56, s60
            s_cselect_b32 s17, s57, s61
            s_cselect_b32 s18, {4*MB}, s94
            s_and_b32 s28, s28, 255
            s_lshl_b32 s28, s28, 14
            s_add_u32 s28, s28, s29
            s_mov_b32 m0, s51
            s_nop 0
            buffer_load_dwordx4 v15, s[16:19], s28 offen lds
            """)
        if j == 7: pass
        if j == 8:
            l = a.newlabel("sw_wf")
            a("s_cmp_lg_u32 s3, 5")
            a(f"s_cbranch_scc1 {l}")
            signal(a, 33, wait=False)
            a.label(l)
        if j == 9:
            a(f"s_mov_b32 s28, {f32hex(LOG2E * 0.25)}")
            for r in range(32): a(f"v_mul_f32 v{QA0+r}, s28, v{QA0+r}")
            for i in range(4): pack8(a, 64 + 4 * i, QA0 + 8 * i)
            a(f"""
            s_lshl_b32 s28, s2, 13
            s_lshl_b32 s29, s45, 11
            s_add_u32 s29, s29, s28
            s_add_u32 s29, s29, {QA_OFF}
            buffer_store_dwordx4 v[64:67], v1, s[20:23], s29 offen sc1
            buffer_store_dwordx4 v[68:71], v1, s[20:23], s29 offen offset:1024 sc1
            s_cmp_lg_u32 s3, 4
            s_cbranch_scc1 sw_q3
            s_add_u32 s29, s28, {QA_OFF + 6144}
            buffer_store_dwordx4 v[72:75], v1, s[20:23], s29 offen sc1
            buffer_store_dwordx4 v[76:79], v1, s[20:23], s29 offen offset:1024 sc1
            sw_q3:
            s_waitcnt vmcnt(0)
            """)
        if j <= 7:
            l = a.newlabel("sw_n5")
            a("s_cmp_lg_u32 s3, 6")
            a(f"s_cbranch_scc1 {l}")
            a("s_waitcnt vmcnt(0)")
            a.label(l)
    a("""
    s_mov_b32 s58, 40
    s_cmp_ge_u32 s2, 64
    s_cbranch_scc1 sw_chk
    """)
    for k in range(10, 16):
        a("s_barrier")
        l = a.newlabel("sw_x")
        a("s_cmp_eq_u32 s3, 4")
        a(f"s_cbranch_scc1 {l}")
        extra_part(k)
        a.label(l)
    a("s_mov_b32 s58, 64")
    a("s_branch sw_chk")
    a.label("sw_task")
    a("s_mov_b32 s58, 0")
    a.label("sw_loop")
    a("s_barrier")
    a("s_add_u32 s58, s58, 4")
    a.label("sw_chk")
    a("""
    s_add_u32 s28, s50, 2
    s_cmp_lt_u32 s58, s28
    s_cbranch_scc1 sw_loop
    s_barrier
    """)
    read_flags(a, 32)
    a("""
    s_cmp_eq_u32 s28, 0
    s_cbranch_scc1 sw_ok
    s_cmp_lg_u32 s44, 0
    s_cbranch_scc1 sw_ok
    s_mov_b32 s44, 1
    s_mov_b32 s58, 0
    sw_max:
    s_barrier
    s_barrier
    s_add_u32 s58, s58, 1
    s_cmp_lt_u32 s58, s50
    s_cbranch_scc1 sw_max
    s_branch sw_task
    sw_ok:
    s_mov_b32 s44, 0
    s_add_u32 s46, s46, 1
    s_cmp_ge_u32 s46, 2
    s_cbranch_scc1 p3_a
    """)
    task_setup()
    a("s_branch sw_task")

def phase3_A(a):
    AQ = 8; ANEG = (32, 48); AO = (64, 80); AS = (96, 112); AP = (16, 24); AKV = 128
    a.label("p3_a")
    amap(a)
    a("s_sub_u32 s45, s3, 4")
    poll(a, 32, 64)
    a(f"""
    s_lshl_b32 s28, s45, 14
    s_add_u32 s50, s28, {KA_OFF}
    s_add_u32 s51, s28, {VA_OFF}
    """)
    for (sr, lo) in ((50, 0), (51, 65536)):
        for g in range(4):
            a(f"s_add_u32 m0, s28, {lo + g*4096}")
            a(f"s_add_u32 s29, s{sr}, {g*4096}")
            for i in range(4): a(f"buffer_load_dwordx4 v1, s[20:23], s29 offen offset:{i*1024} sc1 lds")
    a(f"""
    s_lshl_b32 s28, s2, 13
    s_lshl_b32 s29, s45, 11
    s_add_u32 s29, s29, s28
    s_add_u32 s29, s29, {QA_OFF}
    buffer_load_dwordx4 v[{AQ}:{AQ+3}], v1, s[20:23], s29 offen sc1
    buffer_load_dwordx4 v[{AQ+4}:{AQ+7}], v1, s[20:23], s29 offen offset:1024 sc1
    s_lshl_b32 s48, s66, 7
    s_lshl_b32 s29, s45, 5
    s_add_u32 s48, s48, s29
    v_and_b32 v3, 31, v0
    v_lshrrev_b32 v4, 5, v0
    v_add_u32 v2, s48, v3
    v_lshlrev_b32 v2, 3, v2
    s_mov_b32 s28, {G_OFF}
    buffer_load_dword v160, v2, s[20:23], s28 offen sc1
    v_lshl_add_u32 v7, v4, 4, v3
    v_lshlrev_b32 v7, 4, v7
    v_add_u32 v7, 0x10000, v7
    v_mov_b32 v2, 0x3f803f80
    v_cmp_eq_u32 vcc, 16, v3
    s_nop 1
    v_cndmask_b32 v2, 0, v2, vcc
    v_cmp_gt_u32 s[62:63], 16, v3
    s_mov_b32 s60, 0
    """)
    for st in range(2):
        for r in range(8): a(f"v_mov_b32 v{AKV+12*st+4+r}, v2")
    a("s_waitcnt vmcnt(0)")
    a("s_barrier")
    st7(a, 12, tv=250)
    a.label("p3a_start")
    a(f"""
    v_mov_b32 v5, v1
    v_mov_b32 v6, v7
    ds_read_b128 v[{AKV+12}:{AKV+15}], v5
    """)
    def stage_reads(j, stg):
        f = AKV + 12 * stg
        return [f"ds_read_b128 v[{f}:{f+3}], v5 offset:{(j+1)*1024}",
                "s_mov_b64 exec, s[62:63]",
                f"ds_read_b128 v[{f+4}:{f+7}], v6 offset:{j*1024}",
                f"ds_read_b128 v[{f+8}:{f+11}], v6 offset:{j*1024 + 512}",
                "s_mov_b64 exec, -1"]
    for o in stage_reads(0, 0): a(o)
    for X in range(2):
        for r in range(16): a(f"v_mov_b32 v{AO[X]+r}, 0")
    a("s_waitcnt lgkmcnt(3)")
    K0 = AKV + 12
    a("s_cmp_eq_u32 s60, 0")
    a("s_cbranch_scc1 p3a_raw")
    for X in range(2):
        a(f"{MFMA} v[{AS[X]}:{AS[X]+15}], v[{K0}:{K0+3}], v[{AQ+4*X}:{AQ+4*X+3}], v[{ANEG[X]}:{ANEG[X]+15}]")
    a("s_nop 15")
    a("s_branch p3a_go")
    a.label("p3a_raw")
    for X in range(2):
        a(f"{MFMA} v[{AS[X]}:{AS[X]+15}], v[{K0}:{K0+3}], v[{AQ+4*X}:{AQ+4*X+3}], 0")
    a("s_nop 15")
    for X in range(2):
        S = AS[X]
        a(f"v_max3_f32 v2, v{S}, v{S+1}, v{S+2}")
        for r in range(3, 15, 2): a(f"v_max3_f32 v2, v2, v{S+r}, v{S+r+1}")
        a(f"v_max_f32 v2, v2, v{S+15}")
        a("""
        v_mov_b32 v161, v2
        s_nop 1
        v_permlane32_swap_b32 v161, v2
        s_nop 1
        v_max_f32 v2, v2, v161
        """)
        for r in range(16): a(f"v_sub_f32 v{S+r}, v{S+r}, v2")
        for r in range(16): a(f"v_sub_f32 v{ANEG[X]+r}, 0, v2")
    a.label("p3a_go")
    a("s_mov_b32 s52, 0")
    def valu(X):
        S = AS[X]; P = AP[X]
        ops = []
        for r in range(16):
            ops.append(f"v_exp_f32 v{S+r}, v{S+r}")
            if r >= 2 and (r & 1) == 0: ops.append(f"v_cvt_pk_bf16_f32 v{P+(r>>1)-1}, v{S+r-2}, v{S+r-1}")
        ops.append("s_nop 0")
        ops.append(f"v_cvt_pk_bf16_f32 v{P+7}, v{S+14}, v{S+15}")
        return ops
    def phase(X, f, extra=(), grp=()):
        Y = X ^ 1
        ops = valu(X)
        m = [f"{MFMA} v[{AS[Y]}:{AS[Y]+15}], v[{f}:{f+3}], v[{AQ+4*Y}:{AQ+4*Y+3}], v[{ANEG[Y]}:{ANEG[Y]+15}]",
             f"{MFMA} v[{AO[Y]}:{AO[Y]+15}], v[{f+4}:{f+7}], v[{AP[Y]}:{AP[Y]+3}], v[{AO[Y]}:{AO[Y]+15}]",
             f"{MFMA} v[{AO[Y]}:{AO[Y]+15}], v[{f+8}:{f+11}], v[{AP[Y]+4}:{AP[Y]+7}], v[{AO[Y]}:{AO[Y]+15}]"]
        extra = list(extra)
        for i, o in enumerate(ops):
            if i == 0:
                a(m[0])
                for g in grp: a(g)
            if i == 5: a(m[1])
            if i == 11: a(m[2])
            a(o)
            if i >= 1 and extra: a(extra.pop(0))
    for o in valu(0): a(o)
    a.label("p3a_loop")
    for j in range(8):
        stg = j & 1
        f = AKV + 12 * stg
        a("s_waitcnt lgkmcnt(0)")
        phase(1, f, grp=stage_reads(j + 1, stg ^ 1))
        ex = []
        if j == 7: ex = ["v_add_u32 v5, 0x2000, v5", "v_add_u32 v6, 0x2000, v6", "s_add_u32 s52, s52, 1", "s_cmp_lt_u32 s52, 8"]
        phase(0, f, extra=ex)
    a("s_cbranch_scc1 p3a_loop")
    a(f"""
    s_waitcnt lgkmcnt(0)
    s_nop 15
    v_lshlrev_b32 v5, 2, v3
    ds_bpermute_b32 v6, v5, v{AO[0]+8}
    ds_bpermute_b32 v161, v5, v{AO[1]+8}
    v_mov_b32 v4, 0
    """)
    for X in range(2):
        for r in range(8): a(f"v_fma_f32 v4, v{AO[X]+r}, 0, v4")
    a(f"""
    s_mov_b32 s28, {f32hex(2.0**THR)}
    s_waitcnt lgkmcnt(0)
    v_cmp_nle_f32 vcc, v6, s28
    v_cmp_nle_f32 s[56:57], v161, s28
    s_or_b64 s[56:57], s[56:57], vcc
    v_cmp_u_f32 vcc, v4, v4
    s_or_b64 s[56:57], s[56:57], vcc
    s_cmp_eq_u64 s[56:57], 0
    s_cbranch_scc1 p3a_ok
    s_cmp_lg_u32 s60, 0
    s_cbranch_scc1 p3a_ok
    s_mov_b32 s60, 1
    s_mov_b32 s52, 0
    v_mov_b32 v5, v1
    v_mov_b32 v162, 0xff800000
    v_mov_b32 v163, 0xff800000
    p3a_max:
    ds_read_b128 v[{AKV}:{AKV+3}], v5
    v_add_u32 v5, 0x400, v5
    s_waitcnt lgkmcnt(0)
    """)
    for X in range(2):
        a(f"{MFMA} v[{AS[X]}:{AS[X]+15}], v[{AKV}:{AKV+3}], v[{AQ+4*X}:{AQ+4*X+3}], 0")
    a("s_nop 15")
    for X in range(2):
        for r in range(0, 16, 2): a(f"v_max3_f32 v{162+X}, v{162+X}, v{AS[X]+r}, v{AS[X]+r+1}")
    a("""
    s_add_u32 s52, s52, 1
    s_cmp_lt_u32 s52, 64
    s_cbranch_scc1 p3a_max
    """)
    for X in range(2):
        a(f"""
        v_mov_b32 v5, v{162+X}
        s_nop 1
        v_permlane32_swap_b32 v5, v{162+X}
        s_nop 1
        v_max_f32 v{162+X}, v{162+X}, v5
        """)
        for r in range(16): a(f"v_sub_f32 v{ANEG[X]+r}, 0, v{162+X}")
    a("s_branch p3a_start")
    a.label("p3a_ok")
    a(f"""
    v_rcp_f32 v6, v6
    v_rcp_f32 v161, v161
    s_lshr_b32 s28, s48, 5
    s_mul_i32 s28, s28, {ZF_RG}
    s_lshl_b32 s29, s67, 11
    s_add_u32 s28, s28, s29
    s_add_u32 s28, s28, {ZF_OFF + 256*1024}
    v_mul_f32 v6, v6, v160
    v_mul_f32 v161, v161, v160
    """)
    for X in range(2):
        for r in range(8): a(f"v_mul_f32 v{AO[X]+r}, v{(6, 161)[X]}, v{AO[X]+r}")
        pack8(a, AP[X], AO[X])
        a(f"buffer_store_dwordx4 v[{AP[X]}:{AP[X]+3}], v1, s[20:23], s28 offen offset:{X*1024} sc1")
    signal(a, 16, "s66")
    st7(a, 13, tv=250)
    a("s_endpgm")

def phase3_G(a):
    ACC = 192; RG = 32
    a.label("p3_g")
    amap(a)
    srd(a, 16, 74, 2*MB)
    a(f"""
    s_and_b32 s28, s2, 7
    s_lshl_b32 s28, s28, 2
    s_lshr_b32 s29, s2, 6
    s_add_u32 s6, s28, s29
    s_lshr_b32 s7, s2, 3
    s_and_b32 s7, s7, 7
    s_mul_i32 s44, s6, {2*ZF_RG}
    s_lshl_b32 s28, s3, 11
    s_add_u32 s44, s44, s28
    s_add_u32 s44, s44, {ZF_OFF}
    s_add_u32 s45, s44, {ZF_RG}
    s_lshl_b32 s46, s3, 15
    s_lshl_b32 s28, s7, 11
    s_add_u32 s46, s46, s28
    s_add_u32 s46, s46, {WF_OFF}
    s_add_u32 s47, s46, 16384
    s_barrier
    s_cmp_lg_u32 s3, 0
    s_cbranch_scc1 p3g_ns
    """)
    signal(a, 0, "s49", wait=False)
    a("s_sub_u32 s49, 15, s49")
    signal(a, 0, "s49", wait=False)
    a.label("p3g_ns")
    poll(a, 33, 256)
    def issue_w(slot):
        r = RG + 32 * slot + 16
        a(f"buffer_load_dwordx4 v[{r}:{r+3}], v1, s[20:23], s46 offen sc1")
        a(f"buffer_load_dwordx4 v[{r+4}:{r+7}], v1, s[20:23], s46 offen offset:1024 sc1")
        a(f"buffer_load_dwordx4 v[{r+8}:{r+11}], v1, s[20:23], s47 offen sc1")
        a(f"buffer_load_dwordx4 v[{r+12}:{r+15}], v1, s[20:23], s47 offen offset:1024 sc1")
        a(f"s_add_u32 s46, s46, {4*32768}")
        a(f"s_add_u32 s47, s47, {4*32768}")
    def issue_z(slot):
        r = RG + 32 * slot
        a(f"buffer_load_dwordx4 v[{r}:{r+3}], v1, s[20:23], s44 offen sc1")
        a(f"buffer_load_dwordx4 v[{r+4}:{r+7}], v1, s[20:23], s44 offen offset:1024 sc1")
        a(f"buffer_load_dwordx4 v[{r+8}:{r+11}], v1, s[20:23], s45 offen sc1")
        a(f"buffer_load_dwordx4 v[{r+12}:{r+15}], v1, s[20:23], s45 offen offset:1024 sc1")
        a("s_add_u32 s44, s44, 8192")
        a("s_add_u32 s45, s45, 8192")
    def mm(slot):
        r = RG + 32 * slot
        for s in range(2):
            for m in range(2):
                for rg in range(2):
                    w = r + 16 + 8 * s + 4 * m; z = r + 8 * rg + 4 * s
                    acc = ACC + 16 * (2 * m + rg)
                    a(f"{MFMA} v[{acc}:{acc+15}], v[{w}:{w+3}], v[{z}:{z+3}], v[{acc}:{acc+15}]")
    for r in range(64): a(f"v_mov_b32 v{ACC+r}, 0")
    poll(a, 0, 32, sreg="s66")
    st7(a, 12, tv=28)
    a(f"""
    v_and_b32 v9, 31, v0
    s_lshl_b32 s28, s6, 6
    v_add_u32 v9, s28, v9
    v_lshlrev_b32 v4, 3, v9
    """)
    for sl in range(4):
        issue_w(sl); issue_z(sl)
    a("s_mov_b32 s48, 0")
    a.label("p3g_loop")
    for sl in range(4):
        a("s_waitcnt vmcnt(24)")
        mm(sl)
        issue_w(sl); issue_z(sl)
    a("""
    s_add_u32 s48, s48, 1
    s_cmp_lt_u32 s48, 7
    s_cbranch_scc1 p3g_loop
    """)
    for sl in range(4):
        a(f"s_waitcnt vmcnt({24 - 4*sl})")
        mm(sl)
        issue_w(sl)
    poll(a, 32, 64)
    a(f"""
    s_mov_b32 s28, {G_OFF}
    buffer_load_dword v10, v4, s[20:23], s28 offen offset:4 sc1
    buffer_load_dword v11, v4, s[20:23], s28 offen offset:260 sc1
    s_waitcnt vmcnt(0)
    """)
    for m in range(2):
        for rg in range(2):
            for r in range(16): a(f"v_mul_f32 v{ACC+16*(2*m+rg)+r}, v{10+rg}, v{ACC+16*(2*m+rg)+r}")
    st7(a, 13, tv=28)
    poll(a, 16, 64, slp=4, sreg="s66")
    for sl in range(4): issue_z(sl)
    for sl in range(4):
        a(f"s_waitcnt vmcnt({12 - 4*sl})")
        mm(sl)
    a("""
    s_lshl_b32 s28, s3, 14
    v_add_u32 v7, s28, v1
    s_nop 15
    s_barrier
    """)
    for bk in range(16): a(f"ds_write_b128 v7, v[{ACC+4*bk}:{ACC+4*bk+3}] offset:{bk*1024}")
    a("""
    s_waitcnt lgkmcnt(0)
    s_barrier
    s_lshl_b32 s28, s3, 12
    v_add_u32 v7, s28, v1
    """)
    for e in range(4):
        for w in range(4):
            d = 32 + 16 * e + 4 * w
            a(f"ds_read_b128 v[{d}:{d+3}], v7 offset:{w*16384 + e*1024}")
    a("""
    s_and_b32 s28, s3, 1
    s_lshl_b32 s28, s28, 5
    v_add_u32 v9, s28, v9
    v_lshlrev_b32 v9, 10, v9
    v_lshrrev_b32 v10, 5, v0
    v_lshl_add_u32 v9, v10, 3, v9
    s_lshl_b32 s28, s7, 7
    s_lshr_b32 s29, s3, 1
    s_lshl_b32 s29, s29, 6
    s_add_u32 s28, s28, s29
    """)
    for e in range(4):
        a(f"s_waitcnt lgkmcnt({4*(3-e)})")
        d = 32 + 16 * e
        for w in range(1, 4):
            for j in range(4): a(f"v_add_f32 v{d+j}, v{d+j}, v{d+4*w+j}")
        a(f"v_cvt_pk_bf16_f32 v{12+2*e}, v{d}, v{d+1}")
        a(f"v_cvt_pk_bf16_f32 v{13+2*e}, v{d+2}, v{d+3}")
        a(f"buffer_store_dwordx2 v[{12+2*e}:{13+2*e}], v9, s[16:19], s28 offen offset:{16*e}")
    if STAMP: a("s_waitcnt vmcnt(0)")
    st7(a, 14, real=True, tv=28)

if __name__ == "__main__":
    os.environ["NOSPLIT"] = "1"; os.environ["GSCALE"] = "1"
    if not os.environ.get("ROT"): os.environ["NOROT"] = "1"
    build([gen_k12], sys.argv[1] if len(sys.argv) > 1 else "out.s")
```

```python
from gen4 import *
import gen4
from gen2 import _stamp, VM
def st7(a, idx, tv=2, **kw):
    if os.environ.get("STK", "2") == "2": _stamp(a, idx, tv=tv, **kw)

STG = 49152
SLOT = 16384; NSL = 9; RING = NSL * SLOT
MISC = RING; FLAG = MISC + 8192; QX = 5 * SLOT
O_ = 192; QF = 160; S_ = (128, 144); NEGM = 112; P_ = (96, 104); Q2 = 64; FR = 32
NK = 24

def gen_k12(a):
    name = "mega_kernel"
    kernel_begin(a, name)
    a(f"""
    s_cmp_ge_u32 s2, 256
    s_cbranch_scc1 k1_end
    s_load_dwordx2 s[4:5], s[0:1], {KA_CKV}
    s_load_dwordx4 s[24:27], s[0:1], {KA_WUK}
    s_load_dwordx4 s[8:11], s[0:1], {KA_DBG}
    s_load_dwordx2 s[64:65], s[0:1], {KA_X}
    s_load_dwordx4 s[68:71], s[0:1], {KA_WK}
    s_load_dwordx2 s[72:73], s[0:1], {KA_GATE}
    s_load_dwordx2 s[54:55], s[0:1], {KA_BWQ}
    s_load_dwordx2 s[56:57], s[0:1], {KA_BWO}
    s_load_dwordx2 s[58:59], s[0:1], {KA_WQ}
    s_load_dwordx2 s[60:61], s[0:1], {KA_WO}
    s_load_dwordx2 s[74:75], s[0:1], {KA_OUT}
    v_lshrrev_b32 v2, 6, v0
    v_and_b32 v0, 63, v0
    v_lshlrev_b32 v1, 4, v0
    v_readfirstlane_b32 s3, v2
    s_and_b32 s6, s2, 31
    s_lshr_b32 s7, s2, 5
    s_waitcnt lgkmcnt(0)
    s_mov_b32 s30, s10
    s_mov_b32 s31, s11
    """)
    srd(a, 20, 30, WS_BYTES)
    srd(a, 80, 8, 256)
    srd(a, 76, 64, 2*MB); srd(a, 88, 72, 1024)
    a(f"""
    s_lshl_b32 s28, s6, 19
    s_add_u32 s84, s30, s28
    s_addc_u32 s85, s31, 0
    s_mov_b32 s86, 524288
    s_mov_b32 s87, 0x00020000
    s_add_u32 s32, s84, {VF_OFF - 16384}
    s_addc_u32 s33, s85, 0
    s_mov_b32 s34, 524288
    s_mov_b32 s35, 0x00020000
    """)
    st7(a, 0); st7(a, 15, real=True)
    srd(a, 36, 4, 2*MB)
    srd(a, 12, 24, 4*MB)
    a(f"""
    v_mov_b32 v30, 0
    v_mov_b32 v31, 0
    v_lshrrev_b32 v3, 3, v0
    v_lshrrev_b32 v4, 4, v0
    v_and_b32 v5, 7, v0
    v_xor_b32 v6, v5, v4
    v_xor_b32 v7, 4, v6
    v_lshlrev_b32 v3, 10, v3
    v_lshl_add_u32 v6, v6, 4, v3
    v_lshl_add_u32 v7, v7, 4, v3
    s_lshl_b32 s28, s7, 8
    s_lshl_b32 s29, s3, 5
    s_add_u32 s28, s28, s29
    s_lshl_b32 s28, s28, 10
    v_add_u32 v8, s28, v6
    v_add_u32 v9, s28, v7
    s_sub_u32 s28, 15, s7
    s_cmp_lt_u32 s3, 4
    s_cselect_b32 s28, s28, s7
    s_lshl_b32 s28, s28, 7
    s_and_b32 s29, s3, 3
    s_lshl_b32 s29, s29, 5
    s_add_u32 s28, s28, s29
    s_lshl_b32 s44, s28, 10
    v_add_u32 v11, s44, v6
    s_sub_u32 s44, s44, 0
    v_add_u32 v2, s44, v7
    v_and_b32 v5, 15, v0
    v_lshlrev_b32 v6, 2, v4
    v_xor_b32 v5, v5, v6
    s_lshl_b32 s28, s3, 3
    v_add_u32 v6, s28, v4
    v_lshlrev_b32 v6, 13, v6
    v_lshl_add_u32 v6, v5, 4, v6
    s_lshl_b32 s28, s6, 8
    v_add_u32 v10, s28, v6
    v_mov_b32 v112, v11
    v_mov_b32 v113, v2
    s_lshl_b32 s45, s3, 12
    s_lshl_b32 s46, s3, 11
    s_add_u32 s46, s46, 32768
    """)
    a("""
    s_lshr_b32 s42, s6, 3
    s_lshl_b32 s42, s42, 1
    s_add_u32 s42, s42, s7
    s_and_b32 s42, s42, 7
    s_lshl_b32 s42, s42, 7
    s_lshl_b32 s43, s42, 12
    """ if not os.environ.get("NOROT") else """
    s_mov_b32 s42, 0
    s_mov_b32 s43, 0
    """)
    vm = VM()
    def dma_ops(k):
        kt = k & 7; st = k % 3
        ops = []
        if k == 8: ops += ["s_mov_b32 s12, s26", "s_mov_b32 s13, s27"]
        if k == 16: ops += ["s_mov_b32 s12, s54", "s_mov_b32 s13, s55", "s_mov_b32 s36, s64", "s_mov_b32 s37, s65", "v_mov_b32 v8, v112", "v_mov_b32 v9, v113"]
        ops.append(f"s_add_u32 m0, s45, {st*STG}")
        for jj in range(4):
            ops.append(f"s_add_u32 s40, s42, {jj*7168}")
            ops.append(f"buffer_load_dwordx4 v{8 + (jj & 1)}, s[36:39], s40 offen offset:{jj*1024} lds")
        ops.append(f"s_add_u32 m0, s46, {st*STG}")
        ops.append(f"s_add_u32 s40, s43, {32768 - 1024}")
        ops.append(f"buffer_load_dwordx4 v10, s[12:15], s43 offen lds")
        ops.append(f"buffer_load_dwordx4 v10, s[12:15], s40 offen offset:1024 lds")
        ops.append("s_add_u32 s42, s42, 128")
        ops.append("s_and_b32 s42, s42, 1023")
        ops.append("s_lshl_b32 s43, s42, 12")
        return ops
    def emit(o, tag):
        a(o)
        if o.startswith("buffer_"): vm.issue(tag)
    for k in range(3):
        for o in dma_ops(k): emit(o, ("d", k))
    def touch_ops(which):
        if which == 0:
            return ["s_lshr_b32 s28, s2, 3", "s_lshl_b32 s28, s28, 3", "s_add_u32 s28, s28, s3", "s_lshl_b32 s28, s28, 13",
                    "v_lshlrev_b32 v2, 7, v0",
                    "buffer_load_dword v114, v2, s[36:39], s28 offen",
                    "v_bfe_u32 v3, v0, 1, 3", "v_lshlrev_b32 v3, 13, v3", "v_and_b32 v4, 1, v0", "v_lshl_add_u32 v3, v4, 7, v3",
                    "s_lshl_b32 s29, s7, 19", "s_lshl_b32 s41, s3, 16", "s_add_u32 s29, s29, s41", "s_lshl_b32 s41, s6, 8", "s_add_u32 s29, s29, s41",
                    "buffer_load_dword v115, v3, s[12:15], s29 offen",
                    "s_mov_b32 s92, s26", "s_mov_b32 s93, s27", f"s_mov_b32 s94, {4*MB}", "s_mov_b32 s95, 0x00020000",
                    "buffer_load_dword v116, v3, s[92:95], s29 offen"]
        if which == 1:
            return ["s_lshr_b32 s28, s2, 3", "s_lshl_b32 s28, s28, 3", "s_add_u32 s28, s28, s3", "s_lshl_b32 s28, s28, 13",
                    "buffer_load_dword v114, v2, s[76:79], s28 offen",
                    "s_mov_b32 s92, s54", "s_mov_b32 s93, s55",
                    "buffer_load_dword v115, v3, s[92:95], s29 offen"]
        if which == 2:
            return ["s_lshl_b32 s28, s2, 3", "s_add_u32 s28, s28, s3", "s_lshl_b32 s28, s28, 11", "v_and_b32 v4, 15, v0", "v_lshlrev_b32 v4, 7, v4",
                    "s_mov_b32 s92, s56", "s_mov_b32 s93, s57",
                    "buffer_load_dword v114, v4, s[92:95], s28 offen",
                    "s_mov_b32 s92, s58", "s_mov_b32 s93, s59", f"s_mov_b32 s94, {512*1024}",
                    "buffer_load_dword v115, v4, s[92:95], s28 offen",
                    "s_mov_b32 s92, s60", "s_mov_b32 s93, s61",
                    "buffer_load_dword v116, v4, s[92:95], s28 offen"]
    a("""
    v_and_b32 v3, 31, v0
    s_lshr_b32 s28, s3, 1
    s_lshl_b32 s28, s28, 6
    v_add_u32 v3, s28, v3
    v_lshlrev_b32 v3, 7, v3
    v_lshrrev_b32 v5, 5, v0
    v_bfe_u32 v6, v0, 1, 3
    v_xor_b32 v5, v5, v6
    v_lshl_add_u32 v12, v5, 4, v3
    v_xor_b32 v13, 32, v12
    v_xor_b32 v14, 64, v12
    v_xor_b32 v15, 96, v12
    """)
    for st in (1, 2):
        for s in range(4): a(f"v_add_u32 v{12+4*st+s}, {st*STG}, v{12+s}")
    a("""
    v_lshrrev_b32 v3, 5, v0
    v_bfe_u32 v5, v0, 2, 2
    v_lshl_add_u32 v3, v3, 3, v5
    v_lshlrev_b32 v3, 8, v3
    v_bfe_u32 v6, v0, 4, 1
    v_lshl_add_u32 v3, v6, 5, v3
    v_and_b32 v6, 3, v0
    v_lshl_add_u32 v3, v6, 3, v3
    v_lshl_add_u32 v3, v5, 6, v3
    s_and_b32 s28, s3, 1
    s_lshl_b32 s28, s28, 7
    v_xor_b32 v3, s28, v3
    v_add_u32 v24, 32768, v3
    v_xor_b32 v25, 64, v24
    """)
    for st in (1, 2):
        for m in range(2): a(f"v_add_u32 v{24+2*st+m}, {st*STG}, v{24+m}")
    ACC = (128, 192, 128)
    a(f"""
    s_lshl_b32 s28, s6, 19
    s_lshl_b32 s29, s7, 16
    s_add_u32 s28, s28, s29
    s_lshr_b32 s29, s3, 1
    s_lshl_b32 s29, s29, 14
    s_add_u32 s28, s28, s29
    s_and_b32 s29, s3, 1
    s_lshl_b32 s48, s29, 12
    s_add_u32 s48, s48, s28
    s_add_u32 s48, s48, {KF_OFF}
    s_add_u32 s49, s48, 8192
    s_lshl_b32 s50, s29, 11
    s_add_u32 s50, s50, s28
    s_add_u32 s50, s50, {VF_OFF}
    s_add_u32 s51, s50, 4096
    s_add_u32 s52, s50, 8192
    s_add_u32 s53, s50, 12288
    """)
    FB = 64
    def read_ops(u):
        k = u >> 2; s = u & 3; st = k % 3
        f = FB + 16 * (u % 3)
        ca = 12 + 4 * st + s
        ops = [f"ds_read_b128 v[{f}:{f+3}], v{ca}",
               f"ds_read_b128 v[{f+4}:{f+7}], v{ca} offset:4096"]
        for m in range(2):
            wa = 24 + 2 * st + m
            ops.append(f"ds_read_b64_tr_b16 v[{f+8+4*m}:{f+9+4*m}], v{wa} offset:{s*4096}")
            ops.append(f"ds_read_b64_tr_b16 v[{f+10+4*m}:{f+11+4*m}], v{wa} offset:{s*4096+1024}")
        return ops
    def epi_ops(ps):
        ops = []; n = 0
        for m in range(2):
            for kb in range(2):
                acc = ACC[ps] + 16 * (m * 2 + kb)
                for g in range(2):
                    tmp = 32 + 4 * (n % 8); n += 1
                    for i in range(4):
                        ops.append(f"v_cvt_pk_bf16_f32 v{tmp+i}, v{acc+8*g+2*i}, v{acc+8*g+2*i+1}")
                    if ps == 0: sreg, off = 48 + kb, (2 * m + g) * 1024
                    else:       sreg, off = 50 + 2 * kb + g, m * 1024
                    ops.append(f"buffer_store_dwordx4 v[{tmp}:{tmp+3}], v1, s[20:23], s{sreg} offen offset:{off}" + ("" if os.environ.get("PLAINST") else " sc1"))
        return ops
    a(f"""
    s_waitcnt vmcnt({vm.need({("d", 0)})})
    s_barrier
    """)
    a(f"""
    s_cmp_lg_u32 s2, 0
    s_cbranch_scc1 k1_noinit
    s_cmp_lg_u32 s3, 6
    s_cbranch_scc1 k1_noinit
    v_lshlrev_b32 v2, 8, v0
    v_mov_b32 v3, 0
    s_mov_b32 s28, {CNT_OFF}
    buffer_store_dword v3, v2, s[20:23], s28 offen sc1
    s_waitcnt vmcnt(0)
    v_mov_b32 v2, 1
    s_mov_b32 s28, 248
    s_mov_b64 exec, 1
    buffer_atomic_add v2, v3, s[80:83], s28 offen sc1
    s_mov_b64 exec, -1
    s_waitcnt vmcnt(0)
    k1_noinit:
    """)
    st7(a, 4)
    for o in read_ops(0) + read_ops(1): a(o)
    def c_dma():
        for (sd, lo) in ((84, 0), (32, 8192)):
            for g in range(2):
                a(f"s_add_u32 m0, s53, {lo + g*4096}")
                a(f"s_add_u32 s28, s52, {g*4096}")
                for i in range(4):
                    a(f"buffer_load_dwordx4 v1, s[{sd}:{sd+3}], s28 offen offset:{i*1024} sc1 lds")
        a(f"""
        s_add_u32 s52, s52, 8192
        s_add_u32 s53, s53, {SLOT}
        s_cmp_ge_u32 s53, {RING}
        s_cselect_b32 s53, 0, s53
        """)
    def need_rb():
        l0 = a.newlabel("l_rbok"); l1 = a.newlabel("l_rbpoll"); l2 = a.newlabel("l_rbgot")
        a(f"""
        s_lshr_b32 s28, s52, 13
        s_add_u32 s28, s28, 4
        s_lshr_b32 s28, s28, 3
        s_min_u32 s28, s28, 7
        s_lshl_b32 s29, 2, s28
        s_sub_u32 s29, s29, 1
        s_and_b32 s28, s61, s29
        s_cmp_eq_u32 s28, s29
        s_cbranch_scc1 {l0}
        s_lshr_b32 s40, s6, 2
        s_lshl_b32 s40, s40, 2
        v_mov_b32 v3, 0
        s_mov_b32 s41, 0
        {l1}:
        buffer_load_dword v2, v3, s[80:83], s40 offen sc1
        s_and_b32 s28, s6, 3
        s_lshl_b32 s28, s28, 3
        s_waitcnt vmcnt(0)
        v_readfirstlane_b32 s61, v2
        s_lshr_b32 s61, s61, s28
        s_and_b32 s28, s61, s29
        s_cmp_eq_u32 s28, s29
        s_cbranch_scc1 {l2}
        s_sleep 4
        s_add_u32 s41, s41, 1
        s_cmp_lt_u32 s41, 0x100000
        s_cbranch_scc1 {l1}
        {l2}:
        {l0}:
        """)
    def task_setup():
        a("""
        s_sub_u32 s47, 15, s7
        s_cmp_eq_u32 s46, 0
        s_cselect_b32 s47, s47, s7
        s_lshl_b32 s50, s47, 2
        s_add_u32 s50, s50, 4
        """)
    XW = MISC
    XP = MISC + 8192 + 256
    def extra_loads(r):
        a(f"""
        s_sub_u32 s40, s3, 5
        s_lshl_b32 s28, s2, 15
        s_lshl_b32 s29, s40, 7
        s_add_u32 s29, s29, {r*256}
        s_add_u32 s28, s28, s29
        """)
        for s in range(4): a(f"buffer_load_dwordx4 v[{112+4*s}:{115+4*s}], v30, s[76:79], s28 offen offset:{s*32}")
        for s in range(4): a(f"buffer_load_dwordx4 v[{160+4*s}:{163+4*s}], v31, s[88:91], s29 offen offset:{s*32}")
        a(f"""
        s_lshl_b32 s28, s40, 12
        s_add_u32 m0, s28, {XW}
        s_lshl_b32 s29, s40, 11
        s_add_u32 s29, s29, {r*4096}
        s_mov_b32 s92, s70
        s_mov_b32 s93, s71
        s_mov_b32 s94, 16384
        s_mov_b32 s95, 0x00020000
        buffer_load_dwordx4 v1, s[92:95], s29 offen lds
        buffer_load_dwordx4 v1, s[92:95], s29 offen offset:1024 lds
        s_add_u32 m0, s28, {XW + 2048}
        s_mov_b32 s92, s68
        s_mov_b32 s93, s69
        buffer_load_dwordx4 v1, s[92:95], s29 offen lds
        buffer_load_dwordx4 v1, s[92:95], s29 offen offset:1024 lds
        """)
    def extra_compute(r):
        a(f"""
        s_sub_u32 s40, s3, 5
        s_lshl_b32 s29, s2, 15
        s_lshl_b32 s28, s40, 12
        s_add_u32 s29, s29, s28
        s_add_u32 s29, s29, {XF_OFF + r*8192}
        s_waitcnt vmcnt(0)
        """)
        for s in range(4):
            a(f"ds_read_b64_tr_b16 v[{176+4*s}:{177+4*s}], v6 offset:{s*512}")
            a(f"ds_read_b64_tr_b16 v[{178+4*s}:{179+4*s}], v6 offset:{s*512+128}")
        a("s_waitcnt lgkmcnt(0)")
        for s in range(4):
            xf = 112 + 4 * s; wf = 176 + 4 * s
            first = (r == 0 and s == 0)
            a(f"{MFMA} v[128:143], v[{wf}:{wf+3}], v[{xf}:{xf+3}], {'0' if first else 'v[128:143]'}")
            a(f"{MFMA} v[144:159], v[{xf}:{xf+3}], v[{wf}:{wf+3}], {'0' if first else 'v[144:159]'}")
            for i in range(4): a(f"v_dot2_f32_bf16 v7, v{xf+i}, v{160+4*s+i}, v7")
    def extra_part(k):
        l = f"k1_x{k}"
        if k == 10:
            a(f"""
            v_and_b32 v30, 31, v0
            v_lshrrev_b32 v31, 5, v0
            v_lshlrev_b32 v30, 10, v30
            v_lshlrev_b32 v31, 4, v31
            v_add_u32 v30, v31, v30
            v_lshrrev_b32 v5, 4, v0
            v_and_b32 v4, 15, v0
            v_and_b32 v6, 1, v5
            v_lshlrev_b32 v6, 11, v6
            v_lshrrev_b32 v2, 1, v5
            v_lshlrev_b32 v2, 3, v2
            v_lshrrev_b32 v3, 2, v4
            v_add_u32 v2, v2, v3
            v_lshl_add_u32 v6, v2, 5, v6
            v_and_b32 v3, 3, v4
            v_lshl_add_u32 v6, v3, 3, v6
            s_sub_u32 s40, s3, 5
            s_lshl_b32 s28, s40, 12
            s_add_u32 s28, s28, {XW}
            v_add_u32 v6, s28, v6
            v_mov_b32 v7, 0
            """)
            extra_loads(0)
        if 11 <= k <= 14:
            extra_compute(k - 11)
            if k < 14:
                a("s_nop 3")
                extra_loads(k - 10)
        if k == 14:
            a(f"""
            s_cmp_lg_u32 s3, 6
            s_cbranch_scc1 {l}
            v_add_u32 v2, {XP}, v1
            v_lshlrev_b32 v3, 2, v0
            v_add_u32 v3, {XP + 6144}, v3
            s_nop 15
            """)
            for b in range(6): a(f"ds_write_b128 v2, v[{136+4*b}:{139+4*b}] offset:{b*1024}")
            a("ds_write_b32 v3, v7")
            a("s_waitcnt lgkmcnt(0)")
        if k == 15:
            a(f"""
            s_cmp_lg_u32 s3, 5
            s_cbranch_scc1 {l}
            v_add_u32 v2, {XP}, v1
            v_lshlrev_b32 v3, 2, v0
            v_add_u32 v3, {XP + 6144}, v3
            """)
            for b in range(6): a(f"ds_read_b128 v[{160+4*b}:{163+4*b}], v2 offset:{b*1024}")
            a("ds_read_b32 v184, v3")
            a("s_waitcnt lgkmcnt(0)")
            for r in range(24): a(f"v_add_f32 v{136+r}, v{136+r}, v{160+r}")
            a("v_add_f32 v7, v7, v184")
            pack8(a, 160, 136); pack8(a, 164, 144); pack8(a, 168, 152)
            a(f"""
            s_lshl_b32 s28, s2, 10
            s_add_u32 s29, s28, {KA_OFF}
            buffer_store_dwordx4 v[160:163], v1, s[20:23], s29 offen sc1
            v_and_b32 v2, 31, v0
            v_lshrrev_b32 v3, 5, v0
            v_lshl_add_u32 v3, v3, 4, v2
            v_lshlrev_b32 v3, 4, v3
            s_add_u32 s29, s28, {VA_OFF}
            v_cmp_gt_u32 vcc, 16, v2
            s_and_saveexec_b64 s[62:63], vcc
            buffer_store_dwordx4 v[164:167], v3, s[20:23], s29 offen sc1
            buffer_store_dwordx4 v[168:171], v3, s[20:23], s29 offen offset:512 sc1
            s_mov_b64 exec, s[62:63]
            v_mov_b32 v2, v7
            s_nop 1
            v_permlane32_swap_b32 v2, v7
            s_nop 1
            v_add_f32 v7, v7, v2
            v_cvt_pk_bf16_f32 v7, v7, v7
            v_lshlrev_b32 v7, 16, v7
            v_mul_f32 v7, {f32hex(-LOG2E)}, v7
            v_exp_f32 v7, v7
            s_nop 0
            v_add_f32 v7, 1.0, v7
            v_rcp_f32 v7, v7
            s_nop 0
            v_cvt_pk_bf16_f32 v7, v7, v7
            v_lshlrev_b32 v172, 16, v7
            v_sub_f32 v173, 1.0, v172
            v_cvt_pk_bf16_f32 v173, v173, v173
            v_lshlrev_b32 v173, 16, v173
            v_lshlrev_b32 v3, 3, v0
            s_lshl_b32 s28, s2, 8
            s_add_u32 s28, s28, {G_OFF}
            v_cmp_gt_u32 vcc, 32, v0
            s_and_saveexec_b64 s[62:63], vcc
            buffer_store_dwordx2 v[172:173], v3, s[20:23], s28 offen sc1
            s_mov_b64 exec, s[62:63]
            """)
            signal(a, 32)
        a.label(l)
    epiK = epi_ops(0); epiV = epi_ops(1)
    SIG = 20
    for k in range(NK):
        ps = k >> 3
        for s in range(4):
            u = 4 * k + s
            extra = []
            if s == 2 and k + 1 < NK:
                if k == SIG - 1: vm.q = []; a("s_waitcnt vmcnt(0) lgkmcnt(0)")
                elif ('d', k + 1) not in vm.q: a("s_waitcnt lgkmcnt(0)")
                elif k == 22:
                    a("s_cmp_eq_u32 s3, 7")
                    a("s_cbranch_scc1 k1_w22")
                    a(f"s_waitcnt vmcnt({vm.need({('d', k + 1)})})")
                    a.label("k1_w22")
                    a("s_waitcnt lgkmcnt(0)")
                else: a(f"s_waitcnt vmcnt({vm.need({('d', k + 1)})}) lgkmcnt(0)")
                a("s_barrier")
                if k in (7, 15): st7(a, 5 + (k >> 3)); vm.issue("st") if STAMP else None
                if k >= 17 and not os.environ.get("P0ST"): st7(a, 7 + k - 17); vm.issue("st") if STAMP else None
                if k < 5 and os.environ.get("P0ST"): st7(a, 7 + k, tv=118); vm.issue("st") if STAMP else None
                if k == SIG - 1:
                    a(f"""
                    s_cmp_lg_u32 s3, 0
                    s_cbranch_scc1 k1_nosig
                    s_and_b32 s28, s6, 3
                    s_lshl_b32 s28, s28, 3
                    s_add_u32 s28, s28, s7
                    s_lshl_b32 s29, 1, s28
                    s_lshr_b32 s28, s6, 2
                    s_lshl_b32 s28, s28, 2
                    v_mov_b32 v2, s29
                    v_mov_b32 v3, 0
                    s_mov_b64 exec, 1
                    buffer_atomic_or v2, v3, s[80:83], s28 offen sc1
                    s_mov_b64 exec, -1
                    k1_nosig:
                    """)
                if k + 3 < NK: extra = [(o, ("d", k + 3)) for o in dma_ops(k + 3)]
                if k >= 21:
                    a("s_cmp_lg_u32 s3, 7")
                    a(f"s_cbranch_scc1 k1_d{k}")
                    if k == 21:
                        a("""
                        s_mov_b32 s46, 0
                        s_mov_b32 s60, 0
                        s_mov_b32 s61, 0
                        """)
                        task_setup()
                        a("""
                        s_lshl_b32 s86, s50, 13
                        s_add_u32 s34, s86, 16384
                        s_mov_b32 s52, 0
                        s_mov_b32 s53, 0
                        """)
                        need_rb(); c_dma(); c_dma(); c_dma()
                    if k == 22:
                        c_dma(); c_dma()
                    a.label(f"k1_d{k}")
            else:
                a(f"s_waitcnt lgkmcnt({6 if u + 1 < 4*NK else 0})")
            if s == 0:
                TV, TX, TW = [int(x) for x in os.environ.get("TT", "0,4,11").split(",")]
                t0 = touch_ops(0)
                if k == 0: extra = [(o, "t") for o in t0[:-1]]
                if k == TV: extra = extra + [(t0[-1], "t")]
                if k == TX: extra = extra + [(o, "t") for o in touch_ops(1)]
                if k == TW: extra = extra + [(o, "t") for o in touch_ops(2)]
            if s < 2 and 8 <= k < 12:
                i = (k - 8) * 2 + s; extra = extra + [(o, "s") for o in epiK[5*i:5*i+5]]
            if s == 3: extra = carry
            if s == 2: carry = extra[len(extra)//2:]; extra = extra[:len(extra)//2]
            if 16 <= k < 18:
                i = (k - 16) * 4 + s; extra = extra + [(o, "s") for o in epiV[5*i:5*i+5]]
            rq = read_ops(u + 2) if u + 2 < 4 * NK else []
            f = FB + 16 * (u % 3)
            i = 0
            for m in range(2):
                for kb in range(2):
                    acc = ACC[ps] + 16 * (m * 2 + kb)
                    c = f"v[{f+4*kb}:{f+4*kb+3}]"; w = f"v[{f+8+4*m}:{f+11+4*m}]"
                    ci = "0" if (u & 31) == 0 else f"v[{acc}:{acc+15}]"
                    if ps == 1: a(f"{MFMA} v[{acc}:{acc+15}], {c}, {w}, {ci}")
                    else:       a(f"{MFMA} v[{acc}:{acc+15}], {w}, {c}, {ci}")
                    for o in rq[2*i: 2*i+2]: a(o)
                    ne = -(-len(extra) // (4 - i))
                    for o, t in extra[:ne]: emit(o, t)
                    extra = extra[ne:]
                    i += 1
    a(f"""
    s_barrier
    s_mov_b32 s28, {f32hex(LOG2E * 128 ** -0.5)}
    s_lshr_b32 s29, s3, 1
    s_lshl_b32 s29, s29, 14
    s_and_b32 s40, s3, 1
    s_lshl_b32 s40, s40, 12
    s_add_u32 s29, s29, s40
    s_add_u32 s29, s29, {QX}
    v_add_u32 v2, s29, v1
    s_nop 7
    """)
    for r in range(64): a(f"v_mul_f32 v{128+r}, s28, v{128+r}")
    n = 0
    for m in range(2):
        for kb in range(2):
            for g in range(2):
                tmp = 32 + 4 * n; n += 1
                pack8(a, tmp, 128 + 16 * (m * 2 + kb) + 8 * g)
                a(f"ds_write_b128 v2, v[{tmp}:{tmp+3}] offset:{kb*8192 + (2*m+g)*1024}")
    a("""
    s_waitcnt lgkmcnt(0)
    s_barrier
    s_cmp_eq_u32 s3, 7
    s_cbranch_scc1 l_task
    s_cmp_ge_u32 s3, 4
    s_cbranch_scc1 k1_side
    """)
    attn_compute(a, task_setup)
    side_workers(a, task_setup, extra_part)
    attn_loader(a, task_setup, c_dma, need_rb)
    phase3_A(a)
    phase3_G(a)
    a.label("k1_end")
    a("s_endpgm")
    return name, f"grid=(256,1,1) block=(512,1,1) lds={RING + 16384}", kernel_desc(name, 256)

def read_flags(a, tmp):
    a(f"""
    v_mov_b32 v{tmp}, {FLAG}
    ds_read_b128 v[{tmp+2}:{tmp+5}], v{tmp}
    s_waitcnt lgkmcnt(0)
    v_or3_b32 v{tmp}, v{tmp+2}, v{tmp+3}, v{tmp+4}
    v_or_b32 v{tmp}, v{tmp}, v{tmp+5}
    s_nop 0
    v_readfirstlane_b32 s28, v{tmp}
    """)

def attn_loader(a, task_setup, c_dma, need_rb):
    a.label("l_task")
    a("s_mov_b32 s58, 0")
    a.label("l_loop")
    a("s_waitcnt vmcnt(0)")
    a("s_barrier")
    a("s_mov_b32 s59, 0")
    need_rb()
    a.label("l_in")
    c_dma()
    a("""
    s_add_u32 s59, s59, 1
    s_cmp_lt_u32 s59, 4
    s_cbranch_scc1 l_in
    s_add_u32 s58, s58, 4
    s_add_u32 s28, s50, 2
    s_cmp_lt_u32 s58, s28
    s_cbranch_scc1 l_loop
    s_waitcnt vmcnt(0)
    s_barrier
    """)
    read_flags(a, 32)
    a("""
    s_cmp_eq_u32 s28, 0
    s_cbranch_scc1 l_ok
    s_cmp_lg_u32 s60, 0
    s_cbranch_scc1 l_ok
    s_mov_b32 s60, 1
    s_mov_b32 s58, 0
    """)
    a.label("l_max")
    a("s_lshl_b32 s52, s58, 13")
    for g in range(2):
        a(f"s_mov_b32 m0, {g*4096}")
        a(f"s_add_u32 s28, s52, {g*4096}")
        for i in range(4): a(f"buffer_load_dwordx4 v1, s[84:87], s28 offen offset:{i*1024} sc1 lds")
    a("""
    s_waitcnt vmcnt(0)
    s_barrier
    s_barrier
    s_add_u32 s58, s58, 1
    s_cmp_lt_u32 s58, s50
    s_cbranch_scc1 l_max
    s_branch l_pro
    """)
    a.label("l_ok")
    a("""
    s_mov_b32 s60, 0
    s_add_u32 s46, s46, 1
    s_cmp_ge_u32 s46, 2
    s_cbranch_scc1 p3_a
    """)
    task_setup()
    a("s_lshl_b32 s86, s50, 13")
    a("s_add_u32 s34, s86, 16384")
    a.label("l_pro")
    a("""
    s_mov_b32 s52, 0
    s_mov_b32 s53, 0
    s_mov_b32 s59, 0
    """)
    a.label("l_pro1")
    c_dma()
    a("""
    s_add_u32 s59, s59, 1
    s_cmp_lt_u32 s59, 5
    s_cbranch_scc1 l_pro1
    s_branch l_task
    """)

def attn_compute(a, task_setup):
    a(f"""
    s_lshl_b32 s28, s3, 13
    s_add_u32 s28, s28, {QX}
    v_add_u32 v2, s28, v1
    v_and_b32 v3, 31, v0
    v_lshrrev_b32 v4, 5, v0
    v_lshlrev_b32 v18, 2, v4
    v_sub_u32 v18, v3, v18
    s_mov_b32 s46, 0
    s_mov_b32 s60, 0
    """)
    for s in range(8): a(f"ds_read_b128 v[{QF+4*s}:{QF+4*s+3}], v2 offset:{s*1024}")
    for s in range(8): a(f"ds_read_b128 v[{Q2+4*s}:{Q2+4*s+3}], v2 offset:{32768 + s*1024}")
    task_setup()
    a("s_waitcnt lgkmcnt(0)")
    st7(a, 1, tv=28)
    a.label("b_task")
    a("""
    s_lshl_b32 s28, s47, 7
    s_lshl_b32 s29, s3, 5
    s_add_u32 s48, s28, s29
    s_sub_u32 s49, s50, 3
    s_add_u32 s49, s49, s3
    """)
    for r in range(64): a(f"v_mov_b32 v{O_+r}, 0")
    for r in range(4): a(f"v_mov_b32 v{24+r}, 0")
    a(f"""
    s_mov_b32 s56, {SLOT}
    s_mov_b32 s58, 0
    v_mov_b32 v20, v1
    """)
    def apply_mask(base):
        a("v_mov_b32 v19, 0xff800000")
        for r in range(16):
            a(f"v_cmp_gt_i32 vcc, {8*(r>>2)+(r&3)}, v18")
            a("s_nop 1")
            a(f"v_cndmask_b32 v{base+r}, v{base+r}, v19, vcc")
    def sm_ops(par):
        S = S_[par]; P = P_[par]
        ops = []
        for r in range(16):
            ops.append(f"v_exp_f32 v{S+r}, v{S+r}")
            if r >= 1: ops.append(f"v_add_f32 v{24+((r-1)&3)}, v{24+((r-1)&3)}, v{S+r-1}")
            if r & 1: ops.append(f"v_cvt_pk_bf16_f32 v{P+(r>>1)}, v{S+r-1}, v{S+r}")
        ops.append(f"v_add_f32 v27, v27, v{S+15}")
        return ops
    def cost(o): return 8 if o.startswith("v_exp") else 4
    def iteration(par, doQK, doSM, doPV, prefetched, extra=(), cinit=None, last=()):
        M = (list(range(8)) if doQK else []) + (list(range(8, 16)) if doPV else [])
        seq = M + (list(range(16, 20)) if doQK else [])
        book = [f"v_add_u32 v{20+(par^1)}, s56, v1",
                f"s_add_u32 s56, s56, {SLOT}",
                f"s_cmp_ge_u32 s56, {RING}",
                "s_cselect_b32 s56, 0, s56"] + list(extra)
        fill = sm_ops(par ^ 1) if doSM else []
        nM = len(M)
        if nM == 0:
            for o in book + fill + list(last): a(o)
            return
        def rdi(idx):
            j = seq[idx]; f = FR + 4 * (idx & 7)
            if j < 16: return f"ds_read_b128 v[{f}:{f+3}], v{20+par} offset:{j*1024}"
            return f"ds_read_b128 v[{f}:{f+3}], v{20+(par^1)} offset:{(j-16)*1024}"
        def mfi(idx):
            n = seq[idx]; f = FR + 4 * (idx & 7)
            if n < 8:
                S = S_[par]
                c = (cinit or f"v[{NEGM}:{NEGM+15}]") if n == 0 else f"v[{S}:{S+15}]"
                return f"{MFMA} v[{S}:{S+15}], v[{f}:{f+3}], v[{QF+4*n}:{QF+4*n+3}], {c}"
            k = n - 8; ks = k >> 2; b = k & 3
            P = P_[par]
            return f"{MFMA} v[{O_+16*b}:{O_+16*b+15}], v[{f}:{f+3}], v[{P+4*ks}:{P+4*ks+3}], v[{O_+16*b}:{O_+16*b+15}]"
        if not (prefetched and doQK):
            for idx in range(4): a(rdi(idx))
        nv = nM - nM // 4
        tot = sum(cost(o) for o in fill)
        done = 0; gi = 0
        for p in range(nM):
            if p % 4 == 0: a("s_waitcnt lgkmcnt(0)")
            a(mfi(p))
            if p == nM - 1:
                for o in last: a(o)
            if p % 4 == 0:
                if p == 0:
                    for o in book: a(o)
                for idx in range(p + 4, min(p + 8, len(seq))): a(rdi(idx))
            else:
                gi += 1
                tgt = tot * gi / nv
                while fill and (done + cost(fill[0]) / 2 <= tgt or gi == nv):
                    done += cost(fill[0]); a(fill.pop(0))
        assert not fill
    a.label("b_loop")
    a("""
    s_and_b32 s28, s58, 3
    s_cmp_lg_u32 s28, 0
    s_cbranch_scc1 b_slow2
    s_cmp_lt_u32 s58, 4
    s_cbranch_scc1 b_slow
    s_add_u32 s28, s58, 8
    s_cmp_gt_u32 s28, s50
    s_cbranch_scc1 b_slow
    s_sub_u32 s59, s50, 4
    """)
    a.label("b_fast")
    a("s_barrier")
    iteration(0, True, True, True, True)
    iteration(1, True, True, True, True)
    iteration(0, True, True, True, True)
    iteration(1, True, True, True, True, ["s_add_u32 s58, s58, 4"], last=["s_cmp_lt_u32 s58, s59"])
    a("s_cbranch_scc1 b_fast")
    a.label("b_slow")
    a("s_barrier")
    a.label("b_slow2")
    for par in (0, 1):
        lnext = a.newlabel("b_next"); lns = a.newlabel("b_nonsteady"); ld = a.newlabel("b_nodiag")
        a("s_add_u32 s28, s58, 1")
        a("s_cmp_lg_u32 s28, s49")
        a(f"s_cbranch_scc1 {ld}")
        apply_mask(NEGM)
        a.label(ld)
        a("s_cmp_lt_u32 s58, 2")
        a(f"s_cbranch_scc1 {lns}")
        a("s_cmp_ge_u32 s58, s49")
        a(f"s_cbranch_scc1 {lns}")
        iteration(par, True, True, True, True)
        a(f"s_branch {lnext}")
        a.label(lns)
        l_g = a.newlabel("b_ge"); l_pv = a.newlabel("b_pv"); l_none = a.newlabel("b_none"); l_sm = a.newlabel("b_sm")
        a("s_cmp_ge_u32 s58, s49")
        a(f"s_cbranch_scc1 {l_g}")
        if par == 0:
            lr = a.newlabel("b_g0raw")
            a("s_cmp_eq_u32 s60, 0")
            a(f"s_cbranch_scc1 {lr}")
            iteration(0, True, False, False, False)
            a(f"s_branch {lnext}")
            a.label(lr)
            iteration(0, True, False, False, False, cinit="0")
            a("s_nop 15")
            lm = a.newlabel("b_nomask0")
            a("s_cmp_lg_u32 s49, 1")
            a(f"s_cbranch_scc1 {lm}")
            apply_mask(S_[0])
            a.label(lm)
            S = S_[0]
            a(f"v_max3_f32 v22, v{S}, v{S+1}, v{S+2}")
            for r in range(3, 15, 2): a(f"v_max3_f32 v22, v22, v{S+r}, v{S+r+1}")
            a(f"v_max_f32 v22, v22, v{S+15}")
            a("""
            v_mov_b32 v19, v22
            s_nop 1
            v_permlane32_swap_b32 v19, v22
            s_nop 1
            v_max_f32 v22, v22, v19
            """)
            for r in range(16): a(f"v_sub_f32 v{S+r}, v{S+r}, v22")
            for r in range(16): a(f"v_sub_f32 v{NEGM+r}, 0, v22")
        else:
            iteration(1, True, True, False, True)
        a(f"s_branch {lnext}")
        a.label(l_g)
        a("s_cmp_eq_u32 s58, s49")
        a(f"s_cbranch_scc0 {l_pv}")
        a("s_cmp_lt_u32 s58, 2")
        a(f"s_cbranch_scc1 {l_sm}")
        iteration(par, False, True, True, False)
        a(f"s_branch {lnext}")
        a.label(l_sm)
        iteration(par, False, True, False, False)
        a(f"s_branch {lnext}")
        a.label(l_pv)
        a("s_add_u32 s28, s49, 1")
        a("s_cmp_eq_u32 s58, s28")
        a(f"s_cbranch_scc0 {l_none}")
        a("s_nop 1")
        iteration(par, False, False, True, False)
        a(f"s_branch {lnext}")
        a.label(l_none)
        iteration(par, False, False, False, False)
        a.label(lnext)
        a("s_add_u32 s58, s58, 1")
    a("s_add_u32 s28, s50, 2")
    a("s_cmp_lt_u32 s58, s28")
    a("s_cbranch_scc1 b_loop")
    if STAMP:
        a("s_cmp_lg_u32 s46, 0"); a("s_cbranch_scc1 b_st2"); st7(a, 2, tv=28); a.label("b_st2")
    a(f"""
    s_nop 7
    v_add_f32 v24, v24, v25
    v_add_f32 v26, v26, v27
    v_add_f32 v24, v24, v26
    v_mov_b32 v19, v24
    s_nop 1
    v_permlane32_swap_b32 v19, v24
    s_nop 1
    v_add_f32 v24, v24, v19
    v_rcp_f32 v26, v24
    v_mov_b32 v19, 0
    """)
    for r in range(64): a(f"v_fma_f32 v19, v{O_+r}, 0, v19")
    a(f"""
    s_mov_b32 s28, {f32hex(2.0**THR)}
    v_cmp_nle_f32 vcc, v24, s28
    v_cmp_u_f32 s[62:63], v19, v19
    s_or_b64 s[62:63], s[62:63], vcc
    s_cmp_lg_u64 s[62:63], 0
    s_cselect_b32 s28, 1, 0
    v_mov_b32 v19, s28
    s_lshl_b32 s29, s3, 2
    s_lshl_b32 s40, s46, 4
    s_add_u32 s29, s29, {FLAG}
    v_mov_b32 v22, s29
    ds_write_b32 v22, v19
    s_waitcnt lgkmcnt(0)
    s_barrier
    """)
    read_flags(a, 32)
    a("""
    s_cmp_eq_u32 s28, 0
    s_cbranch_scc1 b_ok
    s_cmp_lg_u32 s60, 0
    s_cbranch_scc1 b_ok
    s_mov_b32 s60, 1
    s_mov_b32 s58, 0
    v_mov_b32 v22, 0xff800000
    """)
    a.label("b_maxloop")
    a("""
    s_barrier
    s_cmp_ge_u32 s58, s49
    s_cbranch_scc1 b_maxskip
    """)
    for n in range(8): a(f"ds_read_b128 v[{FR+4*n}:{FR+4*n+3}], v1 offset:{n*1024}")
    a("s_waitcnt lgkmcnt(0)")
    for n in range(8):
        S = S_[0]
        c = "0" if n == 0 else f"v[{S}:{S+15}]"
        a(f"{MFMA} v[{S}:{S+15}], v[{FR+4*n}:{FR+4*n+3}], v[{QF+4*n}:{QF+4*n+3}], {c}")
    a("""
    s_nop 15
    s_add_u32 s28, s58, 1
    s_cmp_lg_u32 s28, s49
    s_cbranch_scc1 b_maxnomask
    """)
    apply_mask(S_[0])
    a.label("b_maxnomask")
    for r in range(0, 16, 2): a(f"v_max3_f32 v22, v22, v{S_[0]+r}, v{S_[0]+r+1}")
    a.label("b_maxskip")
    a("""
    s_barrier
    s_add_u32 s58, s58, 1
    s_cmp_lt_u32 s58, s50
    s_cbranch_scc1 b_maxloop
    v_mov_b32 v19, v22
    s_nop 1
    v_permlane32_swap_b32 v19, v22
    s_nop 1
    v_max_f32 v22, v22, v19
    """)
    for r in range(16): a(f"v_sub_f32 v{NEGM+r}, 0, v22")
    a("s_branch b_task")
    a.label("b_ok")
    a("""
    s_mov_b32 s60, 0
    s_add_u32 s46, s46, 1
    """)
    task_setup()
    for r in range(64): a(f"v_mul_f32 v{O_+r}, v26, v{O_+r}")
    a(f"""
    s_lshr_b32 s28, s48, 5
    s_mul_i32 s28, s28, {ZF_RG}
    s_lshl_b32 s29, s6, 13
    s_add_u32 s28, s28, s29
    s_add_u32 s28, s28, {ZF_OFF}
    s_add_u32 s29, s28, 4096
    """)
    for kk in range(8):
        t = FR + 4 * kk
        pack8(a, t, O_ + 8 * kk)
        a(f"buffer_store_dwordx4 v[{t}:{t+3}], v1, s[20:23], s{28 + (kk >> 2)} offen offset:{(kk & 3) * 1024} sc1")
    for r in range(32): a(f"v_mov_b32 v{QF+r}, v{Q2+r}")
    a("""
    s_cmp_lt_u32 s46, 2
    s_cbranch_scc1 b_task
    """)
    st7(a, 3, tv=28)
    a("""
    s_waitcnt vmcnt(0)
    s_mov_b32 s49, s7
    s_branch p3_g
    """)

def cidx(a, base, sreg=None):
    if sreg is None: a(f"s_mov_b32 s40, {CNT_OFF + base*256}")
    else:
        a(f"s_lshl_b32 s40, {sreg}, 8"); a(f"s_add_u32 s40, s40, {CNT_OFF + base*256}")

def signal(a, base, sreg=None, wait=True):
    if wait: a("s_waitcnt vmcnt(0)")
    cidx(a, base, sreg)
    a(f"""
    v_mov_b32 v2, 1
    v_mov_b32 v3, 0
    s_mov_b64 exec, 1
    buffer_atomic_add v2, v3, s[20:23], s40 offen sc1
    s_mov_b64 exec, -1
    """)

def poll(a, base, target, slp=8, sreg=None, dbg=False):
    l1 = a.newlabel("poll"); l2 = a.newlabel("polled")
    if dbg: a(f"s_mov_b32 s40, {base}")
    else: cidx(a, base, sreg)
    a(f"""
    v_mov_b32 v3, 0
    s_mov_b32 s41, 0
    {l1}:
    buffer_load_dword v2, v3, s[{80 if dbg else 20}:{83 if dbg else 23}], s40 offen sc1
    s_waitcnt vmcnt(0)
    v_readfirstlane_b32 s29, v2
    s_cmp_ge_u32 s29, {target}
    s_cbranch_scc1 {l2}
    s_sleep {slp}
    s_add_u32 s41, s41, 1
    s_cmp_lt_u32 s41, 0x100000
    s_cbranch_scc1 {l1}
    {l2}:
    """)

def amap(a):
    a("""
    s_and_b32 s28, s2, 7
    s_lshl_b32 s28, s28, 1
    s_lshr_b32 s29, s2, 7
    s_add_u32 s66, s28, s29
    s_lshr_b32 s67, s2, 3
    s_and_b32 s67, s67, 15
    """)

def side_workers(a, task_setup, extra_part):
    a.label("k1_side")
    amap(a)
    WB = MISC + 8192 + 256
    a(f"""
    s_waitcnt vmcnt(0)
    s_mov_b32 s46, 0
    s_mov_b32 s44, 0
    s_sub_u32 s45, s3, 4
    v_and_b32 v4, 31, v0
    v_lshrrev_b32 v5, 5, v0
    v_lshlrev_b32 v12, 10, v4
    v_lshl_add_u32 v12, v5, 4, v12
    s_lshl_b32 s28, s66, 2
    s_add_u32 s28, s28, s45
    s_lshl_b32 s48, s28, 15
    s_lshl_b32 s49, s66, 2
    s_add_u32 s49, s49, 3
    s_lshl_b32 s49, s49, 15
    v_bfe_u32 v6, v0, 2, 2
    v_lshl_add_u32 v13, v5, 3, v6
    v_lshlrev_b32 v13, 6, v13
    v_lshl_add_u32 v14, v5, 2, v6
    v_lshlrev_b32 v14, 6, v14
    v_bfe_u32 v6, v0, 4, 1
    v_lshlrev_b32 v6, 5, v6
    v_and_b32 v7, 3, v0
    v_lshl_add_u32 v6, v7, 3, v6
    v_add_u32 v13, v6, v13
    v_add_u32 v13, {MISC}, v13
    v_add_u32 v14, v6, v14
    s_lshl_b32 s28, s45, 10
    s_add_u32 s51, s28, {WB}
    v_add_u32 v14, s51, v14
    v_lshrrev_b32 v15, 2, v0
    v_lshlrev_b32 v15, 10, v15
    v_lshl_add_u32 v15, v7, 4, v15
    s_mov_b32 s92, s58
    s_mov_b32 s93, s59
    s_mov_b32 s94, {512*1024}
    s_mov_b32 s95, 0x00020000
    s_mul_i32 s52, s2, 18
    s_mul_i32 s28, s45, 6
    s_add_u32 s52, s52, s28
    s_mov_b32 s19, 0x00020000
    """)
    task_setup()
    a("s_cmp_lg_u32 s3, 5")
    a("s_cbranch_scc1 sw_ni")
    poll(a, 248, 1, dbg=True)
    a.label("sw_ni")
    QA0 = 128; QA1 = 144; XA = 64; XB = 80; WQF = 96
    for j in range(10):
        a("s_barrier")
        if j >= 1:
            a("s_waitcnt vmcnt(0)")
        if 1 <= j <= 8:
            p = j - 1
            for s in range(4):
                a(f"ds_read_b64_tr_b16 v[{WQF+4*s}:{WQF+4*s+1}], v13 offset:{(p&1)*4096 + s*1024}")
                a(f"ds_read_b64_tr_b16 v[{WQF+4*s+2}:{WQF+4*s+3}], v13 offset:{(p&1)*4096 + s*1024 + 256}")
        if 1 <= j <= 6:
            a("ds_read_b64_tr_b16 v[112:113], v14")
            a("ds_read_b64_tr_b16 v[114:115], v14 offset:512")
        if j >= 1: a("s_waitcnt lgkmcnt(0)")
        if 1 <= j <= 6:
            a(f"""
            s_lshl_b32 s28, s52, 10
            s_add_u32 s28, s28, {WF_OFF}
            buffer_store_dwordx4 v[112:115], v1, s[20:23], s28 offen sc1
            s_add_u32 s52, s52, 1
            """)
        if 1 <= j <= 8:
            for s in range(4):
                c = "0" if (j == 1 and s == 0) else f"v[{QA0}:{QA0+15}]"
                a(f"{MFMA} v[{QA0}:{QA0+15}], v[{WQF+4*s}:{WQF+4*s+3}], v[{XA+4*s}:{XA+4*s+3}], {c}")
            l = a.newlabel("sw_n2")
            a("s_cmp_lg_u32 s3, 4")
            a(f"s_cbranch_scc1 {l}")
            for s in range(4):
                c = "0" if (j == 1 and s == 0) else f"v[{QA1}:{QA1+15}]"
                a(f"{MFMA} v[{QA1}:{QA1+15}], v[{WQF+4*s}:{WQF+4*s+3}], v[{XB+4*s}:{XB+4*s+3}], {c}")
            a.label(l)
        if j <= 7:
            for s in range(4): a(f"buffer_load_dwordx4 v[{XA+4*s}:{XA+4*s+3}], v12, s[76:79], s48 offen offset:{j*128 + s*32}")
            l = a.newlabel("sw_n3"); l2 = a.newlabel("sw_n4")
            a("s_cmp_lg_u32 s3, 4")
            a(f"s_cbranch_scc1 {l}")
            for s in range(4): a(f"buffer_load_dwordx4 v[{XB+4*s}:{XB+4*s+3}], v12, s[76:79], s49 offen offset:{j*128 + s*32}")
            a.label(l)
            a("s_cmp_lg_u32 s3, 6")
            a(f"s_cbranch_scc1 {l2}")
            a(f"s_mov_b32 m0, {MISC + (j&1)*4096}")
            a("s_lshl_b32 s29, s67, 6")
            for i in range(4):
                a(f"s_add_u32 s28, s29, {j*65536 + i*16384 - i*1024}")
                a(f"buffer_load_dwordx4 v15, s[92:95], s28 offen offset:{i*1024} lds")
            a.label(l2)
        if j <= 5:
            a(f"""
            s_lshr_b32 s28, s52, 4
            s_and_b32 s29, s52, 15
            s_lshl_b32 s29, s29, 6
            s_cmp_lt_u32 s28, 256
            s_cselect_b32 s16, s56, s60
            s_cselect_b32 s17, s57, s61
            s_cselect_b32 s18, {4*MB}, s94
            s_and_b32 s28, s28, 255
            s_lshl_b32 s28, s28, 14
            s_add_u32 s28, s28, s29
            s_mov_b32 m0, s51
            s_nop 0
            buffer_load_dwordx4 v15, s[16:19], s28 offen lds
            """)
        if j == 7: pass
        if j == 8:
            l = a.newlabel("sw_wf")
            a("s_cmp_lg_u32 s3, 5")
            a(f"s_cbranch_scc1 {l}")
            signal(a, 33, wait=False)
            a.label(l)
        if j == 9:
            a(f"s_mov_b32 s28, {f32hex(LOG2E * 0.25)}")
            for r in range(32): a(f"v_mul_f32 v{QA0+r}, s28, v{QA0+r}")
            for i in range(4): pack8(a, 64 + 4 * i, QA0 + 8 * i)
            a(f"""
            s_lshl_b32 s28, s2, 13
            s_lshl_b32 s29, s45, 11
            s_add_u32 s29, s29, s28
            s_add_u32 s29, s29, {QA_OFF}
            buffer_store_dwordx4 v[64:67], v1, s[20:23], s29 offen sc1
            buffer_store_dwordx4 v[68:71], v1, s[20:23], s29 offen offset:1024 sc1
            s_cmp_lg_u32 s3, 4
            s_cbranch_scc1 sw_q3
            s_add_u32 s29, s28, {QA_OFF + 6144}
            buffer_store_dwordx4 v[72:75], v1, s[20:23], s29 offen sc1
            buffer_store_dwordx4 v[76:79], v1, s[20:23], s29 offen offset:1024 sc1
            sw_q3:
            s_waitcnt vmcnt(0)
            """)
        if j <= 7:
            l = a.newlabel("sw_n5")
            a("s_cmp_lg_u32 s3, 6")
            a(f"s_cbranch_scc1 {l}")
            a("s_waitcnt vmcnt(0)")
            a.label(l)
    a("""
    s_mov_b32 s58, 40
    s_cmp_ge_u32 s2, 64
    s_cbranch_scc1 sw_chk
    """)
    for k in range(10, 16):
        a("s_barrier")
        l = a.newlabel("sw_x")
        a("s_cmp_eq_u32 s3, 4")
        a(f"s_cbranch_scc1 {l}")
        extra_part(k)
        a.label(l)
    a("s_mov_b32 s58, 64")
    a("s_branch sw_chk")
    a.label("sw_task")
    a("s_mov_b32 s58, 0")
    a.label("sw_loop")
    a("s_barrier")
    a("s_add_u32 s58, s58, 4")
    a.label("sw_chk")
    a("""
    s_add_u32 s28, s50, 2
    s_cmp_lt_u32 s58, s28
    s_cbranch_scc1 sw_loop
    s_barrier
    """)
    read_flags(a, 32)
    a("""
    s_cmp_eq_u32 s28, 0
    s_cbranch_scc1 sw_ok
    s_cmp_lg_u32 s44, 0
    s_cbranch_scc1 sw_ok
    s_mov_b32 s44, 1
    s_mov_b32 s58, 0
    sw_max:
    s_barrier
    s_barrier
    s_add_u32 s58, s58, 1
    s_cmp_lt_u32 s58, s50
    s_cbranch_scc1 sw_max
    s_branch sw_task
    sw_ok:
    s_mov_b32 s44, 0
    s_add_u32 s46, s46, 1
    s_cmp_ge_u32 s46, 2
    s_cbranch_scc1 p3_a
    """)
    task_setup()
    a("s_branch sw_task")

def phase3_A(a):
    AQ = 8; ANEG = (32, 48); AO = (64, 80); AS = (96, 112); AP = (16, 24); AKV = 128
    a.label("p3_a")
    amap(a)
    a("s_sub_u32 s45, s3, 4")
    poll(a, 32, 64)
    a(f"""
    s_lshl_b32 s28, s45, 14
    s_add_u32 s50, s28, {KA_OFF}
    s_add_u32 s51, s28, {VA_OFF}
    """)
    for (sr, lo) in ((50, 0), (51, 65536)):
        for g in range(4):
            a(f"s_add_u32 m0, s28, {lo + g*4096}")
            a(f"s_add_u32 s29, s{sr}, {g*4096}")
            for i in range(4): a(f"buffer_load_dwordx4 v1, s[20:23], s29 offen offset:{i*1024} sc1 lds")
    a(f"""
    s_lshl_b32 s28, s2, 13
    s_lshl_b32 s29, s45, 11
    s_add_u32 s29, s29, s28
    s_add_u32 s29, s29, {QA_OFF}
    buffer_load_dwordx4 v[{AQ}:{AQ+3}], v1, s[20:23], s29 offen sc1
    buffer_load_dwordx4 v[{AQ+4}:{AQ+7}], v1, s[20:23], s29 offen offset:1024 sc1
    s_lshl_b32 s48, s66, 7
    s_lshl_b32 s29, s45, 5
    s_add_u32 s48, s48, s29
    v_and_b32 v3, 31, v0
    v_lshrrev_b32 v4, 5, v0
    v_add_u32 v2, s48, v3
    v_lshlrev_b32 v2, 3, v2
    s_mov_b32 s28, {G_OFF}
    buffer_load_dword v160, v2, s[20:23], s28 offen sc1
    v_lshl_add_u32 v7, v4, 4, v3
    v_lshlrev_b32 v7, 4, v7
    v_add_u32 v7, 0x10000, v7
    v_mov_b32 v2, 0x3f803f80
    v_cmp_eq_u32 vcc, 16, v3
    s_nop 1
    v_cndmask_b32 v2, 0, v2, vcc
    v_cmp_gt_u32 s[62:63], 16, v3
    s_mov_b32 s60, 0
    """)
    for st in range(2):
        for r in range(8): a(f"v_mov_b32 v{AKV+12*st+4+r}, v2")
    a("s_waitcnt vmcnt(0)")
    a("s_barrier")
    st7(a, 12, tv=250)
    a("s_setprio 3")
    a.label("p3a_start")
    a(f"""
    v_mov_b32 v5, v1
    v_mov_b32 v6, v7
    ds_read_b128 v[{AKV+12}:{AKV+15}], v5
    """)
    def stage_reads(j, stg):
        f = AKV + 12 * stg
        return [f"ds_read_b128 v[{f}:{f+3}], v5 offset:{(j+1)*1024}",
                "s_mov_b64 exec, s[62:63]",
                f"ds_read_b128 v[{f+4}:{f+7}], v6 offset:{j*1024}",
                f"ds_read_b128 v[{f+8}:{f+11}], v6 offset:{j*1024 + 512}",
                "s_mov_b64 exec, -1"]
    for o in stage_reads(0, 0): a(o)
    for X in range(2):
        for r in range(16): a(f"v_mov_b32 v{AO[X]+r}, 0")
    a("s_waitcnt lgkmcnt(3)")
    K0 = AKV + 12
    a("s_cmp_eq_u32 s60, 0")
    a("s_cbranch_scc1 p3a_raw")
    for X in range(2):
        a(f"{MFMA} v[{AS[X]}:{AS[X]+15}], v[{K0}:{K0+3}], v[{AQ+4*X}:{AQ+4*X+3}], v[{ANEG[X]}:{ANEG[X]+15}]")
    a("s_nop 15")
    a("s_branch p3a_go")
    a.label("p3a_raw")
    for X in range(2):
        a(f"{MFMA} v[{AS[X]}:{AS[X]+15}], v[{K0}:{K0+3}], v[{AQ+4*X}:{AQ+4*X+3}], 0")
    a("s_nop 15")
    for X in range(2):
        S = AS[X]
        a(f"v_max3_f32 v2, v{S}, v{S+1}, v{S+2}")
        for r in range(3, 15, 2): a(f"v_max3_f32 v2, v2, v{S+r}, v{S+r+1}")
        a(f"v_max_f32 v2, v2, v{S+15}")
        a("""
        v_mov_b32 v161, v2
        s_nop 1
        v_permlane32_swap_b32 v161, v2
        s_nop 1
        v_max_f32 v2, v2, v161
        """)
        for r in range(16): a(f"v_sub_f32 v{S+r}, v{S+r}, v2")
        for r in range(16): a(f"v_sub_f32 v{ANEG[X]+r}, 0, v2")
    a.label("p3a_go")
    a("s_mov_b32 s52, 0")
    def valu(X):
        S = AS[X]; P = AP[X]
        ops = []
        for r in range(16):
            ops.append(f"v_exp_f32 v{S+r}, v{S+r}")
            if r >= 2 and (r & 1) == 0: ops.append(f"v_cvt_pk_bf16_f32 v{P+(r>>1)-1}, v{S+r-2}, v{S+r-1}")
        ops.append("s_nop 0")
        ops.append(f"v_cvt_pk_bf16_f32 v{P+7}, v{S+14}, v{S+15}")
        return ops
    def phase(X, f, extra=(), grp=()):
        Y = X ^ 1
        ops = valu(X)
        m = [f"{MFMA} v[{AS[Y]}:{AS[Y]+15}], v[{f}:{f+3}], v[{AQ+4*Y}:{AQ+4*Y+3}], v[{ANEG[Y]}:{ANEG[Y]+15}]",
             f"{MFMA} v[{AO[Y]}:{AO[Y]+15}], v[{f+4}:{f+7}], v[{AP[Y]}:{AP[Y]+3}], v[{AO[Y]}:{AO[Y]+15}]",
             f"{MFMA} v[{AO[Y]}:{AO[Y]+15}], v[{f+8}:{f+11}], v[{AP[Y]+4}:{AP[Y]+7}], v[{AO[Y]}:{AO[Y]+15}]"]
        extra = list(extra)
        for i, o in enumerate(ops):
            if i == 0:
                a(m[0])
                for g in grp: a(g)
            if i == 5: a(m[1])
            if i == 11: a(m[2])
            a(o)
            if i >= 1 and extra: a(extra.pop(0))
    for o in valu(0): a(o)
    a.label("p3a_loop")
    for j in range(8):
        stg = j & 1
        f = AKV + 12 * stg
        a("s_waitcnt lgkmcnt(0)")
        phase(1, f, grp=stage_reads(j + 1, stg ^ 1))
        ex = []
        if j == 7: ex = ["v_add_u32 v5, 0x2000, v5", "v_add_u32 v6, 0x2000, v6", "s_add_u32 s52, s52, 1", "s_cmp_lt_u32 s52, 8"]
        phase(0, f, extra=ex)
    a("s_cbranch_scc1 p3a_loop")
    a(f"""
    s_waitcnt lgkmcnt(0)
    s_nop 15
    v_lshlrev_b32 v5, 2, v3
    ds_bpermute_b32 v6, v5, v{AO[0]+8}
    ds_bpermute_b32 v161, v5, v{AO[1]+8}
    v_mov_b32 v4, 0
    """)
    for X in range(2):
        for r in range(8): a(f"v_fma_f32 v4, v{AO[X]+r}, 0, v4")
    a(f"""
    s_mov_b32 s28, {f32hex(2.0**THR)}
    s_waitcnt lgkmcnt(0)
    v_cmp_nle_f32 vcc, v6, s28
    v_cmp_nle_f32 s[56:57], v161, s28
    s_or_b64 s[56:57], s[56:57], vcc
    v_cmp_u_f32 vcc, v4, v4
    s_or_b64 s[56:57], s[56:57], vcc
    s_cmp_eq_u64 s[56:57], 0
    s_cbranch_scc1 p3a_ok
    s_cmp_lg_u32 s60, 0
    s_cbranch_scc1 p3a_ok
    s_mov_b32 s60, 1
    s_mov_b32 s52, 0
    v_mov_b32 v5, v1
    v_mov_b32 v162, 0xff800000
    v_mov_b32 v163, 0xff800000
    p3a_max:
    ds_read_b128 v[{AKV}:{AKV+3}], v5
    v_add_u32 v5, 0x400, v5
    s_waitcnt lgkmcnt(0)
    """)
    for X in range(2):
        a(f"{MFMA} v[{AS[X]}:{AS[X]+15}], v[{AKV}:{AKV+3}], v[{AQ+4*X}:{AQ+4*X+3}], 0")
    a("s_nop 15")
    for X in range(2):
        for r in range(0, 16, 2): a(f"v_max3_f32 v{162+X}, v{162+X}, v{AS[X]+r}, v{AS[X]+r+1}")
    a("""
    s_add_u32 s52, s52, 1
    s_cmp_lt_u32 s52, 64
    s_cbranch_scc1 p3a_max
    """)
    for X in range(2):
        a(f"""
        v_mov_b32 v5, v{162+X}
        s_nop 1
        v_permlane32_swap_b32 v5, v{162+X}
        s_nop 1
        v_max_f32 v{162+X}, v{162+X}, v5
        """)
        for r in range(16): a(f"v_sub_f32 v{ANEG[X]+r}, 0, v{162+X}")
    a("s_branch p3a_start")
    a.label("p3a_ok")
    a(f"""
    v_rcp_f32 v6, v6
    v_rcp_f32 v161, v161
    s_lshr_b32 s28, s48, 5
    s_mul_i32 s28, s28, {ZF_RG}
    s_lshl_b32 s29, s67, 11
    s_add_u32 s28, s28, s29
    s_add_u32 s28, s28, {ZF_OFF + 256*1024}
    v_mul_f32 v6, v6, v160
    v_mul_f32 v161, v161, v160
    """)
    for X in range(2):
        for r in range(8): a(f"v_mul_f32 v{AO[X]+r}, v{(6, 161)[X]}, v{AO[X]+r}")
        pack8(a, AP[X], AO[X])
        a(f"buffer_store_dwordx4 v[{AP[X]}:{AP[X]+3}], v1, s[20:23], s28 offen offset:{X*1024} sc1")
    signal(a, 16, "s66")
    st7(a, 13, tv=250)
    a("s_endpgm")

def phase3_G(a):
    ACC = 192; RG = 32
    a.label("p3_g")
    amap(a)
    srd(a, 16, 74, 2*MB)
    a(f"""
    s_and_b32 s28, s2, 7
    s_lshl_b32 s28, s28, 2
    s_lshr_b32 s29, s2, 6
    s_add_u32 s6, s28, s29
    s_lshr_b32 s7, s2, 3
    s_and_b32 s7, s7, 7
    s_mul_i32 s44, s6, {2*ZF_RG}
    s_lshl_b32 s28, s3, 11
    s_add_u32 s44, s44, s28
    s_add_u32 s44, s44, {ZF_OFF}
    s_add_u32 s45, s44, {ZF_RG}
    s_lshl_b32 s46, s3, 15
    s_lshl_b32 s28, s7, 11
    s_add_u32 s46, s46, s28
    s_add_u32 s46, s46, {WF_OFF}
    s_add_u32 s47, s46, 16384
    s_barrier
    s_cmp_lg_u32 s3, 0
    s_cbranch_scc1 p3g_ns
    """)
    signal(a, 0, "s49", wait=False)
    a("s_sub_u32 s49, 15, s49")
    signal(a, 0, "s49", wait=False)
    a.label("p3g_ns")
    poll(a, 33, 256)
    def issue_w(slot):
        r = RG + 32 * slot + 16
        a(f"buffer_load_dwordx4 v[{r}:{r+3}], v1, s[20:23], s46 offen sc1")
        a(f"buffer_load_dwordx4 v[{r+4}:{r+7}], v1, s[20:23], s46 offen offset:1024 sc1")
        a(f"buffer_load_dwordx4 v[{r+8}:{r+11}], v1, s[20:23], s47 offen sc1")
        a(f"buffer_load_dwordx4 v[{r+12}:{r+15}], v1, s[20:23], s47 offen offset:1024 sc1")
        a(f"s_add_u32 s46, s46, {4*32768}")
        a(f"s_add_u32 s47, s47, {4*32768}")
    def issue_z(slot):
        r = RG + 32 * slot
        a(f"buffer_load_dwordx4 v[{r}:{r+3}], v1, s[20:23], s44 offen sc1")
        a(f"buffer_load_dwordx4 v[{r+4}:{r+7}], v1, s[20:23], s44 offen offset:1024 sc1")
        a(f"buffer_load_dwordx4 v[{r+8}:{r+11}], v1, s[20:23], s45 offen sc1")
        a(f"buffer_load_dwordx4 v[{r+12}:{r+15}], v1, s[20:23], s45 offen offset:1024 sc1")
        a("s_add_u32 s44, s44, 8192")
        a("s_add_u32 s45, s45, 8192")
    def mm(slot):
        r = RG + 32 * slot
        for s in range(2):
            for m in range(2):
                for rg in range(2):
                    w = r + 16 + 8 * s + 4 * m; z = r + 8 * rg + 4 * s
                    acc = ACC + 16 * (2 * m + rg)
                    a(f"{MFMA} v[{acc}:{acc+15}], v[{w}:{w+3}], v[{z}:{z+3}], v[{acc}:{acc+15}]")
    for r in range(64): a(f"v_mov_b32 v{ACC+r}, 0")
    poll(a, 0, 32, sreg="s66")
    st7(a, 12, tv=28)
    a(f"""
    v_and_b32 v9, 31, v0
    s_lshl_b32 s28, s6, 6
    v_add_u32 v9, s28, v9
    v_lshlrev_b32 v4, 3, v9
    """)
    for sl in range(4):
        issue_w(sl); issue_z(sl)
    a("s_mov_b32 s48, 0")
    a.label("p3g_loop")
    for sl in range(4):
        a("s_waitcnt vmcnt(24)")
        mm(sl)
        issue_w(sl); issue_z(sl)
    a("""
    s_add_u32 s48, s48, 1
    s_cmp_lt_u32 s48, 7
    s_cbranch_scc1 p3g_loop
    """)
    for sl in range(4):
        a(f"s_waitcnt vmcnt({24 - 4*sl})")
        mm(sl)
        issue_w(sl)
    poll(a, 32, 64)
    a(f"""
    s_mov_b32 s28, {G_OFF}
    buffer_load_dword v10, v4, s[20:23], s28 offen offset:4 sc1
    buffer_load_dword v11, v4, s[20:23], s28 offen offset:260 sc1
    s_waitcnt vmcnt(0)
    """)
    for m in range(2):
        for rg in range(2):
            for r in range(16): a(f"v_mul_f32 v{ACC+16*(2*m+rg)+r}, v{10+rg}, v{ACC+16*(2*m+rg)+r}")
    st7(a, 13, tv=28)
    poll(a, 16, 64, slp=4, sreg="s66")
    for sl in range(4): issue_z(sl)
    for sl in range(4):
        a(f"s_waitcnt vmcnt({12 - 4*sl})")
        mm(sl)
    a("""
    s_lshl_b32 s28, s3, 14
    v_add_u32 v7, s28, v1
    s_nop 15
    s_barrier
    """)
    for bk in range(16): a(f"ds_write_b128 v7, v[{ACC+4*bk}:{ACC+4*bk+3}] offset:{bk*1024}")
    a("""
    s_waitcnt lgkmcnt(0)
    s_barrier
    s_lshl_b32 s28, s3, 12
    v_add_u32 v7, s28, v1
    """)
    for e in range(4):
        for w in range(4):
            d = 32 + 16 * e + 4 * w
            a(f"ds_read_b128 v[{d}:{d+3}], v7 offset:{w*16384 + e*1024}")
    a("""
    s_and_b32 s28, s3, 1
    s_lshl_b32 s28, s28, 5
    v_add_u32 v9, s28, v9
    v_lshlrev_b32 v9, 10, v9
    v_lshrrev_b32 v10, 5, v0
    v_lshl_add_u32 v9, v10, 3, v9
    s_lshl_b32 s28, s7, 7
    s_lshr_b32 s29, s3, 1
    s_lshl_b32 s29, s29, 6
    s_add_u32 s28, s28, s29
    """)
    for e in range(4):
        a(f"s_waitcnt lgkmcnt({4*(3-e)})")
        d = 32 + 16 * e
        for w in range(1, 4):
            for j in range(4): a(f"v_add_f32 v{d+j}, v{d+j}, v{d+4*w+j}")
        a(f"v_cvt_pk_bf16_f32 v{12+2*e}, v{d}, v{d+1}")
        a(f"v_cvt_pk_bf16_f32 v{13+2*e}, v{d+2}, v{d+3}")
        a(f"buffer_store_dwordx2 v[{12+2*e}:{13+2*e}], v9, s[16:19], s28 offen offset:{16*e}")
    if STAMP: a("s_waitcnt vmcnt(0)")
    st7(a, 14, real=True, tv=28)

if __name__ == "__main__":
    os.environ["NOSPLIT"] = "1"; os.environ["GSCALE"] = "1"
    if not os.environ.get("ROT"): os.environ["NOROT"] = "1"
    build([gen_k12], sys.argv[1] if len(sys.argv) > 1 else "out.s")
```

```python
from gen4 import *
import gen4
from gen2 import _stamp, VM
def st7(a, idx, tv=2, **kw):
    if os.environ.get("STK", "2") == "2": _stamp(a, idx, tv=tv, **kw)

STG = 49152
SLOT = 16384; NSL = 9; RING = NSL * SLOT
MISC = RING; FLAG = MISC + 8192; QX = 5 * SLOT
O_ = 192; QF = 160; S_ = (128, 144); NEGM = 112; P_ = (96, 104); Q2 = 64; FR = 32
NK = 24

def gen_k12(a):
    name = "mega_kernel"
    kernel_begin(a, name)
    a(f"""
    s_cmp_ge_u32 s2, 256
    s_cbranch_scc1 k1_end
    s_load_dwordx2 s[4:5], s[0:1], {KA_CKV}
    s_load_dwordx4 s[24:27], s[0:1], {KA_WUK}
    s_load_dwordx4 s[8:11], s[0:1], {KA_DBG}
    s_load_dwordx2 s[64:65], s[0:1], {KA_X}
    s_load_dwordx4 s[68:71], s[0:1], {KA_WK}
    s_load_dwordx2 s[72:73], s[0:1], {KA_GATE}
    s_load_dwordx2 s[54:55], s[0:1], {KA_BWQ}
    s_load_dwordx2 s[56:57], s[0:1], {KA_BWO}
    s_load_dwordx2 s[58:59], s[0:1], {KA_WQ}
    s_load_dwordx2 s[60:61], s[0:1], {KA_WO}
    s_load_dwordx2 s[74:75], s[0:1], {KA_OUT}
    v_lshrrev_b32 v2, 6, v0
    v_and_b32 v0, 63, v0
    v_lshlrev_b32 v1, 4, v0
    v_readfirstlane_b32 s3, v2
    s_and_b32 s6, s2, 31
    s_lshr_b32 s7, s2, 5
    s_waitcnt lgkmcnt(0)
    s_mov_b32 s30, s10
    s_mov_b32 s31, s11
    """)
    srd(a, 20, 30, WS_BYTES)
    srd(a, 80, 8, 256)
    srd(a, 76, 64, 2*MB); srd(a, 88, 72, 1024)
    a(f"""
    s_lshl_b32 s28, s6, 19
    s_add_u32 s84, s30, s28
    s_addc_u32 s85, s31, 0
    s_mov_b32 s86, 524288
    s_mov_b32 s87, 0x00020000
    s_add_u32 s32, s84, {VF_OFF - 16384}
    s_addc_u32 s33, s85, 0
    s_mov_b32 s34, 524288
    s_mov_b32 s35, 0x00020000
    """)
    st7(a, 0); st7(a, 15, real=True)
    srd(a, 36, 4, 2*MB)
    srd(a, 12, 24, 4*MB)
    a(f"""
    v_mov_b32 v30, 0
    v_mov_b32 v31, 0
    v_lshrrev_b32 v3, 3, v0
    v_lshrrev_b32 v4, 4, v0
    v_and_b32 v5, 7, v0
    v_xor_b32 v6, v5, v4
    v_xor_b32 v7, 4, v6
    v_lshlrev_b32 v3, 10, v3
    v_lshl_add_u32 v6, v6, 4, v3
    v_lshl_add_u32 v7, v7, 4, v3
    s_lshl_b32 s28, s7, 8
    s_lshl_b32 s29, s3, 5
    s_add_u32 s28, s28, s29
    s_lshl_b32 s28, s28, 10
    v_add_u32 v8, s28, v6
    v_add_u32 v9, s28, v7
    s_sub_u32 s28, 15, s7
    s_cmp_lt_u32 s3, 4
    s_cselect_b32 s28, s28, s7
    s_lshl_b32 s28, s28, 7
    s_and_b32 s29, s3, 3
    s_lshl_b32 s29, s29, 5
    s_add_u32 s28, s28, s29
    s_lshl_b32 s44, s28, 10
    v_add_u32 v11, s44, v6
    s_sub_u32 s44, s44, 0
    v_add_u32 v2, s44, v7
    v_and_b32 v5, 15, v0
    v_lshlrev_b32 v6, 2, v4
    v_xor_b32 v5, v5, v6
    s_lshl_b32 s28, s3, 3
    v_add_u32 v6, s28, v4
    v_lshlrev_b32 v6, 13, v6
    v_lshl_add_u32 v6, v5, 4, v6
    s_lshl_b32 s28, s6, 8
    v_add_u32 v10, s28, v6
    v_mov_b32 v112, v11
    v_mov_b32 v113, v2
    s_lshl_b32 s45, s3, 12
    s_lshl_b32 s46, s3, 11
    s_add_u32 s46, s46, 32768
    """)
    a("""
    s_lshr_b32 s42, s6, 3
    s_lshl_b32 s42, s42, 1
    s_add_u32 s42, s42, s7
    s_and_b32 s42, s42, 7
    s_lshl_b32 s42, s42, 7
    s_lshl_b32 s43, s42, 12
    """ if not os.environ.get("NOROT") else """
    s_mov_b32 s42, 0
    s_mov_b32 s43, 0
    """)
    vm = VM()
    def dma_ops(k):
        kt = k & 7; st = k % 3
        ops = []
        if k == 8: ops += ["s_mov_b32 s12, s26", "s_mov_b32 s13, s27"]
        if k == 16: ops += ["s_mov_b32 s12, s54", "s_mov_b32 s13, s55", "s_mov_b32 s36, s64", "s_mov_b32 s37, s65", "v_mov_b32 v8, v112", "v_mov_b32 v9, v113"]
        ops.append(f"s_add_u32 m0, s45, {st*STG}")
        for jj in range(4):
            ops.append(f"s_add_u32 s40, s42, {jj*7168}")
            ops.append(f"buffer_load_dwordx4 v{8 + (jj & 1)}, s[36:39], s40 offen offset:{jj*1024} lds")
        ops.append(f"s_add_u32 m0, s46, {st*STG}")
        ops.append(f"s_add_u32 s40, s43, {32768 - 1024}")
        ops.append(f"buffer_load_dwordx4 v10, s[12:15], s43 offen lds")
        ops.append(f"buffer_load_dwordx4 v10, s[12:15], s40 offen offset:1024 lds")
        ops.append("s_add_u32 s42, s42, 128")
        ops.append("s_and_b32 s42, s42, 1023")
        ops.append("s_lshl_b32 s43, s42, 12")
        return ops
    def emit(o, tag):
        a(o)
        if o.startswith("buffer_"): vm.issue(tag)
    for k in range(3):
        for o in dma_ops(k): emit(o, ("d", k))
    def touch_ops(which):
        if which == 0:
            return ["s_lshr_b32 s28, s2, 3", "s_lshl_b32 s28, s28, 3", "s_add_u32 s28, s28, s3", "s_lshl_b32 s28, s28, 13",
                    "v_lshlrev_b32 v2, 7, v0",
                    "buffer_load_dword v114, v2, s[36:39], s28 offen",
                    "v_bfe_u32 v3, v0, 1, 3", "v_lshlrev_b32 v3, 13, v3", "v_and_b32 v4, 1, v0", "v_lshl_add_u32 v3, v4, 7, v3",
                    "s_lshl_b32 s29, s7, 19", "s_lshl_b32 s41, s3, 16", "s_add_u32 s29, s29, s41", "s_lshl_b32 s41, s6, 8", "s_add_u32 s29, s29, s41",
                    "buffer_load_dword v115, v3, s[12:15], s29 offen",
                    "s_mov_b32 s92, s26", "s_mov_b32 s93, s27", f"s_mov_b32 s94, {4*MB}", "s_mov_b32 s95, 0x00020000",
                    "buffer_load_dword v116, v3, s[92:95], s29 offen"]
        if which == 1:
            return ["s_lshr_b32 s28, s2, 3", "s_lshl_b32 s28, s28, 3", "s_add_u32 s28, s28, s3", "s_lshl_b32 s28, s28, 13",
                    "buffer_load_dword v114, v2, s[76:79], s28 offen",
                    "s_mov_b32 s92, s54", "s_mov_b32 s93, s55",
                    "buffer_load_dword v115, v3, s[92:95], s29 offen"]
        if which == 2:
            return ["s_lshl_b32 s28, s2, 3", "s_add_u32 s28, s28, s3", "s_lshl_b32 s28, s28, 11", "v_and_b32 v4, 15, v0", "v_lshlrev_b32 v4, 7, v4",
                    "s_mov_b32 s92, s56", "s_mov_b32 s93, s57",
                    "buffer_load_dword v114, v4, s[92:95], s28 offen",
                    "s_mov_b32 s92, s58", "s_mov_b32 s93, s59", f"s_mov_b32 s94, {512*1024}",
                    "buffer_load_dword v115, v4, s[92:95], s28 offen",
                    "s_mov_b32 s92, s60", "s_mov_b32 s93, s61",
                    "buffer_load_dword v116, v4, s[92:95], s28 offen"]
    a("""
    v_and_b32 v3, 31, v0
    s_lshr_b32 s28, s3, 1
    s_lshl_b32 s28, s28, 6
    v_add_u32 v3, s28, v3
    v_lshlrev_b32 v3, 7, v3
    v_lshrrev_b32 v5, 5, v0
    v_bfe_u32 v6, v0, 1, 3
    v_xor_b32 v5, v5, v6
    v_lshl_add_u32 v12, v5, 4, v3
    v_xor_b32 v13, 32, v12
    v_xor_b32 v14, 64, v12
    v_xor_b32 v15, 96, v12
    """)
    for st in (1, 2):
        for s in range(4): a(f"v_add_u32 v{12+4*st+s}, {st*STG}, v{12+s}")
    a("""
    v_lshrrev_b32 v3, 5, v0
    v_bfe_u32 v5, v0, 2, 2
    v_lshl_add_u32 v3, v3, 3, v5
    v_lshlrev_b32 v3, 8, v3
    v_bfe_u32 v6, v0, 4, 1
    v_lshl_add_u32 v3, v6, 5, v3
    v_and_b32 v6, 3, v0
    v_lshl_add_u32 v3, v6, 3, v3
    v_lshl_add_u32 v3, v5, 6, v3
    s_and_b32 s28, s3, 1
    s_lshl_b32 s28, s28, 7
    v_xor_b32 v3, s28, v3
    v_add_u32 v24, 32768, v3
    v_xor_b32 v25, 64, v24
    """)
    for st in (1, 2):
        for m in range(2): a(f"v_add_u32 v{24+2*st+m}, {st*STG}, v{24+m}")
    ACC = (128, 192, 128)
    a(f"""
    s_lshl_b32 s28, s6, 19
    s_lshl_b32 s29, s7, 16
    s_add_u32 s28, s28, s29
    s_lshr_b32 s29, s3, 1
    s_lshl_b32 s29, s29, 14
    s_add_u32 s28, s28, s29
    s_and_b32 s29, s3, 1
    s_lshl_b32 s48, s29, 12
    s_add_u32 s48, s48, s28
    s_add_u32 s48, s48, {KF_OFF}
    s_add_u32 s49, s48, 8192
    s_lshl_b32 s50, s29, 11
    s_add_u32 s50, s50, s28
    s_add_u32 s50, s50, {VF_OFF}
    s_add_u32 s51, s50, 4096
    s_add_u32 s52, s50, 8192
    s_add_u32 s53, s50, 12288
    """)
    FB = 64
    def read_ops(u):
        k = u >> 2; s = u & 3; st = k % 3
        f = FB + 16 * (u % 3)
        ca = 12 + 4 * st + s
        ops = [f"ds_read_b128 v[{f}:{f+3}], v{ca}",
               f"ds_read_b128 v[{f+4}:{f+7}], v{ca} offset:4096"]
        for m in range(2):
            wa = 24 + 2 * st + m
            ops.append(f"ds_read_b64_tr_b16 v[{f+8+4*m}:{f+9+4*m}], v{wa} offset:{s*4096}")
            ops.append(f"ds_read_b64_tr_b16 v[{f+10+4*m}:{f+11+4*m}], v{wa} offset:{s*4096+1024}")
        return ops
    def epi_ops(ps):
        ops = []; n = 0
        for m in range(2):
            for kb in range(2):
                acc = ACC[ps] + 16 * (m * 2 + kb)
                for g in range(2):
                    tmp = 32 + 4 * (n % 8); n += 1
                    for i in range(4):
                        ops.append(f"v_cvt_pk_bf16_f32 v{tmp+i}, v{acc+8*g+2*i}, v{acc+8*g+2*i+1}")
                    if ps == 0: sreg, off = 48 + kb, (2 * m + g) * 1024
                    else:       sreg, off = 50 + 2 * kb + g, m * 1024
                    ops.append(f"buffer_store_dwordx4 v[{tmp}:{tmp+3}], v1, s[20:23], s{sreg} offen offset:{off}" + ("" if os.environ.get("PLAINST") else " sc1"))
        return ops
    a(f"""
    s_waitcnt vmcnt({vm.need({("d", 0)})})
    s_barrier
    """)
    a(f"""
    s_cmp_lg_u32 s7, 0
    s_cbranch_scc1 k1_noinit
    s_cmp_lg_u32 s3, 6
    s_cbranch_scc1 k1_noinit
    v_lshlrev_b32 v2, 2, v0
    v_mov_b32 v3, 0
    s_lshl_b32 s28, s6, 8
    s_add_u32 s28, s28, {CNT_OFF + 64*256}
    buffer_store_dword v3, v2, s[20:23], s28 offen sc1
    s_cmp_lg_u32 s2, 0
    s_cbranch_scc1 k1_init2
    v_lshlrev_b32 v2, 8, v0
    s_mov_b32 s28, {CNT_OFF}
    buffer_store_dword v3, v2, s[20:23], s28 offen sc1
    k1_init2:
    s_waitcnt vmcnt(0)
    v_mov_b32 v2, 1
    s_mov_b64 exec, 1
    buffer_store_byte v2, v3, s[80:83], s6 offen sc1
    s_mov_b64 exec, -1
    s_waitcnt vmcnt(0)
    k1_noinit:
    """)
    st7(a, 4)
    for o in read_ops(0) + read_ops(1): a(o)
    def c_dma():
        for (sd, lo) in ((84, 0), (32, 8192)):
            for g in range(2):
                a(f"s_add_u32 m0, s53, {lo + g*4096}")
                a(f"s_add_u32 s28, s52, {g*4096}")
                for i in range(4):
                    a(f"buffer_load_dwordx4 v1, s[{sd}:{sd+3}], s28 offen offset:{i*1024} sc1 lds")
        a(f"""
        s_add_u32 s52, s52, 8192
        s_add_u32 s53, s53, {SLOT}
        s_cmp_ge_u32 s53, {RING}
        s_cselect_b32 s53, 0, s53
        """)
    def need_rb():
        l0 = a.newlabel("l_rbok"); l1 = a.newlabel("l_rbpoll"); l2 = a.newlabel("l_rbgot")
        a(f"""
        s_lshr_b32 s28, s52, 13
        s_add_u32 s28, s28, 4
        s_lshr_b32 s28, s28, 3
        s_min_u32 s28, s28, 7
        s_lshl_b32 s29, 2, s28
        s_sub_u32 s29, s29, 1
        s_and_b32 s28, s61, s29
        s_cmp_eq_u32 s28, s29
        s_cbranch_scc1 {l0}
        s_lshl_b32 s40, s6, 8
        s_add_u32 s40, s40, {CNT_OFF + 64*256}
        v_mov_b32 v4, 0
        s_mov_b32 s41, 0
        {l1}:
        buffer_load_dwordx2 v[2:3], v4, s[20:23], s40 offen sc1
        s_waitcnt vmcnt(0)
        v_readfirstlane_b32 s61, v2
        v_readfirstlane_b32 s28, v3
        s_mul_i32 s61, s61, 0x01020408
        s_lshr_b32 s61, s61, 24
        s_and_b32 s61, s61, 15
        s_mul_i32 s28, s28, 0x01020408
        s_lshr_b32 s28, s28, 20
        s_and_b32 s28, s28, 0xf0
        s_or_b32 s61, s61, s28
        s_and_b32 s28, s61, s29
        s_cmp_eq_u32 s28, s29
        s_cbranch_scc1 {l2}
        s_sleep 4
        s_add_u32 s41, s41, 1
        s_cmp_lt_u32 s41, 0x100000
        s_cbranch_scc1 {l1}
        {l2}:
        {l0}:
        """)
    def task_setup():
        a("""
        s_sub_u32 s47, 15, s7
        s_cmp_eq_u32 s46, 0
        s_cselect_b32 s47, s47, s7
        s_lshl_b32 s50, s47, 2
        s_add_u32 s50, s50, 4
        """)
    XW = MISC
    XP = MISC + 8192 + 256
    def extra_loads(r):
        a(f"""
        s_sub_u32 s40, s3, 5
        s_lshl_b32 s28, s2, 15
        s_lshl_b32 s29, s40, 7
        s_add_u32 s29, s29, {r*256}
        s_add_u32 s28, s28, s29
        """)
        for s in range(4): a(f"buffer_load_dwordx4 v[{112+4*s}:{115+4*s}], v30, s[76:79], s28 offen offset:{s*32}")
        for s in range(4): a(f"buffer_load_dwordx4 v[{160+4*s}:{163+4*s}], v31, s[88:91], s29 offen offset:{s*32}")
        a(f"""
        s_lshl_b32 s28, s40, 12
        s_add_u32 m0, s28, {XW}
        s_lshl_b32 s29, s40, 11
        s_add_u32 s29, s29, {r*4096}
        s_mov_b32 s92, s70
        s_mov_b32 s93, s71
        s_mov_b32 s94, 16384
        s_mov_b32 s95, 0x00020000
        buffer_load_dwordx4 v1, s[92:95], s29 offen lds
        buffer_load_dwordx4 v1, s[92:95], s29 offen offset:1024 lds
        s_add_u32 m0, s28, {XW + 2048}
        s_mov_b32 s92, s68
        s_mov_b32 s93, s69
        buffer_load_dwordx4 v1, s[92:95], s29 offen lds
        buffer_load_dwordx4 v1, s[92:95], s29 offen offset:1024 lds
        """)
    def extra_compute(r):
        a(f"""
        s_sub_u32 s40, s3, 5
        s_lshl_b32 s29, s2, 15
        s_lshl_b32 s28, s40, 12
        s_add_u32 s29, s29, s28
        s_add_u32 s29, s29, {XF_OFF + r*8192}
        s_waitcnt vmcnt(0)
        """)
        for s in range(4):
            a(f"ds_read_b64_tr_b16 v[{176+4*s}:{177+4*s}], v6 offset:{s*512}")
            a(f"ds_read_b64_tr_b16 v[{178+4*s}:{179+4*s}], v6 offset:{s*512+128}")
        a("s_waitcnt lgkmcnt(0)")
        for s in range(4):
            xf = 112 + 4 * s; wf = 176 + 4 * s
            first = (r == 0 and s == 0)
            a(f"{MFMA} v[128:143], v[{wf}:{wf+3}], v[{xf}:{xf+3}], {'0' if first else 'v[128:143]'}")
            a(f"{MFMA} v[144:159], v[{xf}:{xf+3}], v[{wf}:{wf+3}], {'0' if first else 'v[144:159]'}")
            for i in range(4): a(f"v_dot2_f32_bf16 v7, v{xf+i}, v{160+4*s+i}, v7")
    def extra_part(k):
        l = f"k1_x{k}"
        if k == 10:
            a(f"""
            v_and_b32 v30, 31, v0
            v_lshrrev_b32 v31, 5, v0
            v_lshlrev_b32 v30, 10, v30
            v_lshlrev_b32 v31, 4, v31
            v_add_u32 v30, v31, v30
            v_lshrrev_b32 v5, 4, v0
            v_and_b32 v4, 15, v0
            v_and_b32 v6, 1, v5
            v_lshlrev_b32 v6, 11, v6
            v_lshrrev_b32 v2, 1, v5
            v_lshlrev_b32 v2, 3, v2
            v_lshrrev_b32 v3, 2, v4
            v_add_u32 v2, v2, v3
            v_lshl_add_u32 v6, v2, 5, v6
            v_and_b32 v3, 3, v4
            v_lshl_add_u32 v6, v3, 3, v6
            s_sub_u32 s40, s3, 5
            s_lshl_b32 s28, s40, 12
            s_add_u32 s28, s28, {XW}
            v_add_u32 v6, s28, v6
            v_mov_b32 v7, 0
            """)
            extra_loads(0)
        if 11 <= k <= 14:
            extra_compute(k - 11)
            if k < 14:
                a("s_nop 3")
                extra_loads(k - 10)
        if k == 14:
            a(f"""
            s_cmp_lg_u32 s3, 6
            s_cbranch_scc1 {l}
            v_add_u32 v2, {XP}, v1
            v_lshlrev_b32 v3, 2, v0
            v_add_u32 v3, {XP + 6144}, v3
            s_nop 15
            """)
            for b in range(6): a(f"ds_write_b128 v2, v[{136+4*b}:{139+4*b}] offset:{b*1024}")
            a("ds_write_b32 v3, v7")
            a("s_waitcnt lgkmcnt(0)")
        if k == 15:
            a(f"""
            s_cmp_lg_u32 s3, 5
            s_cbranch_scc1 {l}
            v_add_u32 v2, {XP}, v1
            v_lshlrev_b32 v3, 2, v0
            v_add_u32 v3, {XP + 6144}, v3
            """)
            for b in range(6): a(f"ds_read_b128 v[{160+4*b}:{163+4*b}], v2 offset:{b*1024}")
            a("ds_read_b32 v184, v3")
            a("s_waitcnt lgkmcnt(0)")
            for r in range(24): a(f"v_add_f32 v{136+r}, v{136+r}, v{160+r}")
            a("v_add_f32 v7, v7, v184")
            pack8(a, 160, 136); pack8(a, 164, 144); pack8(a, 168, 152)
            a(f"""
            s_lshl_b32 s28, s2, 10
            s_add_u32 s29, s28, {KA_OFF}
            buffer_store_dwordx4 v[160:163], v1, s[20:23], s29 offen sc1
            v_and_b32 v2, 31, v0
            v_lshrrev_b32 v3, 5, v0
            v_lshl_add_u32 v3, v3, 4, v2
            v_lshlrev_b32 v3, 4, v3
            s_add_u32 s29, s28, {VA_OFF}
            v_cmp_gt_u32 vcc, 16, v2
            s_and_saveexec_b64 s[62:63], vcc
            buffer_store_dwordx4 v[164:167], v3, s[20:23], s29 offen sc1
            buffer_store_dwordx4 v[168:171], v3, s[20:23], s29 offen offset:512 sc1
            s_mov_b64 exec, s[62:63]
            v_mov_b32 v2, v7
            s_nop 1
            v_permlane32_swap_b32 v2, v7
            s_nop 1
            v_add_f32 v7, v7, v2
            v_cvt_pk_bf16_f32 v7, v7, v7
            v_lshlrev_b32 v7, 16, v7
            v_mul_f32 v7, {f32hex(-LOG2E)}, v7
            v_exp_f32 v7, v7
            s_nop 0
            v_add_f32 v7, 1.0, v7
            v_rcp_f32 v7, v7
            s_nop 0
            v_cvt_pk_bf16_f32 v7, v7, v7
            v_lshlrev_b32 v172, 16, v7
            v_sub_f32 v173, 1.0, v172
            v_cvt_pk_bf16_f32 v173, v173, v173
            v_lshlrev_b32 v173, 16, v173
            v_lshlrev_b32 v3, 3, v0
            s_lshl_b32 s28, s2, 8
            s_add_u32 s28, s28, {G_OFF}
            v_cmp_gt_u32 vcc, 32, v0
            s_and_saveexec_b64 s[62:63], vcc
            buffer_store_dwordx2 v[172:173], v3, s[20:23], s28 offen sc1
            s_mov_b64 exec, s[62:63]
            """)
            signal(a, 32)
        a.label(l)
    epiK = epi_ops(0); epiV = epi_ops(1)
    SIG = 20
    for k in range(NK):
        ps = k >> 3
        for s in range(4):
            u = 4 * k + s
            extra = []
            if s == 2 and k + 1 < NK:
                if k == SIG - 1: vm.q = []; a("s_waitcnt vmcnt(0) lgkmcnt(0)")
                elif ('d', k + 1) not in vm.q: a("s_waitcnt lgkmcnt(0)")
                elif k == 22:
                    a("s_cmp_eq_u32 s3, 7")
                    a("s_cbranch_scc1 k1_w22")
                    a(f"s_waitcnt vmcnt({vm.need({('d', k + 1)})})")
                    a.label("k1_w22")
                    a("s_waitcnt lgkmcnt(0)")
                else: a(f"s_waitcnt vmcnt({vm.need({('d', k + 1)})}) lgkmcnt(0)")
                a("s_barrier")
                if k in (7, 15): st7(a, 5 + (k >> 3)); vm.issue("st") if STAMP else None
                if k >= 17 and not os.environ.get("P0ST"): st7(a, 7 + k - 17); vm.issue("st") if STAMP else None
                if k < 5 and os.environ.get("P0ST"): st7(a, 7 + k, tv=118); vm.issue("st") if STAMP else None
                if k == SIG - 1:
                    a(f"""
                    s_cmp_lg_u32 s3, 0
                    s_cbranch_scc1 k1_nosig
                    v_mov_b32 v3, 0
                    s_mov_b32 s41, 0
                    k1_ip:
                    buffer_load_ubyte v2, v3, s[80:83], s6 offen sc1
                    s_waitcnt vmcnt(0)
                    v_readfirstlane_b32 s29, v2
                    s_cmp_lg_u32 s29, 0
                    s_cbranch_scc1 k1_ipd
                    s_sleep 8
                    s_add_u32 s41, s41, 1
                    s_cmp_lt_u32 s41, 0x100000
                    s_cbranch_scc1 k1_ip
                    k1_ipd:
                    s_lshl_b32 s28, s6, 8
                    s_add_u32 s28, s28, s7
                    s_add_u32 s28, s28, {CNT_OFF + 64*256}
                    v_mov_b32 v2, 1
                    s_mov_b64 exec, 1
                    buffer_store_byte v2, v3, s[20:23], s28 offen sc1
                    s_mov_b64 exec, -1
                    k1_nosig:
                    """)
                if k + 3 < NK: extra = [(o, ("d", k + 3)) for o in dma_ops(k + 3)]
                if k >= 21:
                    a("s_cmp_lg_u32 s3, 7")
                    a(f"s_cbranch_scc1 k1_d{k}")
                    if k == 21:
                        a("""
                        s_mov_b32 s46, 0
                        s_mov_b32 s60, 0
                        s_mov_b32 s61, 0
                        """)
                        task_setup()
                        a("""
                        s_lshl_b32 s86, s50, 13
                        s_add_u32 s34, s86, 16384
                        s_mov_b32 s52, 0
                        s_mov_b32 s53, 0
                        """)
                        need_rb(); c_dma(); c_dma(); c_dma()
                    if k == 22:
                        c_dma(); c_dma()
                    a.label(f"k1_d{k}")
            else:
                a(f"s_waitcnt lgkmcnt({6 if u + 1 < 4*NK else 0})")
            if s == 0:
                TV, TX, TW = [int(x) for x in os.environ.get("TT", "0,4,11").split(",")]
                t0 = touch_ops(0)
                if k == 0: extra = [(o, "t") for o in t0[:-1]]
                if k == TV: extra = extra + [(t0[-1], "t")]
                if k == TX: extra = extra + [(o, "t") for o in touch_ops(1)]
                if k == TW: extra = extra + [(o, "t") for o in touch_ops(2)]
            if s < 2 and 8 <= k < 12:
                i = (k - 8) * 2 + s; extra = extra + [(o, "s") for o in epiK[5*i:5*i+5]]
            if s == 3: extra = carry
            if s == 2: carry = extra[len(extra)//2:]; extra = extra[:len(extra)//2]
            if 16 <= k < 18:
                i = (k - 16) * 4 + s; extra = extra + [(o, "s") for o in epiV[5*i:5*i+5]]
            rq = read_ops(u + 2) if u + 2 < 4 * NK else []
            f = FB + 16 * (u % 3)
            i = 0
            for m in range(2):
                for kb in range(2):
                    acc = ACC[ps] + 16 * (m * 2 + kb)
                    c = f"v[{f+4*kb}:{f+4*kb+3}]"; w = f"v[{f+8+4*m}:{f+11+4*m}]"
                    ci = "0" if (u & 31) == 0 else f"v[{acc}:{acc+15}]"
                    if ps == 1: a(f"{MFMA} v[{acc}:{acc+15}], {c}, {w}, {ci}")
                    else:       a(f"{MFMA} v[{acc}:{acc+15}], {w}, {c}, {ci}")
                    for o in rq[2*i: 2*i+2]: a(o)
                    ne = -(-len(extra) // (4 - i))
                    for o, t in extra[:ne]: emit(o, t)
                    extra = extra[ne:]
                    i += 1
    a(f"""
    s_barrier
    s_mov_b32 s28, {f32hex(LOG2E * 128 ** -0.5)}
    s_lshr_b32 s29, s3, 1
    s_lshl_b32 s29, s29, 14
    s_and_b32 s40, s3, 1
    s_lshl_b32 s40, s40, 12
    s_add_u32 s29, s29, s40
    s_add_u32 s29, s29, {QX}
    v_add_u32 v2, s29, v1
    s_nop 7
    """)
    for r in range(64): a(f"v_mul_f32 v{128+r}, s28, v{128+r}")
    n = 0
    for m in range(2):
        for kb in range(2):
            for g in range(2):
                tmp = 32 + 4 * n; n += 1
                pack8(a, tmp, 128 + 16 * (m * 2 + kb) + 8 * g)
                a(f"ds_write_b128 v2, v[{tmp}:{tmp+3}] offset:{kb*8192 + (2*m+g)*1024}")
    a("""
    s_waitcnt lgkmcnt(0)
    s_barrier
    s_cmp_eq_u32 s3, 7
    s_cbranch_scc1 l_task
    s_cmp_ge_u32 s3, 4
    s_cbranch_scc1 k1_side
    """)
    attn_compute(a, task_setup)
    side_workers(a, task_setup, extra_part)
    attn_loader(a, task_setup, c_dma, need_rb)
    phase3_A(a)
    phase3_G(a)
    a.label("k1_end")
    a("s_endpgm")
    return name, f"grid=(256,1,1) block=(512,1,1) lds={RING + 16384}", kernel_desc(name, 256)

def read_flags(a, tmp):
    a(f"""
    v_mov_b32 v{tmp}, {FLAG}
    ds_read_b128 v[{tmp+2}:{tmp+5}], v{tmp}
    s_waitcnt lgkmcnt(0)
    v_or3_b32 v{tmp}, v{tmp+2}, v{tmp+3}, v{tmp+4}
    v_or_b32 v{tmp}, v{tmp}, v{tmp+5}
    s_nop 0
    v_readfirstlane_b32 s28, v{tmp}
    """)

def attn_loader(a, task_setup, c_dma, need_rb):
    a.label("l_task")
    a("s_mov_b32 s58, 0")
    a.label("l_loop")
    a("s_waitcnt vmcnt(0)")
    a("s_barrier")
    a("s_mov_b32 s59, 0")
    need_rb()
    a.label("l_in")
    c_dma()
    a("""
    s_add_u32 s59, s59, 1
    s_cmp_lt_u32 s59, 4
    s_cbranch_scc1 l_in
    s_add_u32 s58, s58, 4
    s_add_u32 s28, s50, 2
    s_cmp_lt_u32 s58, s28
    s_cbranch_scc1 l_loop
    s_waitcnt vmcnt(0)
    s_barrier
    """)
    read_flags(a, 32)
    a("""
    s_cmp_eq_u32 s28, 0
    s_cbranch_scc1 l_ok
    s_cmp_lg_u32 s60, 0
    s_cbranch_scc1 l_ok
    s_mov_b32 s60, 1
    s_mov_b32 s58, 0
    """)
    a.label("l_max")
    a("s_lshl_b32 s52, s58, 13")
    for g in range(2):
        a(f"s_mov_b32 m0, {g*4096}")
        a(f"s_add_u32 s28, s52, {g*4096}")
        for i in range(4): a(f"buffer_load_dwordx4 v1, s[84:87], s28 offen offset:{i*1024} sc1 lds")
    a("""
    s_waitcnt vmcnt(0)
    s_barrier
    s_barrier
    s_add_u32 s58, s58, 1
    s_cmp_lt_u32 s58, s50
    s_cbranch_scc1 l_max
    s_branch l_pro
    """)
    a.label("l_ok")
    a("""
    s_mov_b32 s60, 0
    s_add_u32 s46, s46, 1
    s_cmp_ge_u32 s46, 2
    s_cbranch_scc1 p3_a
    """)
    task_setup()
    a("s_lshl_b32 s86, s50, 13")
    a("s_add_u32 s34, s86, 16384")
    a.label("l_pro")
    a("""
    s_mov_b32 s52, 0
    s_mov_b32 s53, 0
    s_mov_b32 s59, 0
    """)
    a.label("l_pro1")
    c_dma()
    a("""
    s_add_u32 s59, s59, 1
    s_cmp_lt_u32 s59, 5
    s_cbranch_scc1 l_pro1
    s_branch l_task
    """)

def attn_compute(a, task_setup):
    a(f"""
    s_lshl_b32 s28, s3, 13
    s_add_u32 s28, s28, {QX}
    v_add_u32 v2, s28, v1
    v_and_b32 v3, 31, v0
    v_lshrrev_b32 v4, 5, v0
    v_lshlrev_b32 v18, 2, v4
    v_sub_u32 v18, v3, v18
    s_mov_b32 s46, 0
    s_mov_b32 s60, 0
    """)
    for s in range(8): a(f"ds_read_b128 v[{QF+4*s}:{QF+4*s+3}], v2 offset:{s*1024}")
    for s in range(8): a(f"ds_read_b128 v[{Q2+4*s}:{Q2+4*s+3}], v2 offset:{32768 + s*1024}")
    task_setup()
    a("s_waitcnt lgkmcnt(0)")
    st7(a, 1, tv=28)
    a.label("b_task")
    a("""
    s_lshl_b32 s28, s47, 7
    s_lshl_b32 s29, s3, 5
    s_add_u32 s48, s28, s29
    s_sub_u32 s49, s50, 3
    s_add_u32 s49, s49, s3
    """)
    for r in range(64): a(f"v_mov_b32 v{O_+r}, 0")
    for r in range(4): a(f"v_mov_b32 v{24+r}, 0")
    a(f"""
    s_mov_b32 s56, {SLOT}
    s_mov_b32 s58, 0
    v_mov_b32 v20, v1
    """)
    def apply_mask(base):
        a("v_mov_b32 v19, 0xff800000")
        for r in range(16):
            a(f"v_cmp_gt_i32 vcc, {8*(r>>2)+(r&3)}, v18")
            a("s_nop 1")
            a(f"v_cndmask_b32 v{base+r}, v{base+r}, v19, vcc")
    def sm_ops(par):
        S = S_[par]; P = P_[par]
        ops = []
        for r in range(16):
            ops.append(f"v_exp_f32 v{S+r}, v{S+r}")
            if r >= 1: ops.append(f"v_add_f32 v{24+((r-1)&3)}, v{24+((r-1)&3)}, v{S+r-1}")
            if r & 1: ops.append(f"v_cvt_pk_bf16_f32 v{P+(r>>1)}, v{S+r-1}, v{S+r}")
        ops.append(f"v_add_f32 v27, v27, v{S+15}")
        return ops
    def cost(o): return 8 if o.startswith("v_exp") else 4
    def iteration(par, doQK, doSM, doPV, prefetched, extra=(), cinit=None, last=()):
        M = (list(range(8)) if doQK else []) + (list(range(8, 16)) if doPV else [])
        seq = M + (list(range(16, 20)) if doQK else [])
        book = [f"v_add_u32 v{20+(par^1)}, s56, v1",
                f"s_add_u32 s56, s56, {SLOT}",
                f"s_cmp_ge_u32 s56, {RING}",
                "s_cselect_b32 s56, 0, s56"] + list(extra)
        fill = sm_ops(par ^ 1) if doSM else []
        nM = len(M)
        if nM == 0:
            for o in book + fill + list(last): a(o)
            return
        def rdi(idx):
            j = seq[idx]; f = FR + 4 * (idx & 7)
            if j < 16: return f"ds_read_b128 v[{f}:{f+3}], v{20+par} offset:{j*1024}"
            return f"ds_read_b128 v[{f}:{f+3}], v{20+(par^1)} offset:{(j-16)*1024}"
        def mfi(idx):
            n = seq[idx]; f = FR + 4 * (idx & 7)
            if n < 8:
                S = S_[par]
                c = (cinit or f"v[{NEGM}:{NEGM+15}]") if n == 0 else f"v[{S}:{S+15}]"
                return f"{MFMA} v[{S}:{S+15}], v[{f}:{f+3}], v[{QF+4*n}:{QF+4*n+3}], {c}"
            k = n - 8; ks = k >> 2; b = k & 3
            P = P_[par]
            return f"{MFMA} v[{O_+16*b}:{O_+16*b+15}], v[{f}:{f+3}], v[{P+4*ks}:{P+4*ks+3}], v[{O_+16*b}:{O_+16*b+15}]"
        if not (prefetched and doQK):
            for idx in range(4): a(rdi(idx))
        nv = nM - nM // 4
        tot = sum(cost(o) for o in fill)
        done = 0; gi = 0
        for p in range(nM):
            if p % 4 == 0: a("s_waitcnt lgkmcnt(0)")
            a(mfi(p))
            if p == nM - 1:
                for o in last: a(o)
            if p % 4 == 0:
                if p == 0:
                    for o in book: a(o)
                for idx in range(p + 4, min(p + 8, len(seq))): a(rdi(idx))
            else:
                gi += 1
                tgt = tot * gi / nv
                while fill and (done + cost(fill[0]) / 2 <= tgt or gi == nv):
                    done += cost(fill[0]); a(fill.pop(0))
        assert not fill
    a.label("b_loop")
    a("""
    s_and_b32 s28, s58, 3
    s_cmp_lg_u32 s28, 0
    s_cbranch_scc1 b_slow2
    s_cmp_lt_u32 s58, 4
    s_cbranch_scc1 b_slow
    s_add_u32 s28, s58, 8
    s_cmp_gt_u32 s28, s50
    s_cbranch_scc1 b_slow
    s_sub_u32 s59, s50, 4
    """)
    a.label("b_fast")
    a("s_barrier")
    iteration(0, True, True, True, True)
    iteration(1, True, True, True, True)
    iteration(0, True, True, True, True)
    iteration(1, True, True, True, True, ["s_add_u32 s58, s58, 4"], last=["s_cmp_lt_u32 s58, s59"])
    a("s_cbranch_scc1 b_fast")
    a.label("b_slow")
    a("s_barrier")
    a.label("b_slow2")
    for par in (0, 1):
        lnext = a.newlabel("b_next"); lns = a.newlabel("b_nonsteady"); ld = a.newlabel("b_nodiag")
        a("s_add_u32 s28, s58, 1")
        a("s_cmp_lg_u32 s28, s49")
        a(f"s_cbranch_scc1 {ld}")
        apply_mask(NEGM)
        a.label(ld)
        a("s_cmp_lt_u32 s58, 2")
        a(f"s_cbranch_scc1 {lns}")
        a("s_cmp_ge_u32 s58, s49")
        a(f"s_cbranch_scc1 {lns}")
        iteration(par, True, True, True, True)
        a(f"s_branch {lnext}")
        a.label(lns)
        l_g = a.newlabel("b_ge"); l_pv = a.newlabel("b_pv"); l_none = a.newlabel("b_none"); l_sm = a.newlabel("b_sm")
        a("s_cmp_ge_u32 s58, s49")
        a(f"s_cbranch_scc1 {l_g}")
        if par == 0:
            lr = a.newlabel("b_g0raw")
            a("s_cmp_eq_u32 s60, 0")
            a(f"s_cbranch_scc1 {lr}")
            iteration(0, True, False, False, False)
            a(f"s_branch {lnext}")
            a.label(lr)
            iteration(0, True, False, False, False, cinit="0")
            a("s_nop 15")
            lm = a.newlabel("b_nomask0")
            a("s_cmp_lg_u32 s49, 1")
            a(f"s_cbranch_scc1 {lm}")
            apply_mask(S_[0])
            a.label(lm)
            S = S_[0]
            a(f"v_max3_f32 v22, v{S}, v{S+1}, v{S+2}")
            for r in range(3, 15, 2): a(f"v_max3_f32 v22, v22, v{S+r}, v{S+r+1}")
            a(f"v_max_f32 v22, v22, v{S+15}")
            a("""
            v_mov_b32 v19, v22
            s_nop 1
            v_permlane32_swap_b32 v19, v22
            s_nop 1
            v_max_f32 v22, v22, v19
            """)
            for r in range(16): a(f"v_sub_f32 v{S+r}, v{S+r}, v22")
            for r in range(16): a(f"v_sub_f32 v{NEGM+r}, 0, v22")
        else:
            iteration(1, True, True, False, True)
        a(f"s_branch {lnext}")
        a.label(l_g)
        a("s_cmp_eq_u32 s58, s49")
        a(f"s_cbranch_scc0 {l_pv}")
        a("s_cmp_lt_u32 s58, 2")
        a(f"s_cbranch_scc1 {l_sm}")
        iteration(par, False, True, True, False)
        a(f"s_branch {lnext}")
        a.label(l_sm)
        iteration(par, False, True, False, False)
        a(f"s_branch {lnext}")
        a.label(l_pv)
        a("s_add_u32 s28, s49, 1")
        a("s_cmp_eq_u32 s58, s28")
        a(f"s_cbranch_scc0 {l_none}")
        a("s_nop 1")
        iteration(par, False, False, True, False)
        a(f"s_branch {lnext}")
        a.label(l_none)
        iteration(par, False, False, False, False)
        a.label(lnext)
        a("s_add_u32 s58, s58, 1")
    a("s_add_u32 s28, s50, 2")
    a("s_cmp_lt_u32 s58, s28")
    a("s_cbranch_scc1 b_loop")
    if STAMP:
        a("s_cmp_lg_u32 s46, 0"); a("s_cbranch_scc1 b_st2"); st7(a, 2, tv=28); a.label("b_st2")
    a(f"""
    s_nop 7
    v_add_f32 v24, v24, v25
    v_add_f32 v26, v26, v27
    v_add_f32 v24, v24, v26
    v_mov_b32 v19, v24
    s_nop 1
    v_permlane32_swap_b32 v19, v24
    s_nop 1
    v_add_f32 v24, v24, v19
    v_rcp_f32 v26, v24
    v_mov_b32 v19, 0
    """)
    for r in range(64): a(f"v_fma_f32 v19, v{O_+r}, 0, v19")
    a(f"""
    s_mov_b32 s28, {f32hex(2.0**THR)}
    v_cmp_nle_f32 vcc, v24, s28
    v_cmp_u_f32 s[62:63], v19, v19
    s_or_b64 s[62:63], s[62:63], vcc
    s_cmp_lg_u64 s[62:63], 0
    s_cselect_b32 s28, 1, 0
    v_mov_b32 v19, s28
    s_lshl_b32 s29, s3, 2
    s_lshl_b32 s40, s46, 4
    s_add_u32 s29, s29, {FLAG}
    v_mov_b32 v22, s29
    ds_write_b32 v22, v19
    s_waitcnt lgkmcnt(0)
    s_barrier
    """)
    read_flags(a, 32)
    a("""
    s_cmp_eq_u32 s28, 0
    s_cbranch_scc1 b_ok
    s_cmp_lg_u32 s60, 0
    s_cbranch_scc1 b_ok
    s_mov_b32 s60, 1
    s_mov_b32 s58, 0
    v_mov_b32 v22, 0xff800000
    """)
    a.label("b_maxloop")
    a("""
    s_barrier
    s_cmp_ge_u32 s58, s49
    s_cbranch_scc1 b_maxskip
    """)
    for n in range(8): a(f"ds_read_b128 v[{FR+4*n}:{FR+4*n+3}], v1 offset:{n*1024}")
    a("s_waitcnt lgkmcnt(0)")
    for n in range(8):
        S = S_[0]
        c = "0" if n == 0 else f"v[{S}:{S+15}]"
        a(f"{MFMA} v[{S}:{S+15}], v[{FR+4*n}:{FR+4*n+3}], v[{QF+4*n}:{QF+4*n+3}], {c}")
    a("""
    s_nop 15
    s_add_u32 s28, s58, 1
    s_cmp_lg_u32 s28, s49
    s_cbranch_scc1 b_maxnomask
    """)
    apply_mask(S_[0])
    a.label("b_maxnomask")
    for r in range(0, 16, 2): a(f"v_max3_f32 v22, v22, v{S_[0]+r}, v{S_[0]+r+1}")
    a.label("b_maxskip")
    a("""
    s_barrier
    s_add_u32 s58, s58, 1
    s_cmp_lt_u32 s58, s50
    s_cbranch_scc1 b_maxloop
    v_mov_b32 v19, v22
    s_nop 1
    v_permlane32_swap_b32 v19, v22
    s_nop 1
    v_max_f32 v22, v22, v19
    """)
    for r in range(16): a(f"v_sub_f32 v{NEGM+r}, 0, v22")
    a("s_branch b_task")
    a.label("b_ok")
    a("""
    s_mov_b32 s60, 0
    s_add_u32 s46, s46, 1
    """)
    task_setup()
    for r in range(64): a(f"v_mul_f32 v{O_+r}, v26, v{O_+r}")
    a(f"""
    s_lshr_b32 s28, s48, 5
    s_mul_i32 s28, s28, {ZF_RG}
    s_lshl_b32 s29, s6, 13
    s_add_u32 s28, s28, s29
    s_add_u32 s28, s28, {ZF_OFF}
    s_add_u32 s29, s28, 4096
    """)
    for kk in range(8):
        t = FR + 4 * kk
        pack8(a, t, O_ + 8 * kk)
        a(f"buffer_store_dwordx4 v[{t}:{t+3}], v1, s[20:23], s{28 + (kk >> 2)} offen offset:{(kk & 3) * 1024} sc1")
    for r in range(32): a(f"v_mov_b32 v{QF+r}, v{Q2+r}")
    a("""
    s_cmp_lt_u32 s46, 2
    s_cbranch_scc1 b_task
    """)
    st7(a, 3, tv=28)
    a("""
    s_waitcnt vmcnt(0)
    s_mov_b32 s49, s7
    s_branch p3_g
    """)

def cidx(a, base, sreg=None):
    if sreg is None: a(f"s_mov_b32 s40, {CNT_OFF + base*256}")
    else:
        a(f"s_lshl_b32 s40, {sreg}, 8"); a(f"s_add_u32 s40, s40, {CNT_OFF + base*256}")

def signal(a, base, sreg=None, wait=True):
    if wait: a("s_waitcnt vmcnt(0)")
    cidx(a, base, sreg)
    a(f"""
    v_mov_b32 v2, 1
    v_mov_b32 v3, 0
    s_mov_b64 exec, 1
    buffer_atomic_add v2, v3, s[20:23], s40 offen sc1
    s_mov_b64 exec, -1
    """)

def poll(a, base, target, slp=8, sreg=None, dbg=False):
    l1 = a.newlabel("poll"); l2 = a.newlabel("polled")
    if dbg: a(f"s_mov_b32 s40, {base}")
    else: cidx(a, base, sreg)
    a(f"""
    v_mov_b32 v3, 0
    s_mov_b32 s41, 0
    {l1}:
    buffer_load_dword v2, v3, s[{80 if dbg else 20}:{83 if dbg else 23}], s40 offen sc1
    s_waitcnt vmcnt(0)
    v_readfirstlane_b32 s29, v2
    s_cmp_ge_u32 s29, {target}
    s_cbranch_scc1 {l2}
    s_sleep {slp}
    s_add_u32 s41, s41, 1
    s_cmp_lt_u32 s41, 0x100000
    s_cbranch_scc1 {l1}
    {l2}:
    """)

def amap(a):
    a("""
    s_and_b32 s28, s2, 7
    s_lshl_b32 s28, s28, 1
    s_lshr_b32 s29, s2, 7
    s_add_u32 s66, s28, s29
    s_lshr_b32 s67, s2, 3
    s_and_b32 s67, s67, 15
    """)

def side_workers(a, task_setup, extra_part):
    a.label("k1_side")
    amap(a)
    WB = MISC + 8192 + 256
    a(f"""
    s_waitcnt vmcnt(0)
    s_mov_b32 s46, 0
    s_mov_b32 s44, 0
    s_sub_u32 s45, s3, 4
    v_and_b32 v4, 31, v0
    v_lshrrev_b32 v5, 5, v0
    v_lshlrev_b32 v12, 10, v4
    v_lshl_add_u32 v12, v5, 4, v12
    s_lshl_b32 s28, s66, 2
    s_add_u32 s28, s28, s45
    s_lshl_b32 s48, s28, 15
    s_lshl_b32 s49, s66, 2
    s_add_u32 s49, s49, 3
    s_lshl_b32 s49, s49, 15
    v_bfe_u32 v6, v0, 2, 2
    v_lshl_add_u32 v13, v5, 3, v6
    v_lshlrev_b32 v13, 6, v13
    v_lshl_add_u32 v14, v5, 2, v6
    v_lshlrev_b32 v14, 6, v14
    v_bfe_u32 v6, v0, 4, 1
    v_lshlrev_b32 v6, 5, v6
    v_and_b32 v7, 3, v0
    v_lshl_add_u32 v6, v7, 3, v6
    v_add_u32 v13, v6, v13
    v_add_u32 v13, {MISC}, v13
    v_add_u32 v14, v6, v14
    s_lshl_b32 s28, s45, 10
    s_add_u32 s51, s28, {WB}
    v_add_u32 v14, s51, v14
    v_lshrrev_b32 v15, 2, v0
    v_lshlrev_b32 v15, 10, v15
    v_lshl_add_u32 v15, v7, 4, v15
    s_mov_b32 s92, s58
    s_mov_b32 s93, s59
    s_mov_b32 s94, {512*1024}
    s_mov_b32 s95, 0x00020000
    s_mul_i32 s52, s2, 18
    s_mul_i32 s28, s45, 6
    s_add_u32 s52, s52, s28
    s_mov_b32 s19, 0x00020000
    """)
    task_setup()
    a("s_cmp_lg_u32 s3, 5")
    a("s_cbranch_scc1 sw_ni")
    a("""
    v_mov_b32 v3, 0
    s_mov_b32 s41, 0
    sw_ip:
    buffer_load_dword v2, v3, s[80:83], 0 offen sc1
    s_waitcnt vmcnt(0)
    v_readfirstlane_b32 s29, v2
    s_and_b32 s29, s29, 1
    s_cbranch_scc1 sw_ipd
    s_sleep 8
    s_add_u32 s41, s41, 1
    s_cmp_lt_u32 s41, 0x100000
    s_cbranch_scc1 sw_ip
    sw_ipd:
    """)
    a.label("sw_ni")
    QA0 = 128; QA1 = 144; XA = 64; XB = 80; WQF = 96
    for j in range(10):
        a("s_barrier")
        if j >= 1:
            a("s_waitcnt vmcnt(0)")
        if 1 <= j <= 8:
            p = j - 1
            for s in range(4):
                a(f"ds_read_b64_tr_b16 v[{WQF+4*s}:{WQF+4*s+1}], v13 offset:{(p&1)*4096 + s*1024}")
                a(f"ds_read_b64_tr_b16 v[{WQF+4*s+2}:{WQF+4*s+3}], v13 offset:{(p&1)*4096 + s*1024 + 256}")
        if 1 <= j <= 6:
            a("ds_read_b64_tr_b16 v[112:113], v14")
            a("ds_read_b64_tr_b16 v[114:115], v14 offset:512")
        if j >= 1: a("s_waitcnt lgkmcnt(0)")
        if 1 <= j <= 6:
            a(f"""
            s_lshl_b32 s28, s52, 10
            s_add_u32 s28, s28, {WF_OFF}
            buffer_store_dwordx4 v[112:115], v1, s[20:23], s28 offen sc1
            s_add_u32 s52, s52, 1
            """)
        if 1 <= j <= 8:
            for s in range(4):
                c = "0" if (j == 1 and s == 0) else f"v[{QA0}:{QA0+15}]"
                a(f"{MFMA} v[{QA0}:{QA0+15}], v[{WQF+4*s}:{WQF+4*s+3}], v[{XA+4*s}:{XA+4*s+3}], {c}")
            l = a.newlabel("sw_n2")
            a("s_cmp_lg_u32 s3, 4")
            a(f"s_cbranch_scc1 {l}")
            for s in range(4):
                c = "0" if (j == 1 and s == 0) else f"v[{QA1}:{QA1+15}]"
                a(f"{MFMA} v[{QA1}:{QA1+15}], v[{WQF+4*s}:{WQF+4*s+3}], v[{XB+4*s}:{XB+4*s+3}], {c}")
            a.label(l)
        if j <= 7:
            for s in range(4): a(f"buffer_load_dwordx4 v[{XA+4*s}:{XA+4*s+3}], v12, s[76:79], s48 offen offset:{j*128 + s*32}")
            l = a.newlabel("sw_n3"); l2 = a.newlabel("sw_n4")
            a("s_cmp_lg_u32 s3, 4")
            a(f"s_cbranch_scc1 {l}")
            for s in range(4): a(f"buffer_load_dwordx4 v[{XB+4*s}:{XB+4*s+3}], v12, s[76:79], s49 offen offset:{j*128 + s*32}")
            a.label(l)
            a("s_cmp_lg_u32 s3, 6")
            a(f"s_cbranch_scc1 {l2}")
            a(f"s_mov_b32 m0, {MISC + (j&1)*4096}")
            a("s_lshl_b32 s29, s67, 6")
            for i in range(4):
                a(f"s_add_u32 s28, s29, {j*65536 + i*16384 - i*1024}")
                a(f"buffer_load_dwordx4 v15, s[92:95], s28 offen offset:{i*1024} lds")
            a.label(l2)
        if j <= 5:
            a(f"""
            s_lshr_b32 s28, s52, 4
            s_and_b32 s29, s52, 15
            s_lshl_b32 s29, s29, 6
            s_cmp_lt_u32 s28, 256
            s_cselect_b32 s16, s56, s60
            s_cselect_b32 s17, s57, s61
            s_cselect_b32 s18, {4*MB}, s94
            s_and_b32 s28, s28, 255
            s_lshl_b32 s28, s28, 14
            s_add_u32 s28, s28, s29
            s_mov_b32 m0, s51
            s_nop 0
            buffer_load_dwordx4 v15, s[16:19], s28 offen lds
            """)
        if j == 7: pass
        if j == 8:
            l = a.newlabel("sw_wf")
            a("s_cmp_lg_u32 s3, 5")
            a(f"s_cbranch_scc1 {l}")
            signal(a, 33, wait=False)
            a.label(l)
        if j == 9:
            a(f"s_mov_b32 s28, {f32hex(LOG2E * 0.25)}")
            for r in range(32): a(f"v_mul_f32 v{QA0+r}, s28, v{QA0+r}")
            for i in range(4): pack8(a, 64 + 4 * i, QA0 + 8 * i)
            a(f"""
            s_lshl_b32 s28, s2, 13
            s_lshl_b32 s29, s45, 11
            s_add_u32 s29, s29, s28
            s_add_u32 s29, s29, {QA_OFF}
            buffer_store_dwordx4 v[64:67], v1, s[20:23], s29 offen sc1
            buffer_store_dwordx4 v[68:71], v1, s[20:23], s29 offen offset:1024 sc1
            s_cmp_lg_u32 s3, 4
            s_cbranch_scc1 sw_q3
            s_add_u32 s29, s28, {QA_OFF + 6144}
            buffer_store_dwordx4 v[72:75], v1, s[20:23], s29 offen sc1
            buffer_store_dwordx4 v[76:79], v1, s[20:23], s29 offen offset:1024 sc1
            sw_q3:
            s_waitcnt vmcnt(0)
            """)
        if j <= 7:
            l = a.newlabel("sw_n5")
            a("s_cmp_lg_u32 s3, 6")
            a(f"s_cbranch_scc1 {l}")
            a("s_waitcnt vmcnt(0)")
            a.label(l)
    a("""
    s_mov_b32 s58, 40
    s_cmp_ge_u32 s2, 64
    s_cbranch_scc1 sw_chk
    """)
    for k in range(10, 16):
        a("s_barrier")
        l = a.newlabel("sw_x")
        a("s_cmp_eq_u32 s3, 4")
        a(f"s_cbranch_scc1 {l}")
        extra_part(k)
        a.label(l)
    a("s_mov_b32 s58, 64")
    a("s_branch sw_chk")
    a.label("sw_task")
    a("s_mov_b32 s58, 0")
    a.label("sw_loop")
    a("s_barrier")
    a("s_add_u32 s58, s58, 4")
    a.label("sw_chk")
    a("""
    s_add_u32 s28, s50, 2
    s_cmp_lt_u32 s58, s28
    s_cbranch_scc1 sw_loop
    s_barrier
    """)
    read_flags(a, 32)
    a("""
    s_cmp_eq_u32 s28, 0
    s_cbranch_scc1 sw_ok
    s_cmp_lg_u32 s44, 0
    s_cbranch_scc1 sw_ok
    s_mov_b32 s44, 1
    s_mov_b32 s58, 0
    sw_max:
    s_barrier
    s_barrier
    s_add_u32 s58, s58, 1
    s_cmp_lt_u32 s58, s50
    s_cbranch_scc1 sw_max
    s_branch sw_task
    sw_ok:
    s_mov_b32 s44, 0
    s_add_u32 s46, s46, 1
    s_cmp_ge_u32 s46, 2
    s_cbranch_scc1 p3_a
    """)
    task_setup()
    a("s_branch sw_task")

def phase3_A(a):
    AQ = 8; ANEG = (32, 48); AO = (64, 80); AS = (96, 112); AP = (16, 24); AKV = 128
    a.label("p3_a")
    amap(a)
    a("s_sub_u32 s45, s3, 4")
    poll(a, 32, 64)
    a(f"""
    s_lshl_b32 s28, s45, 14
    s_add_u32 s50, s28, {KA_OFF}
    s_add_u32 s51, s28, {VA_OFF}
    """)
    for (sr, lo) in ((50, 0), (51, 65536)):
        for g in range(4):
            a(f"s_add_u32 m0, s28, {lo + g*4096}")
            a(f"s_add_u32 s29, s{sr}, {g*4096}")
            for i in range(4): a(f"buffer_load_dwordx4 v1, s[20:23], s29 offen offset:{i*1024} sc1 lds")
    a(f"""
    s_lshl_b32 s28, s2, 13
    s_lshl_b32 s29, s45, 11
    s_add_u32 s29, s29, s28
    s_add_u32 s29, s29, {QA_OFF}
    buffer_load_dwordx4 v[{AQ}:{AQ+3}], v1, s[20:23], s29 offen sc1
    buffer_load_dwordx4 v[{AQ+4}:{AQ+7}], v1, s[20:23], s29 offen offset:1024 sc1
    s_lshl_b32 s48, s66, 7
    s_lshl_b32 s29, s45, 5
    s_add_u32 s48, s48, s29
    v_and_b32 v3, 31, v0
    v_lshrrev_b32 v4, 5, v0
    v_add_u32 v2, s48, v3
    v_lshlrev_b32 v2, 3, v2
    s_mov_b32 s28, {G_OFF}
    buffer_load_dword v160, v2, s[20:23], s28 offen sc1
    v_lshl_add_u32 v7, v4, 4, v3
    v_lshlrev_b32 v7, 4, v7
    v_add_u32 v7, 0x10000, v7
    v_mov_b32 v2, 0x3f803f80
    v_cmp_eq_u32 vcc, 16, v3
    s_nop 1
    v_cndmask_b32 v2, 0, v2, vcc
    v_cmp_gt_u32 s[62:63], 16, v3
    s_mov_b32 s60, 0
    """)
    for st in range(2):
        for r in range(8): a(f"v_mov_b32 v{AKV+12*st+4+r}, v2")
    a("s_waitcnt vmcnt(0)")
    a("s_barrier")
    st7(a, 12, tv=250)
    a("s_setprio 3")
    a.label("p3a_start")
    a(f"""
    v_mov_b32 v5, v1
    v_mov_b32 v6, v7
    ds_read_b128 v[{AKV+12}:{AKV+15}], v5
    """)
    def stage_reads(j, stg):
        f = AKV + 12 * stg
        return [f"ds_read_b128 v[{f}:{f+3}], v5 offset:{(j+1)*1024}",
                "s_mov_b64 exec, s[62:63]",
                f"ds_read_b128 v[{f+4}:{f+7}], v6 offset:{j*1024}",
                f"ds_read_b128 v[{f+8}:{f+11}], v6 offset:{j*1024 + 512}",
                "s_mov_b64 exec, -1"]
    for o in stage_reads(0, 0): a(o)
    for X in range(2):
        for r in range(16): a(f"v_mov_b32 v{AO[X]+r}, 0")
    a("s_waitcnt lgkmcnt(3)")
    K0 = AKV + 12
    a("s_cmp_eq_u32 s60, 0")
    a("s_cbranch_scc1 p3a_raw")
    for X in range(2):
        a(f"{MFMA} v[{AS[X]}:{AS[X]+15}], v[{K0}:{K0+3}], v[{AQ+4*X}:{AQ+4*X+3}], v[{ANEG[X]}:{ANEG[X]+15}]")
    a("s_nop 15")
    a("s_branch p3a_go")
    a.label("p3a_raw")
    for X in range(2):
        a(f"{MFMA} v[{AS[X]}:{AS[X]+15}], v[{K0}:{K0+3}], v[{AQ+4*X}:{AQ+4*X+3}], 0")
    a("s_nop 15")
    for X in range(2):
        S = AS[X]
        a(f"v_max3_f32 v2, v{S}, v{S+1}, v{S+2}")
        for r in range(3, 15, 2): a(f"v_max3_f32 v2, v2, v{S+r}, v{S+r+1}")
        a(f"v_max_f32 v2, v2, v{S+15}")
        a("""
        v_mov_b32 v161, v2
        s_nop 1
        v_permlane32_swap_b32 v161, v2
        s_nop 1
        v_max_f32 v2, v2, v161
        """)
        for r in range(16): a(f"v_sub_f32 v{S+r}, v{S+r}, v2")
        for r in range(16): a(f"v_sub_f32 v{ANEG[X]+r}, 0, v2")
    a.label("p3a_go")
    a("s_mov_b32 s52, 0")
    def valu(X):
        S = AS[X]; P = AP[X]
        ops = []
        for r in range(16):
            ops.append(f"v_exp_f32 v{S+r}, v{S+r}")
            if r >= 2 and (r & 1) == 0: ops.append(f"v_cvt_pk_bf16_f32 v{P+(r>>1)-1}, v{S+r-2}, v{S+r-1}")
        ops.append("s_nop 0")
        ops.append(f"v_cvt_pk_bf16_f32 v{P+7}, v{S+14}, v{S+15}")
        return ops
    def phase(X, f, extra=(), grp=()):
        Y = X ^ 1
        ops = valu(X)
        m = [f"{MFMA} v[{AS[Y]}:{AS[Y]+15}], v[{f}:{f+3}], v[{AQ+4*Y}:{AQ+4*Y+3}], v[{ANEG[Y]}:{ANEG[Y]+15}]",
             f"{MFMA} v[{AO[Y]}:{AO[Y]+15}], v[{f+4}:{f+7}], v[{AP[Y]}:{AP[Y]+3}], v[{AO[Y]}:{AO[Y]+15}]",
             f"{MFMA} v[{AO[Y]}:{AO[Y]+15}], v[{f+8}:{f+11}], v[{AP[Y]+4}:{AP[Y]+7}], v[{AO[Y]}:{AO[Y]+15}]"]
        extra = list(extra)
        for i, o in enumerate(ops):
            if i == 0:
                a(m[0])
                for g in grp: a(g)
            if i == 5: a(m[1])
            if i == 11: a(m[2])
            a(o)
            if i >= 1 and extra: a(extra.pop(0))
    for o in valu(0): a(o)
    a.label("p3a_loop")
    for j in range(8):
        stg = j & 1
        f = AKV + 12 * stg
        a("s_waitcnt lgkmcnt(0)")
        phase(1, f, grp=stage_reads(j + 1, stg ^ 1))
        ex = []
        if j == 7: ex = ["v_add_u32 v5, 0x2000, v5", "v_add_u32 v6, 0x2000, v6", "s_add_u32 s52, s52, 1", "s_cmp_lt_u32 s52, 8"]
        phase(0, f, extra=ex)
    a("s_cbranch_scc1 p3a_loop")
    a(f"""
    s_waitcnt lgkmcnt(0)
    s_nop 15
    v_lshlrev_b32 v5, 2, v3
    ds_bpermute_b32 v6, v5, v{AO[0]+8}
    ds_bpermute_b32 v161, v5, v{AO[1]+8}
    v_mov_b32 v4, 0
    """)
    for X in range(2):
        for r in range(8): a(f"v_fma_f32 v4, v{AO[X]+r}, 0, v4")
    a(f"""
    s_mov_b32 s28, {f32hex(2.0**THR)}
    s_waitcnt lgkmcnt(0)
    v_cmp_nle_f32 vcc, v6, s28
    v_cmp_nle_f32 s[56:57], v161, s28
    s_or_b64 s[56:57], s[56:57], vcc
    v_cmp_u_f32 vcc, v4, v4
    s_or_b64 s[56:57], s[56:57], vcc
    s_cmp_eq_u64 s[56:57], 0
    s_cbranch_scc1 p3a_ok
    s_cmp_lg_u32 s60, 0
    s_cbranch_scc1 p3a_ok
    s_mov_b32 s60, 1
    s_mov_b32 s52, 0
    v_mov_b32 v5, v1
    v_mov_b32 v162, 0xff800000
    v_mov_b32 v163, 0xff800000
    p3a_max:
    ds_read_b128 v[{AKV}:{AKV+3}], v5
    v_add_u32 v5, 0x400, v5
    s_waitcnt lgkmcnt(0)
    """)
    for X in range(2):
        a(f"{MFMA} v[{AS[X]}:{AS[X]+15}], v[{AKV}:{AKV+3}], v[{AQ+4*X}:{AQ+4*X+3}], 0")
    a("s_nop 15")
    for X in range(2):
        for r in range(0, 16, 2): a(f"v_max3_f32 v{162+X}, v{162+X}, v{AS[X]+r}, v{AS[X]+r+1}")
    a("""
    s_add_u32 s52, s52, 1
    s_cmp_lt_u32 s52, 64
    s_cbranch_scc1 p3a_max
    """)
    for X in range(2):
        a(f"""
        v_mov_b32 v5, v{162+X}
        s_nop 1
        v_permlane32_swap_b32 v5, v{162+X}
        s_nop 1
        v_max_f32 v{162+X}, v{162+X}, v5
        """)
        for r in range(16): a(f"v_sub_f32 v{ANEG[X]+r}, 0, v{162+X}")
    a("s_branch p3a_start")
    a.label("p3a_ok")
    a(f"""
    v_rcp_f32 v6, v6
    v_rcp_f32 v161, v161
    s_lshr_b32 s28, s48, 5
    s_mul_i32 s28, s28, {ZF_RG}
    s_lshl_b32 s29, s67, 11
    s_add_u32 s28, s28, s29
    s_add_u32 s28, s28, {ZF_OFF + 256*1024}
    v_mul_f32 v6, v6, v160
    v_mul_f32 v161, v161, v160
    """)
    for X in range(2):
        for r in range(8): a(f"v_mul_f32 v{AO[X]+r}, v{(6, 161)[X]}, v{AO[X]+r}")
        pack8(a, AP[X], AO[X])
        a(f"buffer_store_dwordx4 v[{AP[X]}:{AP[X]+3}], v1, s[20:23], s28 offen offset:{X*1024} sc1")
    signal(a, 16, "s66")
    st7(a, 13, tv=250)
    a("s_endpgm")

def phase3_G(a):
    ACC = 192; RG = 32
    a.label("p3_g")
    amap(a)
    srd(a, 16, 74, 2*MB)
    a(f"""
    s_and_b32 s28, s2, 7
    s_lshl_b32 s28, s28, 2
    s_lshr_b32 s29, s2, 6
    s_add_u32 s6, s28, s29
    s_lshr_b32 s7, s2, 3
    s_and_b32 s7, s7, 7
    s_mul_i32 s44, s6, {2*ZF_RG}
    s_lshl_b32 s28, s3, 11
    s_add_u32 s44, s44, s28
    s_add_u32 s44, s44, {ZF_OFF}
    s_add_u32 s45, s44, {ZF_RG}
    s_lshl_b32 s46, s3, 15
    s_lshl_b32 s28, s7, 11
    s_add_u32 s46, s46, s28
    s_add_u32 s46, s46, {WF_OFF}
    s_add_u32 s47, s46, 16384
    s_barrier
    s_cmp_lg_u32 s3, 0
    s_cbranch_scc1 p3g_ns
    """)
    signal(a, 0, "s49", wait=False)
    a("s_sub_u32 s49, 15, s49")
    signal(a, 0, "s49", wait=False)
    a.label("p3g_ns")
    poll(a, 33, 256)
    def issue_w(slot):
        r = RG + 32 * slot + 16
        a(f"buffer_load_dwordx4 v[{r}:{r+3}], v1, s[20:23], s46 offen sc1")
        a(f"buffer_load_dwordx4 v[{r+4}:{r+7}], v1, s[20:23], s46 offen offset:1024 sc1")
        a(f"buffer_load_dwordx4 v[{r+8}:{r+11}], v1, s[20:23], s47 offen sc1")
        a(f"buffer_load_dwordx4 v[{r+12}:{r+15}], v1, s[20:23], s47 offen offset:1024 sc1")
        a(f"s_add_u32 s46, s46, {4*32768}")
        a(f"s_add_u32 s47, s47, {4*32768}")
    def issue_z(slot):
        r = RG + 32 * slot
        a(f"buffer_load_dwordx4 v[{r}:{r+3}], v1, s[20:23], s44 offen sc1")
        a(f"buffer_load_dwordx4 v[{r+4}:{r+7}], v1, s[20:23], s44 offen offset:1024 sc1")
        a(f"buffer_load_dwordx4 v[{r+8}:{r+11}], v1, s[20:23], s45 offen sc1")
        a(f"buffer_load_dwordx4 v[{r+12}:{r+15}], v1, s[20:23], s45 offen offset:1024 sc1")
        a("s_add_u32 s44, s44, 8192")
        a("s_add_u32 s45, s45, 8192")
    def mm(slot):
        r = RG + 32 * slot
        for s in range(2):
            for m in range(2):
                for rg in range(2):
                    w = r + 16 + 8 * s + 4 * m; z = r + 8 * rg + 4 * s
                    acc = ACC + 16 * (2 * m + rg)
                    a(f"{MFMA} v[{acc}:{acc+15}], v[{w}:{w+3}], v[{z}:{z+3}], v[{acc}:{acc+15}]")
    for r in range(64): a(f"v_mov_b32 v{ACC+r}, 0")
    poll(a, 0, 32, sreg="s66")
    st7(a, 12, tv=28)
    a(f"""
    v_and_b32 v9, 31, v0
    s_lshl_b32 s28, s6, 6
    v_add_u32 v9, s28, v9
    v_lshlrev_b32 v4, 3, v9
    """)
    for sl in range(4):
        issue_w(sl); issue_z(sl)
    a("s_mov_b32 s48, 0")
    a.label("p3g_loop")
    for sl in range(4):
        a("s_waitcnt vmcnt(24)")
        mm(sl)
        issue_w(sl); issue_z(sl)
    a("""
    s_add_u32 s48, s48, 1
    s_cmp_lt_u32 s48, 7
    s_cbranch_scc1 p3g_loop
    """)
    for sl in range(4):
        a(f"s_waitcnt vmcnt({24 - 4*sl})")
        mm(sl)
        issue_w(sl)
    poll(a, 32, 64)
    a(f"""
    s_mov_b32 s28, {G_OFF}
    buffer_load_dword v10, v4, s[20:23], s28 offen offset:4 sc1
    buffer_load_dword v11, v4, s[20:23], s28 offen offset:260 sc1
    s_waitcnt vmcnt(0)
    """)
    for m in range(2):
        for rg in range(2):
            for r in range(16): a(f"v_mul_f32 v{ACC+16*(2*m+rg)+r}, v{10+rg}, v{ACC+16*(2*m+rg)+r}")
    st7(a, 13, tv=28)
    poll(a, 16, 64, slp=4, sreg="s66")
    for sl in range(4): issue_z(sl)
    for sl in range(4):
        a(f"s_waitcnt vmcnt({12 - 4*sl})")
        mm(sl)
    a("""
    s_lshl_b32 s28, s3, 14
    v_add_u32 v7, s28, v1
    s_nop 15
    s_barrier
    """)
    for bk in range(16): a(f"ds_write_b128 v7, v[{ACC+4*bk}:{ACC+4*bk+3}] offset:{bk*1024}")
    a("""
    s_waitcnt lgkmcnt(0)
    s_barrier
    s_lshl_b32 s28, s3, 12
    v_add_u32 v7, s28, v1
    """)
    for e in range(4):
        for w in range(4):
            d = 32 + 16 * e + 4 * w
            a(f"ds_read_b128 v[{d}:{d+3}], v7 offset:{w*16384 + e*1024}")
    a("""
    s_and_b32 s28, s3, 1
    s_lshl_b32 s28, s28, 5
    v_add_u32 v9, s28, v9
    v_lshlrev_b32 v9, 10, v9
    v_lshrrev_b32 v10, 5, v0
    v_lshl_add_u32 v9, v10, 3, v9
    s_lshl_b32 s28, s7, 7
    s_lshr_b32 s29, s3, 1
    s_lshl_b32 s29, s29, 6
    s_add_u32 s28, s28, s29
    """)
    for e in range(4):
        a(f"s_waitcnt lgkmcnt({4*(3-e)})")
        d = 32 + 16 * e
        for w in range(1, 4):
            for j in range(4): a(f"v_add_f32 v{d+j}, v{d+j}, v{d+4*w+j}")
        a(f"v_cvt_pk_bf16_f32 v{12+2*e}, v{d}, v{d+1}")
        a(f"v_cvt_pk_bf16_f32 v{13+2*e}, v{d+2}, v{d+3}")
        a(f"buffer_store_dwordx2 v[{12+2*e}:{13+2*e}], v9, s[16:19], s28 offen offset:{16*e}")
    if STAMP: a("s_waitcnt vmcnt(0)")
    st7(a, 14, real=True, tv=28)

if __name__ == "__main__":
    os.environ["NOSPLIT"] = "1"; os.environ["GSCALE"] = "1"
    if not os.environ.get("ROT"): os.environ["NOROT"] = "1"
    build([gen_k12], sys.argv[1] if len(sys.argv) > 1 else "out.s")
```

```python
from gen4 import *
import gen4
from gen2 import _stamp, VM
def st7(a, idx, tv=2, **kw):
    if os.environ.get("STK", "2") == "2": _stamp(a, idx, tv=tv, **kw)

STG = 49152
SLOT = 16384; NSL = 9; RING = NSL * SLOT
MISC = RING; FLAG = MISC + 8192; QX = 5 * SLOT
O_ = 192; QF = 160; S_ = (128, 144); NEGM = 112; P_ = (96, 104); Q2 = 64; FR = 32
NK = 24

def gen_k12(a):
    name = "mega_kernel"
    kernel_begin(a, name)
    a(f"""
    s_cmp_ge_u32 s2, 256
    s_cbranch_scc1 k1_end
    s_load_dwordx2 s[4:5], s[0:1], {KA_CKV}
    s_load_dwordx4 s[24:27], s[0:1], {KA_WUK}
    s_load_dwordx4 s[8:11], s[0:1], {KA_DBG}
    s_load_dwordx2 s[64:65], s[0:1], {KA_X}
    s_load_dwordx4 s[68:71], s[0:1], {KA_WK}
    s_load_dwordx2 s[72:73], s[0:1], {KA_GATE}
    s_load_dwordx2 s[54:55], s[0:1], {KA_BWQ}
    s_load_dwordx2 s[56:57], s[0:1], {KA_BWO}
    s_load_dwordx2 s[58:59], s[0:1], {KA_WQ}
    s_load_dwordx2 s[60:61], s[0:1], {KA_WO}
    s_load_dwordx2 s[74:75], s[0:1], {KA_OUT}
    v_lshrrev_b32 v2, 6, v0
    v_and_b32 v0, 63, v0
    v_lshlrev_b32 v1, 4, v0
    v_readfirstlane_b32 s3, v2
    s_and_b32 s6, s2, 31
    s_lshr_b32 s7, s2, 5
    s_waitcnt lgkmcnt(0)
    s_mov_b32 s30, s10
    s_mov_b32 s31, s11
    """)
    srd(a, 20, 30, WS_BYTES)
    srd(a, 80, 8, 256)
    srd(a, 76, 64, 2*MB); srd(a, 88, 72, 1024)
    a(f"""
    s_lshl_b32 s28, s6, 19
    s_add_u32 s84, s30, s28
    s_addc_u32 s85, s31, 0
    s_mov_b32 s86, 524288
    s_mov_b32 s87, 0x00020000
    s_add_u32 s32, s84, {VF_OFF - 16384}
    s_addc_u32 s33, s85, 0
    s_mov_b32 s34, {524288 + 16384}
    s_mov_b32 s35, 0x00020000
    """)
    st7(a, 0); st7(a, 15, real=True)
    srd(a, 36, 4, 2*MB)
    srd(a, 12, 24, 4*MB)
    a(f"""
    v_mov_b32 v30, 0
    v_mov_b32 v31, 0
    v_lshrrev_b32 v3, 3, v0
    v_lshrrev_b32 v4, 4, v0
    v_and_b32 v5, 7, v0
    v_xor_b32 v6, v5, v4
    v_xor_b32 v7, 4, v6
    v_lshlrev_b32 v3, 10, v3
    v_lshl_add_u32 v6, v6, 4, v3
    v_lshl_add_u32 v7, v7, 4, v3
    s_lshl_b32 s28, s7, 8
    s_lshl_b32 s29, s3, 5
    s_add_u32 s28, s28, s29
    s_lshl_b32 s28, s28, 10
    v_add_u32 v8, s28, v6
    v_add_u32 v9, s28, v7
    s_sub_u32 s28, 15, s7
    s_cmp_lt_u32 s3, 4
    s_cselect_b32 s28, s28, s7
    s_lshl_b32 s28, s28, 7
    s_and_b32 s29, s3, 3
    s_lshl_b32 s29, s29, 5
    s_add_u32 s28, s28, s29
    s_lshl_b32 s44, s28, 10
    v_add_u32 v11, s44, v6
    s_sub_u32 s44, s44, 0
    v_add_u32 v2, s44, v7
    v_and_b32 v5, 15, v0
    v_lshlrev_b32 v6, 2, v4
    v_xor_b32 v5, v5, v6
    s_lshl_b32 s28, s3, 3
    v_add_u32 v6, s28, v4
    v_lshlrev_b32 v6, 13, v6
    v_lshl_add_u32 v6, v5, 4, v6
    s_lshl_b32 s28, s6, 8
    v_add_u32 v10, s28, v6
    v_mov_b32 v112, v11
    v_mov_b32 v113, v2
    s_lshl_b32 s45, s3, 12
    s_lshl_b32 s46, s3, 11
    s_add_u32 s46, s46, 32768
    """)
    a("""
    s_lshr_b32 s42, s6, 3
    s_lshl_b32 s42, s42, 1
    s_add_u32 s42, s42, s7
    s_and_b32 s42, s42, 7
    s_lshl_b32 s42, s42, 7
    s_lshl_b32 s43, s42, 12
    """ if not os.environ.get("NOROT") else """
    s_mov_b32 s42, 0
    s_mov_b32 s43, 0
    """)
    vm = VM()
    def dma_ops(k):
        kt = k & 7; st = k % 3
        ops = []
        if k == 8: ops += ["s_mov_b32 s12, s26", "s_mov_b32 s13, s27"]
        if k == 16: ops += ["s_mov_b32 s12, s54", "s_mov_b32 s13, s55", "s_mov_b32 s36, s64", "s_mov_b32 s37, s65", "v_mov_b32 v8, v112", "v_mov_b32 v9, v113"]
        ops.append(f"s_add_u32 m0, s45, {st*STG}")
        for jj in range(4):
            ops.append(f"s_add_u32 s40, s42, {jj*7168}")
            ops.append(f"buffer_load_dwordx4 v{8 + (jj & 1)}, s[36:39], s40 offen offset:{jj*1024} lds")
        ops.append(f"s_add_u32 m0, s46, {st*STG}")
        ops.append(f"s_add_u32 s40, s43, {32768 - 1024}")
        ops.append(f"buffer_load_dwordx4 v10, s[12:15], s43 offen lds")
        ops.append(f"buffer_load_dwordx4 v10, s[12:15], s40 offen offset:1024 lds")
        ops.append("s_add_u32 s42, s42, 128")
        ops.append("s_and_b32 s42, s42, 1023")
        ops.append("s_lshl_b32 s43, s42, 12")
        return ops
    def emit(o, tag):
        a(o)
        if o.startswith("buffer_"): vm.issue(tag)
    for k in range(3):
        for o in dma_ops(k): emit(o, ("d", k))
        if k == 0 and os.environ.get("CT") == "1":
            for i in range(touch_code(a, "k1c", "code_end", 8, 1, 117, 2)): vm.issue("ct")
    if os.environ.get("CT") == "2":
        for i in range(touch_code(a, "k1c", "code_end", 8, 1, 117, 2)): vm.issue("ct")
    def touch_ops(which):
        if which == 0:
            return ["s_lshr_b32 s28, s2, 3", "s_lshl_b32 s28, s28, 3", "s_add_u32 s28, s28, s3", "s_lshl_b32 s28, s28, 13",
                    "v_lshlrev_b32 v2, 7, v0",
                    "buffer_load_dword v114, v2, s[36:39], s28 offen",
                    "v_bfe_u32 v3, v0, 1, 3", "v_lshlrev_b32 v3, 13, v3", "v_and_b32 v4, 1, v0", "v_lshl_add_u32 v3, v4, 7, v3",
                    "s_lshl_b32 s29, s7, 19", "s_lshl_b32 s41, s3, 16", "s_add_u32 s29, s29, s41", "s_lshl_b32 s41, s6, 8", "s_add_u32 s29, s29, s41",
                    "buffer_load_dword v115, v3, s[12:15], s29 offen",
                    "s_mov_b32 s92, s26", "s_mov_b32 s93, s27", f"s_mov_b32 s94, {4*MB}", "s_mov_b32 s95, 0x00020000",
                    "buffer_load_dword v116, v3, s[92:95], s29 offen"]
        if which == 1:
            return ["s_lshr_b32 s28, s2, 3", "s_lshl_b32 s28, s28, 3", "s_add_u32 s28, s28, s3", "s_lshl_b32 s28, s28, 13",
                    "buffer_load_dword v114, v2, s[76:79], s28 offen",
                    "s_mov_b32 s92, s54", "s_mov_b32 s93, s55",
                    "buffer_load_dword v115, v3, s[92:95], s29 offen"]
        if which == 2:
            return ["s_lshl_b32 s28, s2, 3", "s_add_u32 s28, s28, s3", "s_lshl_b32 s28, s28, 11", "v_and_b32 v4, 15, v0", "v_lshlrev_b32 v4, 7, v4",
                    "s_mov_b32 s92, s56", "s_mov_b32 s93, s57",
                    "buffer_load_dword v114, v4, s[92:95], s28 offen",
                    "s_mov_b32 s92, s58", "s_mov_b32 s93, s59", f"s_mov_b32 s94, {512*1024}",
                    "buffer_load_dword v115, v4, s[92:95], s28 offen",
                    "s_mov_b32 s92, s60", "s_mov_b32 s93, s61",
                    "buffer_load_dword v116, v4, s[92:95], s28 offen"]
    a("""
    v_and_b32 v3, 31, v0
    s_lshr_b32 s28, s3, 1
    s_lshl_b32 s28, s28, 6
    v_add_u32 v3, s28, v3
    v_lshlrev_b32 v3, 7, v3
    v_lshrrev_b32 v5, 5, v0
    v_bfe_u32 v6, v0, 1, 3
    v_xor_b32 v5, v5, v6
    v_lshl_add_u32 v12, v5, 4, v3
    v_xor_b32 v13, 32, v12
    v_xor_b32 v14, 64, v12
    v_xor_b32 v15, 96, v12
    """)
    for st in (1, 2):
        for s in range(4): a(f"v_add_u32 v{12+4*st+s}, {st*STG}, v{12+s}")
    a("""
    v_lshrrev_b32 v3, 5, v0
    v_bfe_u32 v5, v0, 2, 2
    v_lshl_add_u32 v3, v3, 3, v5
    v_lshlrev_b32 v3, 8, v3
    v_bfe_u32 v6, v0, 4, 1
    v_lshl_add_u32 v3, v6, 5, v3
    v_and_b32 v6, 3, v0
    v_lshl_add_u32 v3, v6, 3, v3
    v_lshl_add_u32 v3, v5, 6, v3
    s_and_b32 s28, s3, 1
    s_lshl_b32 s28, s28, 7
    v_xor_b32 v3, s28, v3
    v_add_u32 v24, 32768, v3
    v_xor_b32 v25, 64, v24
    """)
    for st in (1, 2):
        for m in range(2): a(f"v_add_u32 v{24+2*st+m}, {st*STG}, v{24+m}")
    ACC = (128, 192, 128)
    a(f"""
    s_lshl_b32 s28, s6, 19
    s_lshl_b32 s29, s7, 16
    s_add_u32 s28, s28, s29
    s_lshr_b32 s29, s3, 1
    s_lshl_b32 s29, s29, 14
    s_add_u32 s28, s28, s29
    s_and_b32 s29, s3, 1
    s_lshl_b32 s48, s29, 12
    s_add_u32 s48, s48, s28
    s_add_u32 s48, s48, {KF_OFF}
    s_add_u32 s49, s48, 8192
    s_lshl_b32 s50, s29, 11
    s_add_u32 s50, s50, s28
    s_add_u32 s50, s50, {VF_OFF}
    s_add_u32 s51, s50, 4096
    s_add_u32 s52, s50, 8192
    s_add_u32 s53, s50, 12288
    """)
    FB = 64
    def read_ops(u):
        k = u >> 2; s = u & 3; st = k % 3
        f = FB + 16 * (u % 3)
        ca = 12 + 4 * st + s
        ops = [f"ds_read_b128 v[{f}:{f+3}], v{ca}",
               f"ds_read_b128 v[{f+4}:{f+7}], v{ca} offset:4096"]
        for m in range(2):
            wa = 24 + 2 * st + m
            ops.append(f"ds_read_b64_tr_b16 v[{f+8+4*m}:{f+9+4*m}], v{wa} offset:{s*4096}")
            ops.append(f"ds_read_b64_tr_b16 v[{f+10+4*m}:{f+11+4*m}], v{wa} offset:{s*4096+1024}")
        return ops
    def epi_ops(ps):
        ops = []; n = 0
        for m in range(2):
            for kb in range(2):
                acc = ACC[ps] + 16 * (m * 2 + kb)
                for g in range(2):
                    tmp = 32 + 4 * (n % 8); n += 1
                    for i in range(4):
                        ops.append(f"v_cvt_pk_bf16_f32 v{tmp+i}, v{acc+8*g+2*i}, v{acc+8*g+2*i+1}")
                    if ps == 0: sreg, off = 48 + kb, (2 * m + g) * 1024
                    else:       sreg, off = 50 + 2 * kb + g, m * 1024
                    ops.append(f"buffer_store_dwordx4 v[{tmp}:{tmp+3}], v1, s[20:23], s{sreg} offen offset:{off}" + ("" if os.environ.get("PLAINST") else " sc1"))
        return ops
    a(f"""
    s_waitcnt vmcnt({vm.need({("d", 0)})})
    s_barrier
    """)
    a(f"""
    s_cmp_lg_u32 s7, 0
    s_cbranch_scc1 k1_noinit
    s_cmp_lg_u32 s3, 6
    s_cbranch_scc1 k1_noinit
    v_lshlrev_b32 v2, 2, v0
    v_mov_b32 v3, 0
    s_lshl_b32 s28, s6, 8
    s_add_u32 s28, s28, {CNT_OFF + 64*256}
    buffer_store_dword v3, v2, s[20:23], s28 offen sc1
    s_cmp_lg_u32 s2, 0
    s_cbranch_scc1 k1_init2
    v_lshlrev_b32 v2, 8, v0
    s_mov_b32 s28, {CNT_OFF}
    buffer_store_dword v3, v2, s[20:23], s28 offen sc1
    k1_init2:
    s_waitcnt vmcnt(0)
    v_mov_b32 v2, 1
    s_mov_b64 exec, 1
    buffer_store_byte v2, v3, s[80:83], s6 offen sc1
    s_mov_b64 exec, -1
    s_waitcnt vmcnt(0)
    k1_noinit:
    """)
    if os.environ.get("P1PRIO"):
        a("s_cmp_lt_u32 s3, 4"); a("s_cbranch_scc1 k1_np"); a("s_setprio 1"); a.label("k1_np")
    st7(a, 4)
    for o in read_ops(0) + read_ops(1): a(o)
    def c_dma():
        for (sd, lo) in ((84, 0), (32, 8192)):
            for g in range(2):
                a(f"s_add_u32 m0, s53, {lo + g*4096}")
                a(f"s_add_u32 s28, s52, {g*4096}")
                for i in range(4):
                    a(f"buffer_load_dwordx4 v1, s[{sd}:{sd+3}], s28 offen offset:{i*1024} sc1 lds")
        a(f"""
        s_add_u32 s52, s52, 8192
        s_add_u32 s53, s53, {SLOT}
        s_cmp_ge_u32 s53, {RING}
        s_cselect_b32 s53, 0, s53
        """)
    def need_rb():
        l0 = a.newlabel("l_rbok"); l1 = a.newlabel("l_rbpoll"); l2 = a.newlabel("l_rbgot")
        a(f"""
        s_lshr_b32 s28, s52, 13
        s_add_u32 s28, s28, 4
        s_lshr_b32 s28, s28, 3
        s_min_u32 s28, s28, 7
        s_lshl_b32 s29, 2, s28
        s_sub_u32 s29, s29, 1
        s_and_b32 s28, s61, s29
        s_cmp_eq_u32 s28, s29
        s_cbranch_scc1 {l0}
        s_lshl_b32 s40, s6, 8
        s_add_u32 s40, s40, {CNT_OFF + 64*256}
        v_mov_b32 v4, 0
        s_mov_b32 s41, 0
        {l1}:
        buffer_load_dwordx2 v[2:3], v4, s[20:23], s40 offen sc1
        s_waitcnt vmcnt(0)
        v_readfirstlane_b32 s61, v2
        v_readfirstlane_b32 s28, v3
        s_mul_i32 s61, s61, 0x01020408
        s_lshr_b32 s61, s61, 24
        s_and_b32 s61, s61, 15
        s_mul_i32 s28, s28, 0x01020408
        s_lshr_b32 s28, s28, 20
        s_and_b32 s28, s28, 0xf0
        s_or_b32 s61, s61, s28
        s_and_b32 s28, s61, s29
        s_cmp_eq_u32 s28, s29
        s_cbranch_scc1 {l2}
        s_sleep 4
        s_add_u32 s41, s41, 1
        s_cmp_lt_u32 s41, 0x100000
        s_cbranch_scc1 {l1}
        {l2}:
        {l0}:
        """)
    def task_setup():
        a("""
        s_sub_u32 s47, 15, s7
        s_cmp_eq_u32 s46, 0
        s_cselect_b32 s47, s47, s7
        s_lshl_b32 s50, s47, 2
        s_add_u32 s50, s50, 4
        """)
    XW = MISC
    XP = MISC + 8192 + 256
    def extra_loads(r):
        a(f"""
        s_sub_u32 s40, s3, 5
        s_lshl_b32 s28, s2, 15
        s_lshl_b32 s29, s40, 7
        s_add_u32 s29, s29, {r*256}
        s_add_u32 s28, s28, s29
        """)
        for s in range(4): a(f"buffer_load_dwordx4 v[{112+4*s}:{115+4*s}], v30, s[76:79], s28 offen offset:{s*32}")
        for s in range(4): a(f"buffer_load_dwordx4 v[{160+4*s}:{163+4*s}], v31, s[88:91], s29 offen offset:{s*32}")
        a(f"""
        s_lshl_b32 s28, s40, 12
        s_add_u32 m0, s28, {XW}
        s_lshl_b32 s29, s40, 11
        s_add_u32 s29, s29, {r*4096}
        s_mov_b32 s92, s70
        s_mov_b32 s93, s71
        s_mov_b32 s94, 16384
        s_mov_b32 s95, 0x00020000
        buffer_load_dwordx4 v1, s[92:95], s29 offen lds
        buffer_load_dwordx4 v1, s[92:95], s29 offen offset:1024 lds
        s_add_u32 m0, s28, {XW + 2048}
        s_mov_b32 s92, s68
        s_mov_b32 s93, s69
        buffer_load_dwordx4 v1, s[92:95], s29 offen lds
        buffer_load_dwordx4 v1, s[92:95], s29 offen offset:1024 lds
        """)
    def extra_compute(r):
        a(f"""
        s_sub_u32 s40, s3, 5
        s_lshl_b32 s29, s2, 15
        s_lshl_b32 s28, s40, 12
        s_add_u32 s29, s29, s28
        s_add_u32 s29, s29, {XF_OFF + r*8192}
        s_waitcnt vmcnt(0)
        """)
        for s in range(4):
            a(f"ds_read_b64_tr_b16 v[{176+4*s}:{177+4*s}], v6 offset:{s*512}")
            a(f"ds_read_b64_tr_b16 v[{178+4*s}:{179+4*s}], v6 offset:{s*512+128}")
        a("s_waitcnt lgkmcnt(0)")
        for s in range(4):
            xf = 112 + 4 * s; wf = 176 + 4 * s
            first = (r == 0 and s == 0)
            a(f"{MFMA} v[128:143], v[{wf}:{wf+3}], v[{xf}:{xf+3}], {'0' if first else 'v[128:143]'}")
            a(f"{MFMA} v[144:159], v[{xf}:{xf+3}], v[{wf}:{wf+3}], {'0' if first else 'v[144:159]'}")
            for i in range(4): a(f"v_dot2_f32_bf16 v7, v{xf+i}, v{160+4*s+i}, v7")
    def extra_part(k):
        l = f"k1_x{k}"
        if k == 10:
            a(f"""
            v_and_b32 v30, 31, v0
            v_lshrrev_b32 v31, 5, v0
            v_lshlrev_b32 v30, 10, v30
            v_lshlrev_b32 v31, 4, v31
            v_add_u32 v30, v31, v30
            v_lshrrev_b32 v5, 4, v0
            v_and_b32 v4, 15, v0
            v_and_b32 v6, 1, v5
            v_lshlrev_b32 v6, 11, v6
            v_lshrrev_b32 v2, 1, v5
            v_lshlrev_b32 v2, 3, v2
            v_lshrrev_b32 v3, 2, v4
            v_add_u32 v2, v2, v3
            v_lshl_add_u32 v6, v2, 5, v6
            v_and_b32 v3, 3, v4
            v_lshl_add_u32 v6, v3, 3, v6
            s_sub_u32 s40, s3, 5
            s_lshl_b32 s28, s40, 12
            s_add_u32 s28, s28, {XW}
            v_add_u32 v6, s28, v6
            v_mov_b32 v7, 0
            """)
            extra_loads(0)
        if 11 <= k <= 14:
            extra_compute(k - 11)
            if k < 14:
                a("s_nop 3")
                extra_loads(k - 10)
        if k == 14:
            a(f"""
            s_cmp_lg_u32 s3, 6
            s_cbranch_scc1 {l}
            v_add_u32 v2, {XP}, v1
            v_lshlrev_b32 v3, 2, v0
            v_add_u32 v3, {XP + 6144}, v3
            s_nop 15
            """)
            for b in range(6): a(f"ds_write_b128 v2, v[{136+4*b}:{139+4*b}] offset:{b*1024}")
            a("ds_write_b32 v3, v7")
            a("s_waitcnt lgkmcnt(0)")
        if k == 15:
            a(f"""
            s_cmp_lg_u32 s3, 5
            s_cbranch_scc1 {l}
            v_add_u32 v2, {XP}, v1
            v_lshlrev_b32 v3, 2, v0
            v_add_u32 v3, {XP + 6144}, v3
            """)
            for b in range(6): a(f"ds_read_b128 v[{160+4*b}:{163+4*b}], v2 offset:{b*1024}")
            a("ds_read_b32 v184, v3")
            a("s_waitcnt lgkmcnt(0)")
            for r in range(24): a(f"v_add_f32 v{136+r}, v{136+r}, v{160+r}")
            a("v_add_f32 v7, v7, v184")
            pack8(a, 160, 136); pack8(a, 164, 144); pack8(a, 168, 152)
            a(f"""
            s_lshl_b32 s28, s2, 10
            s_add_u32 s29, s28, {KA_OFF}
            buffer_store_dwordx4 v[160:163], v1, s[20:23], s29 offen sc1
            v_and_b32 v2, 31, v0
            v_lshrrev_b32 v3, 5, v0
            v_lshl_add_u32 v3, v3, 4, v2
            v_lshlrev_b32 v3, 4, v3
            s_add_u32 s29, s28, {VA_OFF}
            v_cmp_gt_u32 vcc, 16, v2
            s_and_saveexec_b64 s[62:63], vcc
            buffer_store_dwordx4 v[164:167], v3, s[20:23], s29 offen sc1
            buffer_store_dwordx4 v[168:171], v3, s[20:23], s29 offen offset:512 sc1
            s_mov_b64 exec, s[62:63]
            v_mov_b32 v2, v7
            s_nop 1
            v_permlane32_swap_b32 v2, v7
            s_nop 1
            v_add_f32 v7, v7, v2
            v_cvt_pk_bf16_f32 v7, v7, v7
            v_lshlrev_b32 v7, 16, v7
            v_mul_f32 v7, {f32hex(-LOG2E)}, v7
            v_exp_f32 v7, v7
            s_nop 0
            v_add_f32 v7, 1.0, v7
            v_rcp_f32 v7, v7
            s_nop 0
            v_cvt_pk_bf16_f32 v7, v7, v7
            v_lshlrev_b32 v172, 16, v7
            v_sub_f32 v173, 1.0, v172
            v_cvt_pk_bf16_f32 v173, v173, v173
            v_lshlrev_b32 v173, 16, v173
            v_lshlrev_b32 v3, 3, v0
            s_lshl_b32 s28, s2, 8
            s_add_u32 s28, s28, {G_OFF}
            v_cmp_gt_u32 vcc, 32, v0
            s_and_saveexec_b64 s[62:63], vcc
            buffer_store_dwordx2 v[172:173], v3, s[20:23], s28 offen sc1
            s_mov_b64 exec, s[62:63]
            """)
            signal(a, 32)
        a.label(l)
    epiK = epi_ops(0); epiV = epi_ops(1)
    SIG = 20
    for k in range(NK):
        ps = k >> 3
        for s in range(4):
            u = 4 * k + s
            extra = []
            if s == 2 and k + 1 < NK:
                if k == SIG - 1: vm.q = []; a("s_waitcnt vmcnt(0) lgkmcnt(0)")
                elif ('d', k + 1) not in vm.q: a("s_waitcnt lgkmcnt(0)")
                elif k == 22:
                    a("s_cmp_eq_u32 s3, 7")
                    a("s_cbranch_scc1 k1_w22")
                    a(f"s_waitcnt vmcnt({vm.need({('d', k + 1)})})")
                    a.label("k1_w22")
                    a("s_waitcnt lgkmcnt(0)")
                else: a(f"s_waitcnt vmcnt({vm.need({('d', k + 1)})}) lgkmcnt(0)")
                a("s_barrier")
                if k in (7, 15): st7(a, 5 + (k >> 3)); vm.issue("st") if STAMP else None
                if k >= 17 and not os.environ.get("P0ST"): st7(a, 7 + k - 17); vm.issue("st") if STAMP else None
                if k < 5 and os.environ.get("P0ST"): st7(a, 7 + k, tv=118); vm.issue("st") if STAMP else None
                if k == SIG - 1:
                    a(f"""
                    s_cmp_lg_u32 s3, 0
                    s_cbranch_scc1 k1_nosig
                    v_mov_b32 v3, 0
                    s_mov_b32 s41, 0
                    k1_ip:
                    buffer_load_ubyte v2, v3, s[80:83], s6 offen sc1
                    s_waitcnt vmcnt(0)
                    v_readfirstlane_b32 s29, v2
                    s_cmp_lg_u32 s29, 0
                    s_cbranch_scc1 k1_ipd
                    s_sleep 8
                    s_add_u32 s41, s41, 1
                    s_cmp_lt_u32 s41, 0x100000
                    s_cbranch_scc1 k1_ip
                    k1_ipd:
                    s_lshl_b32 s28, s6, 8
                    s_add_u32 s28, s28, s7
                    s_add_u32 s28, s28, {CNT_OFF + 64*256}
                    v_mov_b32 v2, 1
                    s_mov_b64 exec, 1
                    buffer_store_byte v2, v3, s[20:23], s28 offen sc1
                    s_mov_b64 exec, -1
                    k1_nosig:
                    """)
                if k + 3 < NK: extra = [(o, ("d", k + 3)) for o in dma_ops(k + 3)]
                if k >= 21:
                    a("s_cmp_lg_u32 s3, 7")
                    a(f"s_cbranch_scc1 k1_d{k}")
                    if k == 21:
                        a("""
                        s_mov_b32 s46, 0
                        s_mov_b32 s60, 0
                        s_mov_b32 s61, 0
                        """)
                        task_setup()
                        a("""
                        s_mov_b32 s52, 0
                        s_mov_b32 s53, 0
                        """)
                        need_rb(); c_dma(); c_dma(); c_dma()
                    if k == 22:
                        c_dma(); c_dma()
                    a.label(f"k1_d{k}")
            else:
                a(f"s_waitcnt lgkmcnt({6 if u + 1 < 4*NK else 0})")
            if s == 0:
                TV, TX, TW = [int(x) for x in os.environ.get("TT", "0,4,11").split(",")]
                t0 = touch_ops(0)
                if k == 0: extra = [(o, "t") for o in t0[:-1]]
                if k == TV: extra = extra + [(t0[-1], "t")]
                if k == TX: extra = extra + [(o, "t") for o in touch_ops(1)]
                if k == TW: extra = extra + [(o, "t") for o in touch_ops(2)]
            if s < 2 and 8 <= k < 12:
                i = (k - 8) * 2 + s; extra = extra + [(o, "s") for o in epiK[5*i:5*i+5]]
            if s == 3: extra = carry
            if s == 2: carry = extra[len(extra)//2:]; extra = extra[:len(extra)//2]
            if 16 <= k < 18:
                i = (k - 16) * 4 + s; extra = extra + [(o, "s") for o in epiV[5*i:5*i+5]]
            rq = read_ops(u + 2) if u + 2 < 4 * NK else []
            f = FB + 16 * (u % 3)
            i = 0
            for m in range(2):
                for kb in range(2):
                    acc = ACC[ps] + 16 * (m * 2 + kb)
                    c = f"v[{f+4*kb}:{f+4*kb+3}]"; w = f"v[{f+8+4*m}:{f+11+4*m}]"
                    ci = "0" if (u & 31) == 0 else f"v[{acc}:{acc+15}]"
                    if ps == 1: a(f"{MFMA} v[{acc}:{acc+15}], {c}, {w}, {ci}")
                    else:       a(f"{MFMA} v[{acc}:{acc+15}], {w}, {c}, {ci}")
                    for o in rq[2*i: 2*i+2]: a(o)
                    ne = -(-len(extra) // (4 - i))
                    for o, t in extra[:ne]: emit(o, t)
                    extra = extra[ne:]
                    i += 1
    if os.environ.get("P1PRIO"): a("s_setprio 0")
    if os.environ.get("P2PRIO"):
        a("s_cmp_ge_u32 s3, 4"); a("s_cbranch_scc1 k1_np2"); a("s_setprio 2"); a.label("k1_np2")
    a(f"""
    s_barrier
    s_mov_b32 s28, {f32hex(LOG2E * 128 ** -0.5)}
    s_lshr_b32 s29, s3, 1
    s_lshl_b32 s29, s29, 14
    s_and_b32 s40, s3, 1
    s_lshl_b32 s40, s40, 12
    s_add_u32 s29, s29, s40
    s_add_u32 s29, s29, {QX}
    v_add_u32 v2, s29, v1
    s_nop 7
    """)
    for r in range(64): a(f"v_mul_f32 v{128+r}, s28, v{128+r}")
    n = 0
    for m in range(2):
        for kb in range(2):
            for g in range(2):
                tmp = 32 + 4 * n; n += 1
                pack8(a, tmp, 128 + 16 * (m * 2 + kb) + 8 * g)
                a(f"ds_write_b128 v2, v[{tmp}:{tmp+3}] offset:{kb*8192 + (2*m+g)*1024}")
    a("""
    s_waitcnt lgkmcnt(0)
    s_barrier
    s_cmp_eq_u32 s3, 7
    s_cbranch_scc1 l_task
    s_cmp_ge_u32 s3, 4
    s_cbranch_scc1 k1_side
    """)
    attn_compute(a, task_setup)
    side_workers(a, task_setup, extra_part)
    attn_loader(a, task_setup, c_dma, need_rb)
    phase3_A(a)
    phase3_G(a)
    a.label("k1_end")
    a("s_endpgm")
    return name, f"grid=(256,1,1) block=(512,1,1) lds={RING + 16384}", kernel_desc(name, 256)

def read_flags(a, tmp):
    a(f"""
    v_mov_b32 v{tmp}, {FLAG}
    ds_read_b128 v[{tmp+2}:{tmp+5}], v{tmp}
    s_waitcnt lgkmcnt(0)
    v_or3_b32 v{tmp}, v{tmp+2}, v{tmp+3}, v{tmp+4}
    v_or_b32 v{tmp}, v{tmp}, v{tmp+5}
    s_nop 0
    v_readfirstlane_b32 s28, v{tmp}
    """)

def attn_loader(a, task_setup, c_dma, need_rb):
    a.label("l_task")
    a("s_mov_b32 s58, 0")
    a("s_mov_b32 s57, 0")
    a.label("l_loop")
    a("s_waitcnt vmcnt(0)")
    a("s_barrier")
    a("s_mov_b32 s59, 0")
    need_rb()
    a.label("l_in")
    a(f"""
    s_cmp_eq_u32 s57, 2
    s_cbranch_scc1 l_doa
    s_cmp_lg_u32 s57, 0
    s_cbranch_scc1 l_do
    s_add_u32 s28, s50, 2
    s_lshl_b32 s28, s28, 13
    s_cmp_lt_u32 s52, s28
    s_cbranch_scc1 l_do
    s_add_u32 s28, s28, 16384
    s_cmp_lt_u32 s52, s28
    s_cbranch_scc1 l_skip
    s_mov_b32 s57, 1
    s_mov_b32 s52, 0
    s_cmp_eq_u32 s46, 0
    s_cbranch_scc1 l_do
    s_mov_b32 s57, 2
    s_mov_b32 s56, s53
    """)
    poll(a, 32, 64)
    a(f"""
    s_branch l_doa
    l_skip:
    s_add_u32 s52, s52, 8192
    s_add_u32 s53, s53, {SLOT}
    s_cmp_ge_u32 s53, {RING}
    s_cselect_b32 s53, 0, s53
    s_branch l_nx
    l_do:
    """)
    c_dma()
    a("s_branch l_nx")
    a.label("l_doa")
    def a_chunk():
        for (off, lo) in ((KA_OFF, 0), (VA_OFF, 8192)):
            for g in range(2):
                a(f"s_add_u32 m0, s53, {lo + g*4096}")
                a(f"s_add_u32 s28, s52, {off + g*4096}")
                for i in range(4): a(f"buffer_load_dwordx4 v1, s[20:23], s28 offen offset:{i*1024} sc1 lds")
        a(f"""
        s_add_u32 s52, s52, 8192
        s_add_u32 s53, s53, {SLOT}
        s_cmp_ge_u32 s53, {RING}
        s_cselect_b32 s53, 0, s53
        """)
    a_chunk()
    a("""
    l_nx:
    s_add_u32 s59, s59, 1
    s_cmp_lt_u32 s59, 4
    s_cbranch_scc1 l_in
    s_add_u32 s58, s58, 4
    s_add_u32 s28, s50, 2
    s_cmp_lt_u32 s58, s28
    s_cbranch_scc1 l_loop
    s_cmp_lg_u32 s57, 2
    s_cbranch_scc1 l_e
    """)
    a(f"""
    v_mov_b32 v2, {FLAG + 64}
    v_mov_b32 v4, s56
    v_mov_b32 v5, 0
    ds_write_b64 v2, v[4:5]
    s_waitcnt vmcnt(0) lgkmcnt(0)
    l_e:
    s_barrier
    """)
    read_flags(a, 32)
    a("""
    s_cmp_eq_u32 s28, 0
    s_cbranch_scc1 l_ok
    s_cmp_lg_u32 s60, 0
    s_cbranch_scc1 l_ok
    s_mov_b32 s60, 1
    s_mov_b32 s58, 0
    s_waitcnt vmcnt(0)
    """)
    a.label("l_max")
    a("s_lshl_b32 s52, s58, 13")
    for g in range(2):
        a(f"s_mov_b32 m0, {g*4096}")
        a(f"s_add_u32 s28, s52, {g*4096}")
        for i in range(4): a(f"buffer_load_dwordx4 v1, s[84:87], s28 offen offset:{i*1024} sc1 lds")
    a("""
    s_waitcnt vmcnt(0)
    s_barrier
    s_barrier
    s_add_u32 s58, s58, 1
    s_cmp_lt_u32 s58, s50
    s_cbranch_scc1 l_max
    s_mov_b32 s52, 0
    s_mov_b32 s53, 0
    s_mov_b32 s59, 0
    """)
    a.label("l_pro1")
    c_dma()
    a("""
    s_add_u32 s59, s59, 1
    s_cmp_lt_u32 s59, 5
    s_cbranch_scc1 l_pro1
    s_branch l_task
    """)
    a.label("l_ok")
    a("""
    s_mov_b32 s60, 0
    s_add_u32 s46, s46, 1
    s_cmp_lt_u32 s46, 2
    s_cbranch_scc1 l_nt
    """)
    a_chunk(); a_chunk(); a_chunk()
    a(f"""
    v_mov_b32 v2, {FLAG + 68}
    v_mov_b32 v4, 1
    s_waitcnt vmcnt(0)
    ds_write_b32 v2, v4
    s_branch p3_a
    l_nt:
    """)
    task_setup()
    a("s_branch l_task")

def attn_compute(a, task_setup):
    a(f"""
    s_lshl_b32 s28, s3, 13
    s_add_u32 s28, s28, {QX}
    v_add_u32 v2, s28, v1
    v_and_b32 v3, 31, v0
    v_lshrrev_b32 v4, 5, v0
    v_lshlrev_b32 v18, 2, v4
    v_sub_u32 v18, v3, v18
    s_mov_b32 s46, 0
    s_mov_b32 s60, 0
    s_mov_b32 s61, 0
    """)
    for s in range(8): a(f"ds_read_b128 v[{QF+4*s}:{QF+4*s+3}], v2 offset:{s*1024}")
    for s in range(8): a(f"ds_read_b128 v[{Q2+4*s}:{Q2+4*s+3}], v2 offset:{32768 + s*1024}")
    task_setup()
    a("s_waitcnt lgkmcnt(0)")
    st7(a, 1, tv=28)
    a.label("b_task")
    a("""
    s_lshl_b32 s28, s47, 7
    s_lshl_b32 s29, s3, 5
    s_add_u32 s48, s28, s29
    s_sub_u32 s49, s50, 3
    s_add_u32 s49, s49, s3
    """)
    for r in range(64): a(f"v_mov_b32 v{O_+r}, 0")
    for r in range(4): a(f"v_mov_b32 v{24+r}, 0")
    a(f"""
    s_add_u32 s56, s61, {SLOT}
    s_cmp_ge_u32 s56, {RING}
    s_cselect_b32 s56, 0, s56
    s_mov_b32 s58, 0
    v_add_u32 v20, s61, v1
    """)
    def apply_mask(base):
        a("v_mov_b32 v19, 0xff800000")
        for r in range(16):
            a(f"v_cmp_gt_i32 vcc, {8*(r>>2)+(r&3)}, v18")
            a("s_nop 1")
            a(f"v_cndmask_b32 v{base+r}, v{base+r}, v19, vcc")
    def sm_ops(par):
        S = S_[par]; P = P_[par]
        ops = []
        for r in range(16):
            ops.append(f"v_exp_f32 v{S+r}, v{S+r}")
            if r >= 1: ops.append(f"v_add_f32 v{24+((r-1)&3)}, v{24+((r-1)&3)}, v{S+r-1}")
            if r & 1: ops.append(f"v_cvt_pk_bf16_f32 v{P+(r>>1)}, v{S+r-1}, v{S+r}")
        ops.append(f"v_add_f32 v27, v27, v{S+15}")
        return ops
    def cost(o): return 8 if o.startswith("v_exp") else 4
    def iteration(par, doQK, doSM, doPV, prefetched, extra=(), cinit=None, last=()):
        M = (list(range(8)) if doQK else []) + (list(range(8, 16)) if doPV else [])
        seq = M + (list(range(16, 20)) if doQK else [])
        book = [f"v_add_u32 v{20+(par^1)}, s56, v1",
                f"s_add_u32 s56, s56, {SLOT}",
                f"s_cmp_ge_u32 s56, {RING}",
                "s_cselect_b32 s56, 0, s56"] + list(extra)
        fill = sm_ops(par ^ 1) if doSM else []
        nM = len(M)
        if nM == 0:
            for o in book + fill + list(last): a(o)
            return
        def rdi(idx):
            j = seq[idx]; f = FR + 4 * (idx & 7)
            if j < 16: return f"ds_read_b128 v[{f}:{f+3}], v{20+par} offset:{j*1024}"
            return f"ds_read_b128 v[{f}:{f+3}], v{20+(par^1)} offset:{(j-16)*1024}"
        def mfi(idx):
            n = seq[idx]; f = FR + 4 * (idx & 7)
            if n < 8:
                S = S_[par]
                c = (cinit or f"v[{NEGM}:{NEGM+15}]") if n == 0 else f"v[{S}:{S+15}]"
                return f"{MFMA} v[{S}:{S+15}], v[{f}:{f+3}], v[{QF+4*n}:{QF+4*n+3}], {c}"
            k = n - 8; ks = k >> 2; b = k & 3
            P = P_[par]
            return f"{MFMA} v[{O_+16*b}:{O_+16*b+15}], v[{f}:{f+3}], v[{P+4*ks}:{P+4*ks+3}], v[{O_+16*b}:{O_+16*b+15}]"
        if not (prefetched and doQK):
            for idx in range(4): a(rdi(idx))
        nv = nM - nM // 4
        tot = sum(cost(o) for o in fill)
        done = 0; gi = 0
        for p in range(nM):
            if p % 4 == 0: a("s_waitcnt lgkmcnt(0)")
            a(mfi(p))
            if p == nM - 1:
                for o in last: a(o)
            if p % 4 == 0:
                if p == 0:
                    for o in book: a(o)
                for idx in range(p + 4, min(p + 8, len(seq))): a(rdi(idx))
            else:
                gi += 1
                tgt = tot * gi / nv
                while fill and (done + cost(fill[0]) / 2 <= tgt or gi == nv):
                    done += cost(fill[0]); a(fill.pop(0))
        assert not fill
    a.label("b_loop")
    a("""
    s_and_b32 s28, s58, 3
    s_cmp_lg_u32 s28, 0
    s_cbranch_scc1 b_slow2
    s_cmp_lt_u32 s58, 4
    s_cbranch_scc1 b_slow
    s_add_u32 s28, s58, 8
    s_cmp_gt_u32 s28, s50
    s_cbranch_scc1 b_slow
    s_sub_u32 s59, s50, 4
    """)
    a.label("b_fast")
    a("s_barrier")
    iteration(0, True, True, True, True)
    iteration(1, True, True, True, True)
    iteration(0, True, True, True, True)
    iteration(1, True, True, True, True, ["s_add_u32 s58, s58, 4"], last=["s_cmp_lt_u32 s58, s59"])
    a("s_cbranch_scc1 b_fast")
    a.label("b_slow")
    a("s_barrier")
    a.label("b_slow2")
    for par in (0, 1):
        lnext = a.newlabel("b_next"); lns = a.newlabel("b_nonsteady"); ld = a.newlabel("b_nodiag")
        a("s_add_u32 s28, s58, 1")
        a("s_cmp_lg_u32 s28, s49")
        a(f"s_cbranch_scc1 {ld}")
        apply_mask(NEGM)
        a.label(ld)
        a("s_cmp_lt_u32 s58, 2")
        a(f"s_cbranch_scc1 {lns}")
        a("s_cmp_ge_u32 s58, s49")
        a(f"s_cbranch_scc1 {lns}")
        iteration(par, True, True, True, True)
        a(f"s_branch {lnext}")
        a.label(lns)
        l_g = a.newlabel("b_ge"); l_pv = a.newlabel("b_pv"); l_none = a.newlabel("b_none"); l_sm = a.newlabel("b_sm")
        a("s_cmp_ge_u32 s58, s49")
        a(f"s_cbranch_scc1 {l_g}")
        if par == 0:
            lr = a.newlabel("b_g0raw")
            a("s_cmp_eq_u32 s60, 0")
            a(f"s_cbranch_scc1 {lr}")
            iteration(0, True, False, False, False)
            a(f"s_branch {lnext}")
            a.label(lr)
            iteration(0, True, False, False, False, cinit="0")
            a("s_nop 15")
            lm = a.newlabel("b_nomask0")
            a("s_cmp_lg_u32 s49, 1")
            a(f"s_cbranch_scc1 {lm}")
            apply_mask(S_[0])
            a.label(lm)
            S = S_[0]
            a(f"v_max3_f32 v22, v{S}, v{S+1}, v{S+2}")
            for r in range(3, 15, 2): a(f"v_max3_f32 v22, v22, v{S+r}, v{S+r+1}")
            a(f"v_max_f32 v22, v22, v{S+15}")
            a("""
            v_mov_b32 v19, v22
            s_nop 1
            v_permlane32_swap_b32 v19, v22
            s_nop 1
            v_max_f32 v22, v22, v19
            """)
            for r in range(16): a(f"v_sub_f32 v{S+r}, v{S+r}, v22")
            for r in range(16): a(f"v_sub_f32 v{NEGM+r}, 0, v22")
        else:
            iteration(1, True, True, False, True)
        a(f"s_branch {lnext}")
        a.label(l_g)
        a("s_cmp_eq_u32 s58, s49")
        a(f"s_cbranch_scc0 {l_pv}")
        a("s_cmp_lt_u32 s58, 2")
        a(f"s_cbranch_scc1 {l_sm}")
        iteration(par, False, True, True, False)
        a(f"s_branch {lnext}")
        a.label(l_sm)
        iteration(par, False, True, False, False)
        a(f"s_branch {lnext}")
        a.label(l_pv)
        a("s_add_u32 s28, s49, 1")
        a("s_cmp_eq_u32 s58, s28")
        a(f"s_cbranch_scc0 {l_none}")
        a("s_nop 1")
        iteration(par, False, False, True, False)
        a(f"s_branch {lnext}")
        a.label(l_none)
        iteration(par, False, False, False, False)
        a.label(lnext)
        a("s_add_u32 s58, s58, 1")
    a("s_add_u32 s28, s50, 2")
    a("s_cmp_lt_u32 s58, s28")
    a("s_cbranch_scc1 b_loop")
    if STAMP:
        a("s_cmp_lg_u32 s46, 0"); a("s_cbranch_scc1 b_st2"); st7(a, 2, tv=28); a.label("b_st2")
    a(f"""
    s_nop 7
    v_add_f32 v24, v24, v25
    v_add_f32 v26, v26, v27
    v_add_f32 v24, v24, v26
    v_mov_b32 v19, v24
    s_nop 1
    v_permlane32_swap_b32 v19, v24
    s_nop 1
    v_add_f32 v24, v24, v19
    v_rcp_f32 v26, v24
    v_mov_b32 v19, 0
    """)
    for r in range(64): a(f"v_fma_f32 v19, v{O_+r}, 0, v19")
    a(f"""
    s_mov_b32 s28, {f32hex(2.0**THR)}
    v_cmp_nle_f32 vcc, v24, s28
    v_cmp_u_f32 s[62:63], v19, v19
    s_or_b64 s[62:63], s[62:63], vcc
    s_cmp_lg_u64 s[62:63], 0
    s_cselect_b32 s28, 1, 0
    v_mov_b32 v19, s28
    s_lshl_b32 s29, s3, 2
    s_lshl_b32 s40, s46, 4
    s_add_u32 s29, s29, {FLAG}
    v_mov_b32 v22, s29
    ds_write_b32 v22, v19
    s_waitcnt lgkmcnt(0)
    s_barrier
    """)
    read_flags(a, 32)
    a("""
    s_cmp_eq_u32 s28, 0
    s_cbranch_scc1 b_ok
    s_cmp_lg_u32 s60, 0
    s_cbranch_scc1 b_ok
    s_mov_b32 s60, 1
    s_mov_b32 s58, 0
    s_mov_b32 s61, 0
    v_mov_b32 v22, 0xff800000
    """)
    a.label("b_maxloop")
    a("""
    s_barrier
    s_cmp_ge_u32 s58, s49
    s_cbranch_scc1 b_maxskip
    """)
    for n in range(8): a(f"ds_read_b128 v[{FR+4*n}:{FR+4*n+3}], v1 offset:{n*1024}")
    a("s_waitcnt lgkmcnt(0)")
    for n in range(8):
        S = S_[0]
        c = "0" if n == 0 else f"v[{S}:{S+15}]"
        a(f"{MFMA} v[{S}:{S+15}], v[{FR+4*n}:{FR+4*n+3}], v[{QF+4*n}:{QF+4*n+3}], {c}")
    a("""
    s_nop 15
    s_add_u32 s28, s58, 1
    s_cmp_lg_u32 s28, s49
    s_cbranch_scc1 b_maxnomask
    """)
    apply_mask(S_[0])
    a.label("b_maxnomask")
    for r in range(0, 16, 2): a(f"v_max3_f32 v22, v22, v{S_[0]+r}, v{S_[0]+r+1}")
    a.label("b_maxskip")
    a("""
    s_barrier
    s_add_u32 s58, s58, 1
    s_cmp_lt_u32 s58, s50
    s_cbranch_scc1 b_maxloop
    v_mov_b32 v19, v22
    s_nop 1
    v_permlane32_swap_b32 v19, v22
    s_nop 1
    v_max_f32 v22, v22, v19
    """)
    for r in range(16): a(f"v_sub_f32 v{NEGM+r}, 0, v22")
    a("s_branch b_task")
    a.label("b_ok")
    a(f"""
    s_mov_b32 s60, 0
    s_add_u32 s46, s46, 1
    s_add_u32 s61, s56, {SLOT}
    s_cmp_ge_u32 s61, {RING}
    s_cselect_b32 s61, 0, s61
    """)
    task_setup()
    for r in range(64): a(f"v_mul_f32 v{O_+r}, v26, v{O_+r}")
    a(f"""
    s_lshr_b32 s28, s48, 5
    s_mul_i32 s28, s28, {ZF_RG}
    s_lshl_b32 s29, s6, 13
    s_add_u32 s28, s28, s29
    s_add_u32 s28, s28, {ZF_OFF}
    s_add_u32 s29, s28, 4096
    """)
    for kk in range(8):
        t = FR + 4 * kk
        pack8(a, t, O_ + 8 * kk)
        a(f"buffer_store_dwordx4 v[{t}:{t+3}], v1, s[20:23], s{28 + (kk >> 2)} offen offset:{(kk & 3) * 1024} sc1")
    for r in range(32): a(f"v_mov_b32 v{QF+r}, v{Q2+r}")
    a("""
    s_cmp_lt_u32 s46, 2
    s_cbranch_scc1 b_task
    """)
    st7(a, 3, tv=28)
    a(f"""
    s_waitcnt vmcnt(0)
    v_mov_b32 v2, {FLAG + 32}
    v_mov_b32 v3, 1
    s_mov_b64 exec, 1
    ds_add_rtn_u32 v4, v2, v3
    s_mov_b64 exec, -1
    s_waitcnt lgkmcnt(0)
    v_readfirstlane_b32 s28, v4
    s_cmp_lg_u32 s28, 3
    s_cbranch_scc1 p3_g
    """)
    signal(a, 0, "s7", wait=False)
    a("s_sub_u32 s49, 15, s7")
    signal(a, 0, "s49", wait=False)
    a("s_branch p3_g")

def cidx(a, base, sreg=None):
    if sreg is None: a(f"s_mov_b32 s40, {CNT_OFF + base*256}")
    else:
        a(f"s_lshl_b32 s40, {sreg}, 8"); a(f"s_add_u32 s40, s40, {CNT_OFF + base*256}")

def signal(a, base, sreg=None, wait=True):
    if wait: a("s_waitcnt vmcnt(0)")
    cidx(a, base, sreg)
    a(f"""
    v_mov_b32 v2, 1
    v_mov_b32 v3, 0
    s_mov_b64 exec, 1
    buffer_atomic_add v2, v3, s[20:23], s40 offen sc1
    s_mov_b64 exec, -1
    """)

def poll(a, base, target, slp=8, sreg=None, dbg=False):
    l1 = a.newlabel("poll"); l2 = a.newlabel("polled")
    if dbg: a(f"s_mov_b32 s40, {base}")
    else: cidx(a, base, sreg)
    a(f"""
    v_mov_b32 v3, 0
    s_mov_b32 s41, 0
    {l1}:
    buffer_load_dword v2, v3, s[{80 if dbg else 20}:{83 if dbg else 23}], s40 offen sc1
    s_waitcnt vmcnt(0)
    v_readfirstlane_b32 s29, v2
    s_cmp_ge_u32 s29, {target}
    s_cbranch_scc1 {l2}
    s_sleep {slp}
    s_add_u32 s41, s41, 1
    s_cmp_lt_u32 s41, 0x100000
    s_cbranch_scc1 {l1}
    {l2}:
    """)

def amap(a):
    a("""
    s_and_b32 s28, s2, 7
    s_lshl_b32 s28, s28, 1
    s_lshr_b32 s29, s2, 7
    s_add_u32 s66, s28, s29
    s_lshr_b32 s67, s2, 3
    s_and_b32 s67, s67, 15
    """)

def side_workers(a, task_setup, extra_part):
    a.label("k1_side")
    amap(a)
    WB = MISC + 8192 + 256
    a(f"""
    s_waitcnt vmcnt(0)
    s_mov_b32 s46, 0
    s_mov_b32 s44, 0
    s_sub_u32 s45, s3, 4
    v_and_b32 v4, 31, v0
    v_lshrrev_b32 v5, 5, v0
    v_lshlrev_b32 v12, 10, v4
    v_lshl_add_u32 v12, v5, 4, v12
    s_lshl_b32 s28, s66, 2
    s_add_u32 s28, s28, s45
    s_lshl_b32 s48, s28, 15
    s_lshl_b32 s49, s66, 2
    s_add_u32 s49, s49, 3
    s_lshl_b32 s49, s49, 15
    v_bfe_u32 v6, v0, 2, 2
    v_lshl_add_u32 v13, v5, 3, v6
    v_lshlrev_b32 v13, 6, v13
    v_lshl_add_u32 v14, v5, 2, v6
    v_lshlrev_b32 v14, 6, v14
    v_bfe_u32 v6, v0, 4, 1
    v_lshlrev_b32 v6, 5, v6
    v_and_b32 v7, 3, v0
    v_lshl_add_u32 v6, v7, 3, v6
    v_add_u32 v13, v6, v13
    v_add_u32 v13, {MISC}, v13
    v_add_u32 v14, v6, v14
    s_lshl_b32 s28, s45, 10
    s_add_u32 s51, s28, {WB}
    v_add_u32 v14, s51, v14
    v_lshrrev_b32 v15, 2, v0
    v_lshlrev_b32 v15, 10, v15
    v_lshl_add_u32 v15, v7, 4, v15
    s_mov_b32 s92, s58
    s_mov_b32 s93, s59
    s_mov_b32 s94, {512*1024}
    s_mov_b32 s95, 0x00020000
    s_mul_i32 s52, s2, 18
    s_mul_i32 s28, s45, 6
    s_add_u32 s52, s52, s28
    s_mov_b32 s19, 0x00020000
    """)
    task_setup()
    a("s_cmp_lg_u32 s3, 5")
    a("s_cbranch_scc1 sw_ni")
    a("""
    v_mov_b32 v3, 0
    s_mov_b32 s41, 0
    sw_ip:
    buffer_load_dword v2, v3, s[80:83], 0 offen sc1
    s_waitcnt vmcnt(0)
    v_readfirstlane_b32 s29, v2
    s_and_b32 s29, s29, 1
    s_cbranch_scc1 sw_ipd
    s_sleep 8
    s_add_u32 s41, s41, 1
    s_cmp_lt_u32 s41, 0x100000
    s_cbranch_scc1 sw_ip
    sw_ipd:
    """)
    a(f"""
    v_mov_b32 v2, {FLAG + 32}
    v_mov_b32 v3, 0
    ds_write_b32 v2, v3
    s_waitcnt lgkmcnt(0)
    """)
    a.label("sw_ni")
    QA0 = 128; QA1 = 144; XA = 64; XB = 80; WQF = 96
    for j in range(10):
        a("s_barrier")
        if j >= 1:
            a("s_waitcnt vmcnt(0)")
        if 1 <= j <= 8:
            p = j - 1
            for s in range(4):
                a(f"ds_read_b64_tr_b16 v[{WQF+4*s}:{WQF+4*s+1}], v13 offset:{(p&1)*4096 + s*1024}")
                a(f"ds_read_b64_tr_b16 v[{WQF+4*s+2}:{WQF+4*s+3}], v13 offset:{(p&1)*4096 + s*1024 + 256}")
        if 1 <= j <= 6:
            a("ds_read_b64_tr_b16 v[112:113], v14")
            a("ds_read_b64_tr_b16 v[114:115], v14 offset:512")
        if j >= 1: a("s_waitcnt lgkmcnt(0)")
        if 1 <= j <= 6:
            a(f"""
            s_lshl_b32 s28, s52, 10
            s_add_u32 s28, s28, {WF_OFF}
            buffer_store_dwordx4 v[112:115], v1, s[20:23], s28 offen sc1
            s_add_u32 s52, s52, 1
            """)
        if 1 <= j <= 8:
            for s in range(4):
                c = "0" if (j == 1 and s == 0) else f"v[{QA0}:{QA0+15}]"
                a(f"{MFMA} v[{QA0}:{QA0+15}], v[{WQF+4*s}:{WQF+4*s+3}], v[{XA+4*s}:{XA+4*s+3}], {c}")
            l = a.newlabel("sw_n2")
            a("s_cmp_lg_u32 s3, 4")
            a(f"s_cbranch_scc1 {l}")
            for s in range(4):
                c = "0" if (j == 1 and s == 0) else f"v[{QA1}:{QA1+15}]"
                a(f"{MFMA} v[{QA1}:{QA1+15}], v[{WQF+4*s}:{WQF+4*s+3}], v[{XB+4*s}:{XB+4*s+3}], {c}")
            a.label(l)
        if j <= 7:
            for s in range(4): a(f"buffer_load_dwordx4 v[{XA+4*s}:{XA+4*s+3}], v12, s[76:79], s48 offen offset:{j*128 + s*32}")
            l = a.newlabel("sw_n3"); l2 = a.newlabel("sw_n4")
            a("s_cmp_lg_u32 s3, 4")
            a(f"s_cbranch_scc1 {l}")
            for s in range(4): a(f"buffer_load_dwordx4 v[{XB+4*s}:{XB+4*s+3}], v12, s[76:79], s49 offen offset:{j*128 + s*32}")
            a.label(l)
            a("s_cmp_lg_u32 s3, 6")
            a(f"s_cbranch_scc1 {l2}")
            a(f"s_mov_b32 m0, {MISC + (j&1)*4096}")
            a("s_lshl_b32 s29, s67, 6")
            for i in range(4):
                a(f"s_add_u32 s28, s29, {j*65536 + i*16384 - i*1024}")
                a(f"buffer_load_dwordx4 v15, s[92:95], s28 offen offset:{i*1024} lds")
            a.label(l2)
        if j <= 5:
            a(f"""
            s_lshr_b32 s28, s52, 4
            s_and_b32 s29, s52, 15
            s_lshl_b32 s29, s29, 6
            s_cmp_lt_u32 s28, 256
            s_cselect_b32 s16, s56, s60
            s_cselect_b32 s17, s57, s61
            s_cselect_b32 s18, {4*MB}, s94
            s_and_b32 s28, s28, 255
            s_lshl_b32 s28, s28, 14
            s_add_u32 s28, s28, s29
            s_mov_b32 m0, s51
            s_nop 0
            buffer_load_dwordx4 v15, s[16:19], s28 offen lds
            """)
        if j == 7: pass
        if j == 8:
            l = a.newlabel("sw_wf")
            a("s_cmp_lg_u32 s3, 5")
            a(f"s_cbranch_scc1 {l}")
            signal(a, 33, wait=False)
            a.label(l)
        if j == 9:
            a(f"s_mov_b32 s28, {f32hex(LOG2E * 0.25)}")
            for r in range(32): a(f"v_mul_f32 v{QA0+r}, s28, v{QA0+r}")
            for i in range(4): pack8(a, 64 + 4 * i, QA0 + 8 * i)
            a(f"""
            s_lshl_b32 s28, s2, 13
            s_lshl_b32 s29, s45, 11
            s_add_u32 s29, s29, s28
            s_add_u32 s29, s29, {QA_OFF}
            buffer_store_dwordx4 v[64:67], v1, s[20:23], s29 offen sc1
            buffer_store_dwordx4 v[68:71], v1, s[20:23], s29 offen offset:1024 sc1
            s_cmp_lg_u32 s3, 4
            s_cbranch_scc1 sw_q3
            s_add_u32 s29, s28, {QA_OFF + 6144}
            buffer_store_dwordx4 v[72:75], v1, s[20:23], s29 offen sc1
            buffer_store_dwordx4 v[76:79], v1, s[20:23], s29 offen offset:1024 sc1
            sw_q3:
            s_waitcnt vmcnt(0)
            """)
        if j <= 7:
            l = a.newlabel("sw_n5")
            a("s_cmp_lg_u32 s3, 6")
            a(f"s_cbranch_scc1 {l}")
            a("s_waitcnt vmcnt(0)")
            a.label(l)
    a("""
    s_mov_b32 s58, 40
    s_cmp_ge_u32 s2, 64
    s_cbranch_scc1 sw_chk
    """)
    for k in range(10, 16):
        a("s_barrier")
        l = a.newlabel("sw_x")
        a("s_cmp_eq_u32 s3, 4")
        a(f"s_cbranch_scc1 {l}")
        extra_part(k)
        a.label(l)
    a("s_mov_b32 s58, 64")
    a("s_branch sw_chk")
    a.label("sw_task")
    a("s_mov_b32 s58, 0")
    a.label("sw_loop")
    a("s_barrier")
    a("s_add_u32 s58, s58, 4")
    a.label("sw_chk")
    a("""
    s_add_u32 s28, s50, 2
    s_cmp_lt_u32 s58, s28
    s_cbranch_scc1 sw_loop
    s_barrier
    """)
    read_flags(a, 32)
    a("""
    s_cmp_eq_u32 s28, 0
    s_cbranch_scc1 sw_ok
    s_cmp_lg_u32 s44, 0
    s_cbranch_scc1 sw_ok
    s_mov_b32 s44, 1
    s_mov_b32 s58, 0
    sw_max:
    s_barrier
    s_barrier
    s_add_u32 s58, s58, 1
    s_cmp_lt_u32 s58, s50
    s_cbranch_scc1 sw_max
    s_branch sw_task
    sw_ok:
    s_mov_b32 s44, 0
    s_add_u32 s46, s46, 1
    s_cmp_ge_u32 s46, 2
    s_cbranch_scc1 p3_a
    """)
    task_setup()
    a("s_branch sw_task")

def phase3_A(a):
    AQ = 8; ANEG = (32, 48); AO = (64, 80); AS = (96, 112); AP = (16, 24); AKV = 128
    a.label("p3_a")
    amap(a)
    a("s_sub_u32 s45, s3, 4")
    a(f"""
    v_mov_b32 v2, {FLAG + 64}
    ds_read_b32 v4, v2
    s_waitcnt lgkmcnt(0)
    v_readfirstlane_b32 s50, v4
    """)
    a(f"""
    s_lshl_b32 s28, s2, 13
    s_lshl_b32 s29, s45, 11
    s_add_u32 s29, s29, s28
    s_add_u32 s29, s29, {QA_OFF}
    buffer_load_dwordx4 v[{AQ}:{AQ+3}], v1, s[20:23], s29 offen sc1
    buffer_load_dwordx4 v[{AQ+4}:{AQ+7}], v1, s[20:23], s29 offen offset:1024 sc1
    s_lshl_b32 s48, s66, 7
    s_lshl_b32 s29, s45, 5
    s_add_u32 s48, s48, s29
    v_and_b32 v3, 31, v0
    v_lshrrev_b32 v4, 5, v0
    v_add_u32 v2, s48, v3
    v_lshlrev_b32 v2, 3, v2
    s_mov_b32 s28, {G_OFF}
    buffer_load_dword v160, v2, s[20:23], s28 offen sc1
    v_lshl_add_u32 v7, v4, 4, v3
    v_lshlrev_b32 v7, 4, v7
    v_add_u32 v7, 0x2000, v7
    v_mov_b32 v2, 0x3f803f80
    v_cmp_eq_u32 vcc, 16, v3
    s_nop 1
    v_cndmask_b32 v2, 0, v2, vcc
    v_cmp_gt_u32 s[62:63], 16, v3
    s_mov_b32 s60, 0
    """)
    for st in range(2):
        for r in range(8): a(f"v_mov_b32 v{AKV+12*st+4+r}, v2")
    a("s_waitcnt vmcnt(0)")
    st7(a, 12, tv=250)
    a("s_setprio 3")
    a.label("p3a_start")
    a(f"""
    v_add_u32 v5, s50, v1
    v_add_u32 v6, s50, v7
    s_add_u32 s51, s50, {SLOT}
    s_cmp_ge_u32 s51, {RING}
    s_cselect_b32 s51, 0, s51
    v_add_u32 v164, s51, v1
    v_add_u32 v165, s51, v7
    ds_read_b128 v[{AKV+12}:{AKV+15}], v5
    """)
    def stage_reads(j, stg):
        f = AKV + 12 * stg
        k = f"v5 offset:{(j+1)*1024}" if j < 7 else f"v164 offset:{(j-7)*1024}"
        vv, vo = ("v6", j * 1024) if j < 8 else ("v165", 0)
        return [f"ds_read_b128 v[{f}:{f+3}], {k}",
                "s_mov_b64 exec, s[62:63]",
                f"ds_read_b128 v[{f+4}:{f+7}], {vv} offset:{vo}",
                f"ds_read_b128 v[{f+8}:{f+11}], {vv} offset:{vo + 512}",
                "s_mov_b64 exec, -1"]
    for o in stage_reads(0, 0): a(o)
    for X in range(2):
        for r in range(16): a(f"v_mov_b32 v{AO[X]+r}, 0")
    a("s_waitcnt lgkmcnt(3)")
    K0 = AKV + 12
    a("s_cmp_eq_u32 s60, 0")
    a("s_cbranch_scc1 p3a_raw")
    for X in range(2):
        a(f"{MFMA} v[{AS[X]}:{AS[X]+15}], v[{K0}:{K0+3}], v[{AQ+4*X}:{AQ+4*X+3}], v[{ANEG[X]}:{ANEG[X]+15}]")
    a("s_nop 15")
    a("s_branch p3a_go")
    a.label("p3a_raw")
    for X in range(2):
        a(f"{MFMA} v[{AS[X]}:{AS[X]+15}], v[{K0}:{K0+3}], v[{AQ+4*X}:{AQ+4*X+3}], 0")
    a("s_nop 15")
    for X in range(2):
        S = AS[X]
        a(f"v_max3_f32 v2, v{S}, v{S+1}, v{S+2}")
        for r in range(3, 15, 2): a(f"v_max3_f32 v2, v2, v{S+r}, v{S+r+1}")
        a(f"v_max_f32 v2, v2, v{S+15}")
        a("""
        v_mov_b32 v161, v2
        s_nop 1
        v_permlane32_swap_b32 v161, v2
        s_nop 1
        v_max_f32 v2, v2, v161
        """)
        for r in range(16): a(f"v_sub_f32 v{S+r}, v{S+r}, v2")
        for r in range(16): a(f"v_sub_f32 v{ANEG[X]+r}, 0, v2")
    a.label("p3a_go")
    a("s_mov_b32 s52, 0")
    def valu(X):
        S = AS[X]; P = AP[X]
        ops = []
        for r in range(16):
            ops.append(f"v_exp_f32 v{S+r}, v{S+r}")
            if r >= 2 and (r & 1) == 0: ops.append(f"v_cvt_pk_bf16_f32 v{P+(r>>1)-1}, v{S+r-2}, v{S+r-1}")
        ops.append("s_nop 0")
        ops.append(f"v_cvt_pk_bf16_f32 v{P+7}, v{S+14}, v{S+15}")
        return ops
    def phase(X, f, extra=(), grp=()):
        Y = X ^ 1
        ops = valu(X)
        m = [f"{MFMA} v[{AS[Y]}:{AS[Y]+15}], v[{f}:{f+3}], v[{AQ+4*Y}:{AQ+4*Y+3}], v[{ANEG[Y]}:{ANEG[Y]+15}]",
             f"{MFMA} v[{AO[Y]}:{AO[Y]+15}], v[{f+4}:{f+7}], v[{AP[Y]}:{AP[Y]+3}], v[{AO[Y]}:{AO[Y]+15}]",
             f"{MFMA} v[{AO[Y]}:{AO[Y]+15}], v[{f+8}:{f+11}], v[{AP[Y]+4}:{AP[Y]+7}], v[{AO[Y]}:{AO[Y]+15}]"]
        extra = list(extra)
        for i, o in enumerate(ops):
            if i == 0:
                a(m[0])
                for g in grp: a(g)
            if i == 5: a(m[1])
            if i == 11: a(m[2])
            a(o)
            if i >= 1 and extra: a(extra.pop(0))
    for o in valu(0): a(o)
    a.label("p3a_loop")
    a(f"""
    s_cmp_lg_u32 s52, 4
    s_cbranch_scc1 p3a_nf
    v_mov_b32 v2, {FLAG + 68}
    s_mov_b32 s41, 0
    p3a_fw:
    ds_read_b32 v4, v2
    s_waitcnt lgkmcnt(0)
    v_readfirstlane_b32 s29, v4
    s_cmp_lg_u32 s29, 0
    s_cbranch_scc1 p3a_nf
    s_sleep 2
    s_add_u32 s41, s41, 1
    s_cmp_lt_u32 s41, 0x1000000
    s_cbranch_scc1 p3a_fw
    p3a_nf:
    """)
    for j in range(8):
        stg = j & 1
        f = AKV + 12 * stg
        a("s_waitcnt lgkmcnt(0)")
        phase(1, f, grp=stage_reads(j + 1, stg ^ 1))
        ex = []
        if j == 7: ex = ["v_mov_b32 v5, v164", "v_mov_b32 v6, v165", f"s_add_u32 s51, s51, {SLOT}", f"s_cmp_ge_u32 s51, {RING}", "s_cselect_b32 s51, 0, s51",
                         "v_add_u32 v164, s51, v1", "v_add_u32 v165, s51, v7", "s_add_u32 s52, s52, 1", "s_cmp_lt_u32 s52, 8"]
        phase(0, f, extra=ex)
    a("s_cbranch_scc1 p3a_loop")
    a(f"""
    s_waitcnt lgkmcnt(0)
    s_nop 15
    v_lshlrev_b32 v5, 2, v3
    ds_bpermute_b32 v6, v5, v{AO[0]+8}
    ds_bpermute_b32 v161, v5, v{AO[1]+8}
    v_mov_b32 v4, 0
    """)
    for X in range(2):
        for r in range(8): a(f"v_fma_f32 v4, v{AO[X]+r}, 0, v4")
    a(f"""
    s_mov_b32 s28, {f32hex(2.0**THR)}
    s_waitcnt lgkmcnt(0)
    v_cmp_nle_f32 vcc, v6, s28
    v_cmp_nle_f32 s[56:57], v161, s28
    s_or_b64 s[56:57], s[56:57], vcc
    v_cmp_u_f32 vcc, v4, v4
    s_or_b64 s[56:57], s[56:57], vcc
    s_cmp_eq_u64 s[56:57], 0
    s_cbranch_scc1 p3a_ok
    s_cmp_lg_u32 s60, 0
    s_cbranch_scc1 p3a_ok
    s_mov_b32 s60, 1
    s_mov_b32 s52, 0
    s_mov_b32 s51, s50
    v_mov_b32 v162, 0xff800000
    v_mov_b32 v163, 0xff800000
    p3a_max:
    s_and_b32 s28, s52, 7
    s_lshl_b32 s29, s28, 10
    s_add_u32 s29, s29, s51
    v_add_u32 v5, s29, v1
    ds_read_b128 v[{AKV}:{AKV+3}], v5
    s_add_u32 s29, s51, {SLOT}
    s_cmp_ge_u32 s29, {RING}
    s_cselect_b32 s29, 0, s29
    s_cmp_eq_u32 s28, 7
    s_cselect_b32 s51, s29, s51
    s_waitcnt lgkmcnt(0)
    """)
    for X in range(2):
        a(f"{MFMA} v[{AS[X]}:{AS[X]+15}], v[{AKV}:{AKV+3}], v[{AQ+4*X}:{AQ+4*X+3}], 0")
    a("s_nop 15")
    for X in range(2):
        for r in range(0, 16, 2): a(f"v_max3_f32 v{162+X}, v{162+X}, v{AS[X]+r}, v{AS[X]+r+1}")
    a("""
    s_add_u32 s52, s52, 1
    s_cmp_lt_u32 s52, 64
    s_cbranch_scc1 p3a_max
    """)
    for X in range(2):
        a(f"""
        v_mov_b32 v5, v{162+X}
        s_nop 1
        v_permlane32_swap_b32 v5, v{162+X}
        s_nop 1
        v_max_f32 v{162+X}, v{162+X}, v5
        """)
        for r in range(16): a(f"v_sub_f32 v{ANEG[X]+r}, 0, v{162+X}")
    a("s_branch p3a_start")
    a.label("p3a_ok")
    a(f"""
    v_rcp_f32 v6, v6
    v_rcp_f32 v161, v161
    s_lshr_b32 s28, s48, 5
    s_mul_i32 s28, s28, {ZF_RG}
    s_lshl_b32 s29, s67, 11
    s_add_u32 s28, s28, s29
    s_add_u32 s28, s28, {ZF_OFF + 256*1024}
    v_mul_f32 v6, v6, v160
    v_mul_f32 v161, v161, v160
    """)
    for X in range(2):
        for r in range(8): a(f"v_mul_f32 v{AO[X]+r}, v{(6, 161)[X]}, v{AO[X]+r}")
        pack8(a, AP[X], AO[X])
        a(f"buffer_store_dwordx4 v[{AP[X]}:{AP[X]+3}], v1, s[20:23], s28 offen offset:{X*1024} sc1")
    signal(a, 16, "s66")
    st7(a, 13, tv=250)
    a("s_endpgm")

def phase3_G(a):
    ACC = 192; RG = 32
    a.label("p3_g")
    a("s_setprio 0")
    amap(a)
    srd(a, 16, 74, 2*MB)
    a(f"""
    s_and_b32 s28, s2, 7
    s_lshl_b32 s28, s28, 2
    s_lshr_b32 s29, s2, 6
    s_add_u32 s6, s28, s29
    s_lshr_b32 s7, s2, 3
    s_and_b32 s7, s7, 7
    s_mul_i32 s44, s6, {2*ZF_RG}
    s_lshl_b32 s28, s3, 11
    s_add_u32 s44, s44, s28
    s_add_u32 s44, s44, {ZF_OFF}
    s_add_u32 s45, s44, {ZF_RG}
    s_lshl_b32 s46, s3, 15
    s_lshl_b32 s28, s7, 11
    s_add_u32 s46, s46, s28
    s_add_u32 s46, s46, {WF_OFF}
    s_add_u32 s47, s46, 16384
    """)
    poll(a, 33, 256)
    def issue_w(slot):
        r = RG + 32 * slot + 16
        a(f"buffer_load_dwordx4 v[{r}:{r+3}], v1, s[20:23], s46 offen sc1")
        a(f"buffer_load_dwordx4 v[{r+4}:{r+7}], v1, s[20:23], s46 offen offset:1024 sc1")
        a(f"buffer_load_dwordx4 v[{r+8}:{r+11}], v1, s[20:23], s47 offen sc1")
        a(f"buffer_load_dwordx4 v[{r+12}:{r+15}], v1, s[20:23], s47 offen offset:1024 sc1")
        a(f"s_add_u32 s46, s46, {4*32768}")
        a(f"s_add_u32 s47, s47, {4*32768}")
    def issue_z(slot):
        r = RG + 32 * slot
        a(f"buffer_load_dwordx4 v[{r}:{r+3}], v1, s[20:23], s44 offen sc1")
        a(f"buffer_load_dwordx4 v[{r+4}:{r+7}], v1, s[20:23], s44 offen offset:1024 sc1")
        a(f"buffer_load_dwordx4 v[{r+8}:{r+11}], v1, s[20:23], s45 offen sc1")
        a(f"buffer_load_dwordx4 v[{r+12}:{r+15}], v1, s[20:23], s45 offen offset:1024 sc1")
        a("s_add_u32 s44, s44, 8192")
        a("s_add_u32 s45, s45, 8192")
    def mm(slot):
        r = RG + 32 * slot
        for s in range(2):
            for m in range(2):
                for rg in range(2):
                    w = r + 16 + 8 * s + 4 * m; z = r + 8 * rg + 4 * s
                    acc = ACC + 16 * (2 * m + rg)
                    a(f"{MFMA} v[{acc}:{acc+15}], v[{w}:{w+3}], v[{z}:{z+3}], v[{acc}:{acc+15}]")
    for r in range(64): a(f"v_mov_b32 v{ACC+r}, 0")
    poll(a, 0, 32, sreg="s66")
    st7(a, 12, tv=28)
    a(f"""
    v_and_b32 v9, 31, v0
    s_lshl_b32 s28, s6, 6
    v_add_u32 v9, s28, v9
    v_lshlrev_b32 v4, 3, v9
    """)
    for sl in range(4):
        issue_w(sl); issue_z(sl)
    a("s_mov_b32 s48, 0")
    a.label("p3g_loop")
    for sl in range(4):
        a("s_waitcnt vmcnt(24)")
        mm(sl)
        issue_w(sl); issue_z(sl)
    a("""
    s_add_u32 s48, s48, 1
    s_cmp_lt_u32 s48, 7
    s_cbranch_scc1 p3g_loop
    """)
    for sl in range(4):
        a(f"s_waitcnt vmcnt({24 - 4*sl})")
        mm(sl)
        issue_w(sl)
    poll(a, 32, 64)
    a(f"""
    s_mov_b32 s28, {G_OFF}
    buffer_load_dword v10, v4, s[20:23], s28 offen offset:4 sc1
    buffer_load_dword v11, v4, s[20:23], s28 offen offset:260 sc1
    s_waitcnt vmcnt(0)
    """)
    for m in range(2):
        for rg in range(2):
            for r in range(16): a(f"v_mul_f32 v{ACC+16*(2*m+rg)+r}, v{10+rg}, v{ACC+16*(2*m+rg)+r}")
    st7(a, 13, tv=28)
    poll(a, 16, 64, slp=4, sreg="s66")
    for sl in range(4): issue_z(sl)
    for sl in range(4):
        a(f"s_waitcnt vmcnt({12 - 4*sl})")
        mm(sl)
    a("""
    s_lshl_b32 s28, s3, 14
    v_add_u32 v7, s28, v1
    s_nop 15
    s_barrier
    """)
    for bk in range(16): a(f"ds_write_b128 v7, v[{ACC+4*bk}:{ACC+4*bk+3}] offset:{bk*1024}")
    a("""
    s_waitcnt lgkmcnt(0)
    s_barrier
    s_lshl_b32 s28, s3, 12
    v_add_u32 v7, s28, v1
    """)
    for e in range(4):
        for w in range(4):
            d = 32 + 16 * e + 4 * w
            a(f"ds_read_b128 v[{d}:{d+3}], v7 offset:{w*16384 + e*1024}")
    a("""
    s_and_b32 s28, s3, 1
    s_lshl_b32 s28, s28, 5
    v_add_u32 v9, s28, v9
    v_lshlrev_b32 v9, 10, v9
    v_lshrrev_b32 v10, 5, v0
    v_lshl_add_u32 v9, v10, 3, v9
    s_lshl_b32 s28, s7, 7
    s_lshr_b32 s29, s3, 1
    s_lshl_b32 s29, s29, 6
    s_add_u32 s28, s28, s29
    """)
    for e in range(4):
        a(f"s_waitcnt lgkmcnt({4*(3-e)})")
        d = 32 + 16 * e
        for w in range(1, 4):
            for j in range(4): a(f"v_add_f32 v{d+j}, v{d+j}, v{d+4*w+j}")
        a(f"v_cvt_pk_bf16_f32 v{12+2*e}, v{d}, v{d+1}")
        a(f"v_cvt_pk_bf16_f32 v{13+2*e}, v{d+2}, v{d+3}")
        a(f"buffer_store_dwordx2 v[{12+2*e}:{13+2*e}], v9, s[16:19], s28 offen offset:{16*e}")
    if STAMP: a("s_waitcnt vmcnt(0)")
    st7(a, 14, real=True, tv=28)

if __name__ == "__main__":
    os.environ["NOSPLIT"] = "1"; os.environ["GSCALE"] = "1"
    if not os.environ.get("ROT"): os.environ["NOROT"] = "1"
    build([gen_k12], sys.argv[1] if len(sys.argv) > 1 else "out.s")
```

```python
from gen4 import *
import gen4
from gen2 import _stamp, VM
def st7(a, idx, tv=2, **kw):
    if os.environ.get("STK", "2") == "2": _stamp(a, idx, tv=tv, **kw)

STG = 49152
SLOT = 16384; NSL = 9; RING = NSL * SLOT
MISC = RING; FLAG = MISC + 8192; QX = 5 * SLOT
O_ = 192; QF = 160; S_ = (128, 144); NEGM = 112; P_ = (96, 104); Q2 = 64; FR = 32
NK = 24

def gen_k12(a):
    name = "mega_kernel"
    kernel_begin(a, name)
    a(f"""
    s_cmp_ge_u32 s2, 256
    s_cbranch_scc1 k1_end
    s_load_dwordx2 s[4:5], s[0:1], {KA_CKV}
    s_load_dwordx4 s[24:27], s[0:1], {KA_WUK}
    s_load_dwordx4 s[8:11], s[0:1], {KA_DBG}
    s_load_dwordx2 s[64:65], s[0:1], {KA_X}
    s_load_dwordx4 s[68:71], s[0:1], {KA_WK}
    s_load_dwordx2 s[72:73], s[0:1], {KA_GATE}
    s_load_dwordx2 s[54:55], s[0:1], {KA_BWQ}
    s_load_dwordx2 s[56:57], s[0:1], {KA_BWO}
    s_load_dwordx2 s[58:59], s[0:1], {KA_WQ}
    s_load_dwordx2 s[60:61], s[0:1], {KA_WO}
    s_load_dwordx2 s[74:75], s[0:1], {KA_OUT}
    v_lshrrev_b32 v2, 6, v0
    v_and_b32 v0, 63, v0
    v_lshlrev_b32 v1, 4, v0
    v_readfirstlane_b32 s3, v2
    s_and_b32 s6, s2, 31
    s_lshr_b32 s7, s2, 5
    s_waitcnt lgkmcnt(0)
    s_mov_b32 s30, s10
    s_mov_b32 s31, s11
    """)
    srd(a, 20, 30, WS_BYTES)
    srd(a, 80, 8, 256)
    srd(a, 76, 64, 2*MB); srd(a, 88, 72, 1024)
    a(f"""
    s_lshl_b32 s28, s6, 19
    s_add_u32 s84, s30, s28
    s_addc_u32 s85, s31, 0
    s_mov_b32 s86, 524288
    s_mov_b32 s87, 0x00020000
    s_add_u32 s32, s84, {VF_OFF - 16384}
    s_addc_u32 s33, s85, 0
    s_mov_b32 s34, {524288 + 16384}
    s_mov_b32 s35, 0x00020000
    """)
    st7(a, 0); st7(a, 15, real=True)
    srd(a, 36, 4, 2*MB)
    srd(a, 12, 24, 4*MB)
    a(f"""
    v_mov_b32 v30, 0
    v_mov_b32 v31, 0
    v_lshrrev_b32 v3, 3, v0
    v_lshrrev_b32 v4, 4, v0
    v_and_b32 v5, 7, v0
    v_xor_b32 v6, v5, v4
    v_xor_b32 v7, 4, v6
    v_lshlrev_b32 v3, 10, v3
    v_lshl_add_u32 v6, v6, 4, v3
    v_lshl_add_u32 v7, v7, 4, v3
    s_lshl_b32 s28, s7, 8
    s_lshl_b32 s29, s3, 5
    s_add_u32 s28, s28, s29
    s_lshl_b32 s28, s28, 10
    v_add_u32 v8, s28, v6
    v_add_u32 v9, s28, v7
    s_sub_u32 s28, 15, s7
    s_cmp_lt_u32 s3, 4
    s_cselect_b32 s28, s28, s7
    s_lshl_b32 s28, s28, 7
    s_and_b32 s29, s3, 3
    s_lshl_b32 s29, s29, 5
    s_add_u32 s28, s28, s29
    s_lshl_b32 s44, s28, 10
    v_add_u32 v11, s44, v6
    s_sub_u32 s44, s44, 0
    v_add_u32 v2, s44, v7
    v_and_b32 v5, 15, v0
    v_lshlrev_b32 v6, 2, v4
    v_xor_b32 v5, v5, v6
    s_lshl_b32 s28, s3, 3
    v_add_u32 v6, s28, v4
    v_lshlrev_b32 v6, 13, v6
    v_lshl_add_u32 v6, v5, 4, v6
    s_lshl_b32 s28, s6, 8
    v_add_u32 v10, s28, v6
    v_mov_b32 v112, v11
    v_mov_b32 v113, v2
    s_lshl_b32 s45, s3, 12
    s_lshl_b32 s46, s3, 11
    s_add_u32 s46, s46, 32768
    """)
    a("""
    s_lshr_b32 s42, s6, 3
    s_lshl_b32 s42, s42, 1
    s_add_u32 s42, s42, s7
    s_and_b32 s42, s42, 7
    s_lshl_b32 s42, s42, 7
    s_lshl_b32 s43, s42, 12
    """ if not os.environ.get("NOROT") else """
    s_mov_b32 s42, 0
    s_mov_b32 s43, 0
    """)
    vm = VM()
    def dma_ops(k):
        kt = k & 7; st = k % 3
        ops = []
        if k == 8: ops += ["s_mov_b32 s12, s26", "s_mov_b32 s13, s27"]
        if k == 16: ops += ["s_mov_b32 s12, s54", "s_mov_b32 s13, s55", "s_mov_b32 s36, s64", "s_mov_b32 s37, s65", "v_mov_b32 v8, v112", "v_mov_b32 v9, v113"]
        ops.append(f"s_add_u32 m0, s45, {st*STG}")
        for jj in range(4):
            ops.append(f"s_add_u32 s40, s42, {jj*7168}")
            ops.append(f"buffer_load_dwordx4 v{8 + (jj & 1)}, s[36:39], s40 offen offset:{jj*1024} lds")
        ops.append(f"s_add_u32 m0, s46, {st*STG}")
        ops.append(f"s_add_u32 s40, s43, {32768 - 1024}")
        ops.append(f"buffer_load_dwordx4 v10, s[12:15], s43 offen lds")
        ops.append(f"buffer_load_dwordx4 v10, s[12:15], s40 offen offset:1024 lds")
        ops.append("s_add_u32 s42, s42, 128")
        ops.append("s_and_b32 s42, s42, 1023")
        ops.append("s_lshl_b32 s43, s42, 12")
        return ops
    def emit(o, tag):
        a(o)
        if o.startswith("buffer_"): vm.issue(tag)
    for k in range(3):
        for o in dma_ops(k): emit(o, ("d", k))
        if k == 0 and os.environ.get("CT") == "1":
            for i in range(touch_code(a, "k1c", "code_end", 8, 1, 117, 2)): vm.issue("ct")
    if os.environ.get("CT") == "2":
        for i in range(touch_code(a, "k1c", "code_end", 8, 1, 117, 2)): vm.issue("ct")
    def touch_ops(which):
        if which == 0:
            return ["s_lshr_b32 s28, s2, 3", "s_lshl_b32 s28, s28, 3", "s_add_u32 s28, s28, s3", "s_lshl_b32 s28, s28, 13",
                    "v_lshlrev_b32 v2, 7, v0",
                    "buffer_load_dword v114, v2, s[36:39], s28 offen",
                    "v_bfe_u32 v3, v0, 1, 3", "v_lshlrev_b32 v3, 13, v3", "v_and_b32 v4, 1, v0", "v_lshl_add_u32 v3, v4, 7, v3",
                    "s_lshl_b32 s29, s7, 19", "s_lshl_b32 s41, s3, 16", "s_add_u32 s29, s29, s41", "s_lshl_b32 s41, s6, 8", "s_add_u32 s29, s29, s41",
                    "buffer_load_dword v115, v3, s[12:15], s29 offen",
                    "s_mov_b32 s92, s26", "s_mov_b32 s93, s27", f"s_mov_b32 s94, {4*MB}", "s_mov_b32 s95, 0x00020000",
                    "buffer_load_dword v116, v3, s[92:95], s29 offen"]
        if which == 1:
            return ["s_lshr_b32 s28, s2, 3", "s_lshl_b32 s28, s28, 3", "s_add_u32 s28, s28, s3", "s_lshl_b32 s28, s28, 13",
                    "buffer_load_dword v114, v2, s[76:79], s28 offen",
                    "s_mov_b32 s92, s54", "s_mov_b32 s93, s55",
                    "buffer_load_dword v115, v3, s[92:95], s29 offen"]
        if which == 2:
            return ["s_lshl_b32 s28, s2, 3", "s_add_u32 s28, s28, s3", "s_lshl_b32 s28, s28, 11", "v_and_b32 v4, 15, v0", "v_lshlrev_b32 v4, 7, v4",
                    "s_mov_b32 s92, s56", "s_mov_b32 s93, s57",
                    "buffer_load_dword v114, v4, s[92:95], s28 offen",
                    "s_mov_b32 s92, s58", "s_mov_b32 s93, s59", f"s_mov_b32 s94, {512*1024}",
                    "buffer_load_dword v115, v4, s[92:95], s28 offen",
                    "s_mov_b32 s92, s60", "s_mov_b32 s93, s61",
                    "buffer_load_dword v116, v4, s[92:95], s28 offen"]
    a("""
    v_and_b32 v3, 31, v0
    s_lshr_b32 s28, s3, 1
    s_lshl_b32 s28, s28, 6
    v_add_u32 v3, s28, v3
    v_lshlrev_b32 v3, 7, v3
    v_lshrrev_b32 v5, 5, v0
    v_bfe_u32 v6, v0, 1, 3
    v_xor_b32 v5, v5, v6
    v_lshl_add_u32 v12, v5, 4, v3
    v_xor_b32 v13, 32, v12
    v_xor_b32 v14, 64, v12
    v_xor_b32 v15, 96, v12
    """)
    for st in (1, 2):
        for s in range(4): a(f"v_add_u32 v{12+4*st+s}, {st*STG}, v{12+s}")
    a("""
    v_lshrrev_b32 v3, 5, v0
    v_bfe_u32 v5, v0, 2, 2
    v_lshl_add_u32 v3, v3, 3, v5
    v_lshlrev_b32 v3, 8, v3
    v_bfe_u32 v6, v0, 4, 1
    v_lshl_add_u32 v3, v6, 5, v3
    v_and_b32 v6, 3, v0
    v_lshl_add_u32 v3, v6, 3, v3
    v_lshl_add_u32 v3, v5, 6, v3
    s_and_b32 s28, s3, 1
    s_lshl_b32 s28, s28, 7
    v_xor_b32 v3, s28, v3
    v_add_u32 v24, 32768, v3
    v_xor_b32 v25, 64, v24
    """)
    for st in (1, 2):
        for m in range(2): a(f"v_add_u32 v{24+2*st+m}, {st*STG}, v{24+m}")
    ACC = (128, 192, 128)
    a(f"""
    s_lshl_b32 s28, s6, 19
    s_lshl_b32 s29, s7, 16
    s_add_u32 s28, s28, s29
    s_lshr_b32 s29, s3, 1
    s_lshl_b32 s29, s29, 14
    s_add_u32 s28, s28, s29
    s_and_b32 s29, s3, 1
    s_lshl_b32 s48, s29, 12
    s_add_u32 s48, s48, s28
    s_add_u32 s48, s48, {KF_OFF}
    s_add_u32 s49, s48, 8192
    s_lshl_b32 s50, s29, 11
    s_add_u32 s50, s50, s28
    s_add_u32 s50, s50, {VF_OFF}
    s_add_u32 s51, s50, 4096
    s_add_u32 s52, s50, 8192
    s_add_u32 s53, s50, 12288
    """)
    FB = 64
    def read_ops(u):
        k = u >> 2; s = u & 3; st = k % 3
        f = FB + 16 * (u % 3)
        ca = 12 + 4 * st + s
        ops = [f"ds_read_b128 v[{f}:{f+3}], v{ca}",
               f"ds_read_b128 v[{f+4}:{f+7}], v{ca} offset:4096"]
        for m in range(2):
            wa = 24 + 2 * st + m
            ops.append(f"ds_read_b64_tr_b16 v[{f+8+4*m}:{f+9+4*m}], v{wa} offset:{s*4096}")
            ops.append(f"ds_read_b64_tr_b16 v[{f+10+4*m}:{f+11+4*m}], v{wa} offset:{s*4096+1024}")
        return ops
    def epi_ops(ps):
        ops = []; n = 0
        for m in range(2):
            for kb in range(2):
                acc = ACC[ps] + 16 * (m * 2 + kb)
                for g in range(2):
                    tmp = 32 + 4 * (n % 8); n += 1
                    for i in range(4):
                        ops.append(f"v_cvt_pk_bf16_f32 v{tmp+i}, v{acc+8*g+2*i}, v{acc+8*g+2*i+1}")
                    if ps == 0: sreg, off = 48 + kb, (2 * m + g) * 1024
                    else:       sreg, off = 50 + 2 * kb + g, m * 1024
                    ops.append(f"buffer_store_dwordx4 v[{tmp}:{tmp+3}], v1, s[20:23], s{sreg} offen offset:{off}" + ("" if os.environ.get("PLAINST") else " sc1"))
        return ops
    a(f"""
    s_waitcnt vmcnt({vm.need({("d", 0)})})
    s_barrier
    """)
    a(f"""
    s_cmp_lg_u32 s7, 0
    s_cbranch_scc1 k1_noinit
    s_cmp_lg_u32 s3, 6
    s_cbranch_scc1 k1_noinit
    v_lshlrev_b32 v2, 2, v0
    v_mov_b32 v3, 0
    s_lshl_b32 s28, s6, 8
    s_add_u32 s28, s28, {CNT_OFF + 64*256}
    buffer_store_dword v3, v2, s[20:23], s28 offen sc1
    s_cmp_lg_u32 s2, 0
    s_cbranch_scc1 k1_init2
    v_lshlrev_b32 v2, 8, v0
    s_mov_b32 s28, {CNT_OFF}
    buffer_store_dword v3, v2, s[20:23], s28 offen sc1
    k1_init2:
    s_waitcnt vmcnt(0)
    v_mov_b32 v2, 1
    s_mov_b64 exec, 1
    buffer_store_byte v2, v3, s[80:83], s6 offen sc1
    s_mov_b64 exec, -1
    s_waitcnt vmcnt(0)
    k1_noinit:
    """)
    if os.environ.get("P1PRIO"):
        a("s_cmp_lt_u32 s3, 4"); a("s_cbranch_scc1 k1_np"); a("s_setprio 1"); a.label("k1_np")
    st7(a, 4)
    for o in read_ops(0) + read_ops(1): a(o)
    def c_dma():
        for (sd, lo) in ((84, 0), (32, 8192)):
            for g in range(2):
                a(f"s_add_u32 m0, s53, {lo + g*4096}")
                a(f"s_add_u32 s28, s52, {g*4096}")
                for i in range(4):
                    a(f"buffer_load_dwordx4 v1, s[{sd}:{sd+3}], s28 offen offset:{i*1024} sc1 lds")
        a(f"""
        s_add_u32 s52, s52, 8192
        s_add_u32 s53, s53, {SLOT}
        s_cmp_ge_u32 s53, {RING}
        s_cselect_b32 s53, 0, s53
        """)
    def need_rb():
        l0 = a.newlabel("l_rbok"); l1 = a.newlabel("l_rbpoll"); l2 = a.newlabel("l_rbgot")
        a(f"""
        s_lshr_b32 s28, s52, 13
        s_add_u32 s28, s28, 4
        s_lshr_b32 s28, s28, 3
        s_min_u32 s28, s28, 7
        s_lshl_b32 s29, 2, s28
        s_sub_u32 s29, s29, 1
        s_and_b32 s28, s61, s29
        s_cmp_eq_u32 s28, s29
        s_cbranch_scc1 {l0}
        s_lshl_b32 s40, s6, 8
        s_add_u32 s40, s40, {CNT_OFF + 64*256}
        v_mov_b32 v4, 0
        s_mov_b32 s41, 0
        {l1}:
        buffer_load_dwordx2 v[2:3], v4, s[20:23], s40 offen sc1
        s_waitcnt vmcnt(0)
        v_readfirstlane_b32 s61, v2
        v_readfirstlane_b32 s28, v3
        s_mul_i32 s61, s61, 0x01020408
        s_lshr_b32 s61, s61, 24
        s_and_b32 s61, s61, 15
        s_mul_i32 s28, s28, 0x01020408
        s_lshr_b32 s28, s28, 20
        s_and_b32 s28, s28, 0xf0
        s_or_b32 s61, s61, s28
        s_and_b32 s28, s61, s29
        s_cmp_eq_u32 s28, s29
        s_cbranch_scc1 {l2}
        s_sleep 4
        s_add_u32 s41, s41, 1
        s_cmp_lt_u32 s41, 0x100000
        s_cbranch_scc1 {l1}
        {l2}:
        {l0}:
        """)
    def task_setup():
        a("""
        s_sub_u32 s47, 15, s7
        s_cmp_eq_u32 s46, 0
        s_cselect_b32 s47, s47, s7
        s_lshl_b32 s50, s47, 2
        s_add_u32 s50, s50, 4
        """)
    XW = MISC
    XP = MISC + 8192 + 256
    def extra_loads(r):
        a(f"""
        s_sub_u32 s40, s3, 5
        s_lshl_b32 s28, s2, 15
        s_lshl_b32 s29, s40, 7
        s_add_u32 s29, s29, {r*256}
        s_add_u32 s28, s28, s29
        """)
        for s in range(4): a(f"buffer_load_dwordx4 v[{112+4*s}:{115+4*s}], v30, s[76:79], s28 offen offset:{s*32}")
        for s in range(4): a(f"buffer_load_dwordx4 v[{160+4*s}:{163+4*s}], v31, s[88:91], s29 offen offset:{s*32}")
        a(f"""
        s_lshl_b32 s28, s40, 12
        s_add_u32 m0, s28, {XW}
        s_lshl_b32 s29, s40, 11
        s_add_u32 s29, s29, {r*4096}
        s_mov_b32 s92, s70
        s_mov_b32 s93, s71
        s_mov_b32 s94, 16384
        s_mov_b32 s95, 0x00020000
        buffer_load_dwordx4 v1, s[92:95], s29 offen lds
        buffer_load_dwordx4 v1, s[92:95], s29 offen offset:1024 lds
        s_add_u32 m0, s28, {XW + 2048}
        s_mov_b32 s92, s68
        s_mov_b32 s93, s69
        buffer_load_dwordx4 v1, s[92:95], s29 offen lds
        buffer_load_dwordx4 v1, s[92:95], s29 offen offset:1024 lds
        """)
    def extra_compute(r):
        a(f"""
        s_sub_u32 s40, s3, 5
        s_lshl_b32 s29, s2, 15
        s_lshl_b32 s28, s40, 12
        s_add_u32 s29, s29, s28
        s_add_u32 s29, s29, {XF_OFF + r*8192}
        s_waitcnt vmcnt(0)
        """)
        for s in range(4):
            a(f"ds_read_b64_tr_b16 v[{176+4*s}:{177+4*s}], v6 offset:{s*512}")
            a(f"ds_read_b64_tr_b16 v[{178+4*s}:{179+4*s}], v6 offset:{s*512+128}")
        a("s_waitcnt lgkmcnt(0)")
        for s in range(4):
            xf = 112 + 4 * s; wf = 176 + 4 * s
            first = (r == 0 and s == 0)
            a(f"{MFMA} v[128:143], v[{wf}:{wf+3}], v[{xf}:{xf+3}], {'0' if first else 'v[128:143]'}")
            a(f"{MFMA} v[144:159], v[{xf}:{xf+3}], v[{wf}:{wf+3}], {'0' if first else 'v[144:159]'}")
            for i in range(4): a(f"v_dot2_f32_bf16 v7, v{xf+i}, v{160+4*s+i}, v7")
    def extra_part(k):
        l = f"k1_x{k}"
        if k == 10:
            a(f"""
            v_and_b32 v30, 31, v0
            v_lshrrev_b32 v31, 5, v0
            v_lshlrev_b32 v30, 10, v30
            v_lshlrev_b32 v31, 4, v31
            v_add_u32 v30, v31, v30
            v_lshrrev_b32 v5, 4, v0
            v_and_b32 v4, 15, v0
            v_and_b32 v6, 1, v5
            v_lshlrev_b32 v6, 11, v6
            v_lshrrev_b32 v2, 1, v5
            v_lshlrev_b32 v2, 3, v2
            v_lshrrev_b32 v3, 2, v4
            v_add_u32 v2, v2, v3
            v_lshl_add_u32 v6, v2, 5, v6
            v_and_b32 v3, 3, v4
            v_lshl_add_u32 v6, v3, 3, v6
            s_sub_u32 s40, s3, 5
            s_lshl_b32 s28, s40, 12
            s_add_u32 s28, s28, {XW}
            v_add_u32 v6, s28, v6
            v_mov_b32 v7, 0
            """)
            extra_loads(0)
        if 11 <= k <= 14:
            extra_compute(k - 11)
            if k < 14:
                a("s_nop 3")
                extra_loads(k - 10)
        if k == 14:
            a(f"""
            s_cmp_lg_u32 s3, 6
            s_cbranch_scc1 {l}
            v_add_u32 v2, {XP}, v1
            v_lshlrev_b32 v3, 2, v0
            v_add_u32 v3, {XP + 6144}, v3
            s_nop 15
            """)
            for b in range(6): a(f"ds_write_b128 v2, v[{136+4*b}:{139+4*b}] offset:{b*1024}")
            a("ds_write_b32 v3, v7")
            a("s_waitcnt lgkmcnt(0)")
        if k == 15:
            a(f"""
            s_cmp_lg_u32 s3, 5
            s_cbranch_scc1 {l}
            v_add_u32 v2, {XP}, v1
            v_lshlrev_b32 v3, 2, v0
            v_add_u32 v3, {XP + 6144}, v3
            """)
            for b in range(6): a(f"ds_read_b128 v[{160+4*b}:{163+4*b}], v2 offset:{b*1024}")
            a("ds_read_b32 v184, v3")
            a("s_waitcnt lgkmcnt(0)")
            for r in range(24): a(f"v_add_f32 v{136+r}, v{136+r}, v{160+r}")
            a("v_add_f32 v7, v7, v184")
            pack8(a, 160, 136); pack8(a, 164, 144); pack8(a, 168, 152)
            a(f"""
            s_lshl_b32 s28, s2, 10
            s_add_u32 s29, s28, {KA_OFF}
            buffer_store_dwordx4 v[160:163], v1, s[20:23], s29 offen sc1
            v_and_b32 v2, 31, v0
            v_lshrrev_b32 v3, 5, v0
            v_lshl_add_u32 v3, v3, 4, v2
            v_lshlrev_b32 v3, 4, v3
            s_add_u32 s29, s28, {VA_OFF}
            v_cmp_gt_u32 vcc, 16, v2
            s_and_saveexec_b64 s[62:63], vcc
            buffer_store_dwordx4 v[164:167], v3, s[20:23], s29 offen sc1
            buffer_store_dwordx4 v[168:171], v3, s[20:23], s29 offen offset:512 sc1
            s_mov_b64 exec, s[62:63]
            v_mov_b32 v2, v7
            s_nop 1
            v_permlane32_swap_b32 v2, v7
            s_nop 1
            v_add_f32 v7, v7, v2
            v_cvt_pk_bf16_f32 v7, v7, v7
            v_lshlrev_b32 v7, 16, v7
            v_mul_f32 v7, {f32hex(-LOG2E)}, v7
            v_exp_f32 v7, v7
            s_nop 0
            v_add_f32 v7, 1.0, v7
            v_rcp_f32 v7, v7
            s_nop 0
            v_cvt_pk_bf16_f32 v7, v7, v7
            v_lshlrev_b32 v172, 16, v7
            v_sub_f32 v173, 1.0, v172
            v_cvt_pk_bf16_f32 v173, v173, v173
            v_lshlrev_b32 v173, 16, v173
            v_lshlrev_b32 v3, 3, v0
            s_lshl_b32 s28, s2, 8
            s_add_u32 s28, s28, {G_OFF}
            v_cmp_gt_u32 vcc, 32, v0
            s_and_saveexec_b64 s[62:63], vcc
            buffer_store_dwordx2 v[172:173], v3, s[20:23], s28 offen sc1
            s_mov_b64 exec, s[62:63]
            """)
            signal(a, 32)
        a.label(l)
    epiK = epi_ops(0); epiV = epi_ops(1)
    SIG = 20
    for k in range(NK):
        ps = k >> 3
        for s in range(4):
            u = 4 * k + s
            extra = []
            if s == 2 and k + 1 < NK:
                if k == SIG - 1: vm.q = []; a("s_waitcnt vmcnt(0) lgkmcnt(0)")
                elif ('d', k + 1) not in vm.q: a("s_waitcnt lgkmcnt(0)")
                elif k == 22:
                    a("s_cmp_eq_u32 s3, 7")
                    a("s_cbranch_scc1 k1_w22")
                    a(f"s_waitcnt vmcnt({vm.need({('d', k + 1)})})")
                    a.label("k1_w22")
                    a("s_waitcnt lgkmcnt(0)")
                else: a(f"s_waitcnt vmcnt({vm.need({('d', k + 1)})}) lgkmcnt(0)")
                a("s_barrier")
                if k in (7, 15): st7(a, 5 + (k >> 3)); vm.issue("st") if STAMP else None
                if k >= 17 and not os.environ.get("P0ST"): st7(a, 7 + k - 17); vm.issue("st") if STAMP else None
                if k < 5 and os.environ.get("P0ST"): st7(a, 7 + k, tv=118); vm.issue("st") if STAMP else None
                if k == SIG - 1:
                    a(f"""
                    s_cmp_lg_u32 s3, 0
                    s_cbranch_scc1 k1_nosig
                    v_mov_b32 v3, 0
                    s_mov_b32 s41, 0
                    k1_ip:
                    buffer_load_ubyte v2, v3, s[80:83], s6 offen sc1
                    s_waitcnt vmcnt(0)
                    v_readfirstlane_b32 s29, v2
                    s_cmp_lg_u32 s29, 0
                    s_cbranch_scc1 k1_ipd
                    s_sleep 8
                    s_add_u32 s41, s41, 1
                    s_cmp_lt_u32 s41, 0x100000
                    s_cbranch_scc1 k1_ip
                    k1_ipd:
                    s_lshl_b32 s28, s6, 8
                    s_add_u32 s28, s28, s7
                    s_add_u32 s28, s28, {CNT_OFF + 64*256}
                    v_mov_b32 v2, 1
                    s_mov_b64 exec, 1
                    buffer_store_byte v2, v3, s[20:23], s28 offen sc1
                    s_mov_b64 exec, -1
                    k1_nosig:
                    """)
                if k + 3 < NK: extra = [(o, ("d", k + 3)) for o in dma_ops(k + 3)]
                if k >= 21:
                    a("s_cmp_lg_u32 s3, 7")
                    a(f"s_cbranch_scc1 k1_d{k}")
                    if k == 21:
                        a("""
                        s_mov_b32 s46, 0
                        s_mov_b32 s60, 0
                        s_mov_b32 s61, 0
                        """)
                        task_setup()
                        a("""
                        s_mov_b32 s52, 0
                        s_mov_b32 s53, 0
                        """)
                        need_rb(); c_dma(); c_dma(); c_dma()
                    if k == 22:
                        c_dma(); c_dma()
                    a.label(f"k1_d{k}")
            else:
                a(f"s_waitcnt lgkmcnt({6 if u + 1 < 4*NK else 0})")
            if s == 0:
                TV, TX, TW = [int(x) for x in os.environ.get("TT", "0,4,11").split(",")]
                t0 = touch_ops(0)
                if k == 0: extra = [(o, "t") for o in t0[:-1]]
                if k == TV: extra = extra + [(t0[-1], "t")]
                if k == TX: extra = extra + [(o, "t") for o in touch_ops(1)]
                if k == TW: extra = extra + [(o, "t") for o in touch_ops(2)]
            if s < 2 and 8 <= k < 12:
                i = (k - 8) * 2 + s; extra = extra + [(o, "s") for o in epiK[5*i:5*i+5]]
            if s == 3: extra = carry
            if s == 2: carry = extra[len(extra)//2:]; extra = extra[:len(extra)//2]
            if 16 <= k < 18:
                i = (k - 16) * 4 + s; extra = extra + [(o, "s") for o in epiV[5*i:5*i+5]]
            rq = read_ops(u + 2) if u + 2 < 4 * NK else []
            f = FB + 16 * (u % 3)
            i = 0
            for m in range(2):
                for kb in range(2):
                    acc = ACC[ps] + 16 * (m * 2 + kb)
                    c = f"v[{f+4*kb}:{f+4*kb+3}]"; w = f"v[{f+8+4*m}:{f+11+4*m}]"
                    ci = "0" if (u & 31) == 0 else f"v[{acc}:{acc+15}]"
                    if ps == 1: a(f"{MFMA} v[{acc}:{acc+15}], {c}, {w}, {ci}")
                    else:       a(f"{MFMA} v[{acc}:{acc+15}], {w}, {c}, {ci}")
                    for o in rq[2*i: 2*i+2]: a(o)
                    ne = -(-len(extra) // (4 - i))
                    for o, t in extra[:ne]: emit(o, t)
                    extra = extra[ne:]
                    i += 1
    if os.environ.get("P1PRIO"): a("s_setprio 0")
    if os.environ.get("P2PRIO"):
        a("s_cmp_ge_u32 s3, 4"); a("s_cbranch_scc1 k1_np2"); a("s_setprio 2"); a.label("k1_np2")
    a(f"""
    s_barrier
    s_mov_b32 s28, {f32hex(LOG2E * 128 ** -0.5)}
    s_lshr_b32 s29, s3, 1
    s_lshl_b32 s29, s29, 14
    s_and_b32 s40, s3, 1
    s_lshl_b32 s40, s40, 12
    s_add_u32 s29, s29, s40
    s_add_u32 s29, s29, {QX}
    v_add_u32 v2, s29, v1
    s_nop 7
    """)
    for r in range(64): a(f"v_mul_f32 v{128+r}, s28, v{128+r}")
    n = 0
    for m in range(2):
        for kb in range(2):
            for g in range(2):
                tmp = 32 + 4 * n; n += 1
                pack8(a, tmp, 128 + 16 * (m * 2 + kb) + 8 * g)
                a(f"ds_write_b128 v2, v[{tmp}:{tmp+3}] offset:{kb*8192 + (2*m+g)*1024}")
    a("""
    s_waitcnt lgkmcnt(0)
    s_barrier
    s_cmp_eq_u32 s3, 7
    s_cbranch_scc1 l_task
    s_cmp_ge_u32 s3, 4
    s_cbranch_scc1 k1_side
    """)
    attn_compute(a, task_setup)
    side_workers(a, task_setup, extra_part)
    attn_loader(a, task_setup, c_dma, need_rb)
    phase3_A(a)
    phase3_G(a)
    a.label("k1_end")
    a("s_endpgm")
    return name, f"grid=(256,1,1) block=(512,1,1) lds={RING + 16384}", kernel_desc(name, 256)

def read_flags(a, tmp):
    a(f"""
    v_mov_b32 v{tmp}, {FLAG}
    ds_read_b128 v[{tmp+2}:{tmp+5}], v{tmp}
    s_waitcnt lgkmcnt(0)
    v_or3_b32 v{tmp}, v{tmp+2}, v{tmp+3}, v{tmp+4}
    v_or_b32 v{tmp}, v{tmp}, v{tmp+5}
    s_nop 0
    v_readfirstlane_b32 s28, v{tmp}
    """)

def attn_loader(a, task_setup, c_dma, need_rb):
    a.label("l_task")
    a("s_mov_b32 s58, 0")
    a("s_mov_b32 s57, 0")
    a.label("l_loop")
    a("s_waitcnt vmcnt(0)")
    a("s_barrier")
    a("s_mov_b32 s59, 0")
    need_rb()
    a.label("l_in")
    a(f"""
    s_cmp_eq_u32 s57, 2
    s_cbranch_scc1 l_doa
    s_cmp_lg_u32 s57, 0
    s_cbranch_scc1 l_do
    s_add_u32 s28, s50, 2
    s_lshl_b32 s28, s28, 13
    s_cmp_lt_u32 s52, s28
    s_cbranch_scc1 l_do
    s_add_u32 s28, s28, 16384
    s_cmp_lt_u32 s52, s28
    s_cbranch_scc1 l_skip
    s_mov_b32 s57, 1
    s_mov_b32 s52, 0
    s_cmp_eq_u32 s46, 0
    s_cbranch_scc1 l_do
    s_mov_b32 s57, 2
    s_mov_b32 s56, s53
    """)
    poll(a, 32, 64)
    a(f"""
    s_branch l_doa
    l_skip:
    s_add_u32 s52, s52, 8192
    s_add_u32 s53, s53, {SLOT}
    s_cmp_ge_u32 s53, {RING}
    s_cselect_b32 s53, 0, s53
    s_branch l_nx
    l_do:
    """)
    c_dma()
    a("s_branch l_nx")
    a.label("l_doa")
    def a_chunk():
        for (off, lo) in ((KA_OFF, 0), (VA_OFF, 8192)):
            for g in range(2):
                a(f"s_add_u32 m0, s53, {lo + g*4096}")
                a(f"s_add_u32 s28, s52, {off + g*4096}")
                for i in range(4): a(f"buffer_load_dwordx4 v1, s[20:23], s28 offen offset:{i*1024} sc1 lds")
        a(f"""
        s_add_u32 s52, s52, 8192
        s_add_u32 s53, s53, {SLOT}
        s_cmp_ge_u32 s53, {RING}
        s_cselect_b32 s53, 0, s53
        """)
    a_chunk()
    a("""
    l_nx:
    s_add_u32 s59, s59, 1
    s_cmp_lt_u32 s59, 4
    s_cbranch_scc1 l_in
    s_add_u32 s58, s58, 4
    s_add_u32 s28, s50, 2
    s_cmp_lt_u32 s58, s28
    s_cbranch_scc1 l_loop
    s_cmp_lg_u32 s57, 2
    s_cbranch_scc1 l_e
    """)
    a(f"""
    v_mov_b32 v2, {FLAG + 64}
    v_mov_b32 v4, s56
    v_mov_b32 v5, 0
    ds_write_b64 v2, v[4:5]
    s_waitcnt vmcnt(0) lgkmcnt(0)
    l_e:
    s_barrier
    """)
    read_flags(a, 32)
    a("""
    s_cmp_eq_u32 s28, 0
    s_cbranch_scc1 l_ok
    s_cmp_lg_u32 s60, 0
    s_cbranch_scc1 l_ok
    s_mov_b32 s60, 1
    s_mov_b32 s58, 0
    s_waitcnt vmcnt(0)
    """)
    a.label("l_max")
    a("s_lshl_b32 s52, s58, 13")
    for g in range(2):
        a(f"s_mov_b32 m0, {g*4096}")
        a(f"s_add_u32 s28, s52, {g*4096}")
        for i in range(4): a(f"buffer_load_dwordx4 v1, s[84:87], s28 offen offset:{i*1024} sc1 lds")
    a("""
    s_waitcnt vmcnt(0)
    s_barrier
    s_barrier
    s_add_u32 s58, s58, 1
    s_cmp_lt_u32 s58, s50
    s_cbranch_scc1 l_max
    s_mov_b32 s52, 0
    s_mov_b32 s53, 0
    s_mov_b32 s59, 0
    """)
    a.label("l_pro1")
    c_dma()
    a("""
    s_add_u32 s59, s59, 1
    s_cmp_lt_u32 s59, 5
    s_cbranch_scc1 l_pro1
    s_branch l_task
    """)
    a.label("l_ok")
    a("""
    s_mov_b32 s60, 0
    s_add_u32 s46, s46, 1
    s_cmp_lt_u32 s46, 2
    s_cbranch_scc1 l_nt
    """)
    a_chunk(); a_chunk(); a_chunk()
    a(f"""
    v_mov_b32 v2, {FLAG + 68}
    v_mov_b32 v4, 1
    s_waitcnt vmcnt(0)
    ds_write_b32 v2, v4
    s_branch p3_a
    l_nt:
    """)
    task_setup()
    a("s_branch l_task")

def attn_compute(a, task_setup):
    a(f"""
    s_lshl_b32 s28, s3, 13
    s_add_u32 s28, s28, {QX}
    v_add_u32 v2, s28, v1
    v_and_b32 v3, 31, v0
    v_lshrrev_b32 v4, 5, v0
    v_lshlrev_b32 v18, 2, v4
    v_sub_u32 v18, v3, v18
    s_mov_b32 s46, 0
    s_mov_b32 s60, 0
    s_mov_b32 s61, 0
    """)
    for s in range(8): a(f"ds_read_b128 v[{QF+4*s}:{QF+4*s+3}], v2 offset:{s*1024}")
    for s in range(8): a(f"ds_read_b128 v[{Q2+4*s}:{Q2+4*s+3}], v2 offset:{32768 + s*1024}")
    task_setup()
    a("s_waitcnt lgkmcnt(0)")
    st7(a, 1, tv=28)
    a.label("b_task")
    a("""
    s_lshl_b32 s28, s47, 7
    s_lshl_b32 s29, s3, 5
    s_add_u32 s48, s28, s29
    s_sub_u32 s49, s50, 3
    s_add_u32 s49, s49, s3
    """)
    for r in range(64): a(f"v_mov_b32 v{O_+r}, 0")
    for r in range(4): a(f"v_mov_b32 v{24+r}, 0")
    a(f"""
    s_add_u32 s56, s61, {SLOT}
    s_cmp_ge_u32 s56, {RING}
    s_cselect_b32 s56, 0, s56
    s_mov_b32 s58, 0
    v_add_u32 v20, s61, v1
    """)
    def apply_mask(base):
        a("v_mov_b32 v19, 0xff800000")
        for r in range(16):
            a(f"v_cmp_gt_i32 vcc, {8*(r>>2)+(r&3)}, v18")
            a("s_nop 1")
            a(f"v_cndmask_b32 v{base+r}, v{base+r}, v19, vcc")
    def sm_ops(par):
        S = S_[par]; P = P_[par]
        ops = []
        for r in range(16):
            ops.append(f"v_exp_f32 v{S+r}, v{S+r}")
            if r >= 1: ops.append(f"v_add_f32 v{24+((r-1)&3)}, v{24+((r-1)&3)}, v{S+r-1}")
            if r & 1: ops.append(f"v_cvt_pk_bf16_f32 v{P+(r>>1)}, v{S+r-1}, v{S+r}")
        ops.append(f"v_add_f32 v27, v27, v{S+15}")
        return ops
    def cost(o): return 8 if o.startswith("v_exp") else 4
    def iteration(par, doQK, doSM, doPV, prefetched, extra=(), cinit=None, last=()):
        M = (list(range(8)) if doQK else []) + (list(range(8, 16)) if doPV else [])
        seq = M + (list(range(16, 20)) if doQK else [])
        book = [f"v_add_u32 v{20+(par^1)}, s56, v1",
                f"s_add_u32 s56, s56, {SLOT}",
                f"s_cmp_ge_u32 s56, {RING}",
                "s_cselect_b32 s56, 0, s56"] + list(extra)
        fill = sm_ops(par ^ 1) if doSM else []
        nM = len(M)
        if nM == 0:
            for o in book + fill + list(last): a(o)
            return
        def rdi(idx):
            j = seq[idx]; f = FR + 4 * (idx & 7)
            if j < 16: return f"ds_read_b128 v[{f}:{f+3}], v{20+par} offset:{j*1024}"
            return f"ds_read_b128 v[{f}:{f+3}], v{20+(par^1)} offset:{(j-16)*1024}"
        def mfi(idx):
            n = seq[idx]; f = FR + 4 * (idx & 7)
            if n < 8:
                S = S_[par]
                c = (cinit or f"v[{NEGM}:{NEGM+15}]") if n == 0 else f"v[{S}:{S+15}]"
                return f"{MFMA} v[{S}:{S+15}], v[{f}:{f+3}], v[{QF+4*n}:{QF+4*n+3}], {c}"
            k = n - 8; ks = k >> 2; b = k & 3
            P = P_[par]
            return f"{MFMA} v[{O_+16*b}:{O_+16*b+15}], v[{f}:{f+3}], v[{P+4*ks}:{P+4*ks+3}], v[{O_+16*b}:{O_+16*b+15}]"
        if not (prefetched and doQK):
            for idx in range(4): a(rdi(idx))
        nv = nM - nM // 4
        tot = sum(cost(o) for o in fill)
        done = 0; gi = 0
        for p in range(nM):
            if p % 4 == 0: a("s_waitcnt lgkmcnt(0)")
            a(mfi(p))
            if p == nM - 1:
                for o in last: a(o)
            if p % 4 == 0:
                if p == 0:
                    for o in book: a(o)
                for idx in range(p + 4, min(p + 8, len(seq))): a(rdi(idx))
            else:
                gi += 1
                tgt = tot * gi / nv
                while fill and (done + cost(fill[0]) / 2 <= tgt or gi == nv):
                    done += cost(fill[0]); a(fill.pop(0))
        assert not fill
    a.label("b_loop")
    a("""
    s_and_b32 s28, s58, 3
    s_cmp_lg_u32 s28, 0
    s_cbranch_scc1 b_slow2
    s_cmp_lt_u32 s58, 4
    s_cbranch_scc1 b_slow
    s_add_u32 s28, s58, 8
    s_cmp_gt_u32 s28, s50
    s_cbranch_scc1 b_slow
    s_sub_u32 s59, s50, 4
    """)
    a.label("b_fast")
    a("s_barrier")
    iteration(0, True, True, True, True)
    iteration(1, True, True, True, True)
    iteration(0, True, True, True, True)
    iteration(1, True, True, True, True, ["s_add_u32 s58, s58, 4"], last=["s_cmp_lt_u32 s58, s59"])
    a("s_cbranch_scc1 b_fast")
    a.label("b_slow")
    a("s_barrier")
    a.label("b_slow2")
    for par in (0, 1):
        lnext = a.newlabel("b_next"); lns = a.newlabel("b_nonsteady"); ld = a.newlabel("b_nodiag")
        a("s_add_u32 s28, s58, 1")
        a("s_cmp_lg_u32 s28, s49")
        a(f"s_cbranch_scc1 {ld}")
        apply_mask(NEGM)
        a.label(ld)
        a("s_cmp_lt_u32 s58, 2")
        a(f"s_cbranch_scc1 {lns}")
        a("s_cmp_ge_u32 s58, s49")
        a(f"s_cbranch_scc1 {lns}")
        iteration(par, True, True, True, True)
        a(f"s_branch {lnext}")
        a.label(lns)
        l_g = a.newlabel("b_ge"); l_pv = a.newlabel("b_pv"); l_none = a.newlabel("b_none"); l_sm = a.newlabel("b_sm")
        a("s_cmp_ge_u32 s58, s49")
        a(f"s_cbranch_scc1 {l_g}")
        if par == 0:
            lr = a.newlabel("b_g0raw")
            a("s_cmp_eq_u32 s60, 0")
            a(f"s_cbranch_scc1 {lr}")
            iteration(0, True, False, False, False)
            a(f"s_branch {lnext}")
            a.label(lr)
            iteration(0, True, False, False, False, cinit="0")
            a("s_nop 15")
            lm = a.newlabel("b_nomask0")
            a("s_cmp_lg_u32 s49, 1")
            a(f"s_cbranch_scc1 {lm}")
            apply_mask(S_[0])
            a.label(lm)
            S = S_[0]
            a(f"v_max3_f32 v22, v{S}, v{S+1}, v{S+2}")
            for r in range(3, 15, 2): a(f"v_max3_f32 v22, v22, v{S+r}, v{S+r+1}")
            a(f"v_max_f32 v22, v22, v{S+15}")
            a("""
            v_mov_b32 v19, v22
            s_nop 1
            v_permlane32_swap_b32 v19, v22
            s_nop 1
            v_max_f32 v22, v22, v19
            """)
            for r in range(16): a(f"v_sub_f32 v{S+r}, v{S+r}, v22")
            for r in range(16): a(f"v_sub_f32 v{NEGM+r}, 0, v22")
        else:
            iteration(1, True, True, False, True)
        a(f"s_branch {lnext}")
        a.label(l_g)
        a("s_cmp_eq_u32 s58, s49")
        a(f"s_cbranch_scc0 {l_pv}")
        a("s_cmp_lt_u32 s58, 2")
        a(f"s_cbranch_scc1 {l_sm}")
        iteration(par, False, True, True, False)
        a(f"s_branch {lnext}")
        a.label(l_sm)
        iteration(par, False, True, False, False)
        a(f"s_branch {lnext}")
        a.label(l_pv)
        a("s_add_u32 s28, s49, 1")
        a("s_cmp_eq_u32 s58, s28")
        a(f"s_cbranch_scc0 {l_none}")
        a("s_nop 1")
        iteration(par, False, False, True, False)
        a(f"s_branch {lnext}")
        a.label(l_none)
        iteration(par, False, False, False, False)
        a.label(lnext)
        a("s_add_u32 s58, s58, 1")
    a("s_add_u32 s28, s50, 2")
    a("s_cmp_lt_u32 s58, s28")
    a("s_cbranch_scc1 b_loop")
    if STAMP:
        a("s_cmp_lg_u32 s46, 0"); a("s_cbranch_scc1 b_st2"); st7(a, 2, tv=28); a.label("b_st2")
    a(f"""
    s_nop 7
    v_add_f32 v24, v24, v25
    v_add_f32 v26, v26, v27
    v_add_f32 v24, v24, v26
    v_mov_b32 v19, v24
    s_nop 1
    v_permlane32_swap_b32 v19, v24
    s_nop 1
    v_add_f32 v24, v24, v19
    v_rcp_f32 v26, v24
    v_mov_b32 v19, 0
    """)
    for r in range(64): a(f"v_fma_f32 v19, v{O_+r}, 0, v19")
    a(f"""
    s_mov_b32 s28, {f32hex(2.0**THR)}
    v_cmp_nle_f32 vcc, v24, s28
    v_cmp_u_f32 s[62:63], v19, v19
    s_or_b64 s[62:63], s[62:63], vcc
    s_cmp_lg_u64 s[62:63], 0
    s_cselect_b32 s28, 1, 0
    v_mov_b32 v19, s28
    s_lshl_b32 s29, s3, 2
    s_lshl_b32 s40, s46, 4
    s_add_u32 s29, s29, {FLAG}
    v_mov_b32 v22, s29
    ds_write_b32 v22, v19
    s_waitcnt lgkmcnt(0)
    s_barrier
    """)
    read_flags(a, 32)
    a("""
    s_cmp_eq_u32 s28, 0
    s_cbranch_scc1 b_ok
    s_cmp_lg_u32 s60, 0
    s_cbranch_scc1 b_ok
    s_mov_b32 s60, 1
    s_mov_b32 s58, 0
    s_mov_b32 s61, 0
    v_mov_b32 v22, 0xff800000
    """)
    a.label("b_maxloop")
    a("""
    s_barrier
    s_cmp_ge_u32 s58, s49
    s_cbranch_scc1 b_maxskip
    """)
    for n in range(8): a(f"ds_read_b128 v[{FR+4*n}:{FR+4*n+3}], v1 offset:{n*1024}")
    a("s_waitcnt lgkmcnt(0)")
    for n in range(8):
        S = S_[0]
        c = "0" if n == 0 else f"v[{S}:{S+15}]"
        a(f"{MFMA} v[{S}:{S+15}], v[{FR+4*n}:{FR+4*n+3}], v[{QF+4*n}:{QF+4*n+3}], {c}")
    a("""
    s_nop 15
    s_add_u32 s28, s58, 1
    s_cmp_lg_u32 s28, s49
    s_cbranch_scc1 b_maxnomask
    """)
    apply_mask(S_[0])
    a.label("b_maxnomask")
    for r in range(0, 16, 2): a(f"v_max3_f32 v22, v22, v{S_[0]+r}, v{S_[0]+r+1}")
    a.label("b_maxskip")
    a("""
    s_barrier
    s_add_u32 s58, s58, 1
    s_cmp_lt_u32 s58, s50
    s_cbranch_scc1 b_maxloop
    v_mov_b32 v19, v22
    s_nop 1
    v_permlane32_swap_b32 v19, v22
    s_nop 1
    v_max_f32 v22, v22, v19
    """)
    for r in range(16): a(f"v_sub_f32 v{NEGM+r}, 0, v22")
    a("s_branch b_task")
    a.label("b_ok")
    a(f"""
    s_mov_b32 s60, 0
    s_add_u32 s46, s46, 1
    s_add_u32 s61, s56, {SLOT}
    s_cmp_ge_u32 s61, {RING}
    s_cselect_b32 s61, 0, s61
    """)
    task_setup()
    for r in range(64): a(f"v_mul_f32 v{O_+r}, v26, v{O_+r}")
    a(f"""
    s_lshr_b32 s28, s48, 5
    s_mul_i32 s28, s28, {ZF_RG}
    s_lshl_b32 s29, s6, 13
    s_add_u32 s28, s28, s29
    s_add_u32 s28, s28, {ZF_OFF}
    s_add_u32 s29, s28, 4096
    """)
    for kk in range(8):
        t = FR + 4 * kk
        pack8(a, t, O_ + 8 * kk)
        a(f"buffer_store_dwordx4 v[{t}:{t+3}], v1, s[20:23], s{28 + (kk >> 2)} offen offset:{(kk & 3) * 1024} sc1")
    for r in range(32): a(f"v_mov_b32 v{QF+r}, v{Q2+r}")
    a("""
    s_cmp_lt_u32 s46, 2
    s_cbranch_scc1 b_task
    """)
    st7(a, 3, tv=28)
    a(f"""
    s_waitcnt vmcnt(0)
    v_mov_b32 v2, {FLAG + 32}
    v_mov_b32 v3, 1
    s_mov_b64 exec, 1
    ds_add_rtn_u32 v4, v2, v3
    s_mov_b64 exec, -1
    s_waitcnt lgkmcnt(0)
    v_readfirstlane_b32 s28, v4
    s_cmp_lg_u32 s28, 3
    s_cbranch_scc1 p3_g
    """)
    a(f"""
    s_lshl_b32 s40, s7, 8
    s_add_u32 s40, s40, {CNT_OFF}
    s_sub_u32 s49, 15, s7
    s_lshl_b32 s49, s49, 8
    s_add_u32 s49, s49, {CNT_OFF}
    s_lshl_b32 s29, 1, s6
    v_mov_b32 v2, s29
    v_mov_b32 v3, 0
    s_mov_b64 exec, 1
    buffer_atomic_or v2, v3, s[20:23], s40 offen sc1
    buffer_atomic_or v2, v3, s[20:23], s49 offen sc1
    s_mov_b64 exec, -1
    s_branch p3_g
    """)

def cidx(a, base, sreg=None):
    if sreg is None: a(f"s_mov_b32 s40, {CNT_OFF + base*256}")
    else:
        a(f"s_lshl_b32 s40, {sreg}, 8"); a(f"s_add_u32 s40, s40, {CNT_OFF + base*256}")

def signal(a, base, sreg=None, wait=True):
    if wait: a("s_waitcnt vmcnt(0)")
    cidx(a, base, sreg)
    a(f"""
    v_mov_b32 v2, 1
    v_mov_b32 v3, 0
    s_mov_b64 exec, 1
    buffer_atomic_add v2, v3, s[20:23], s40 offen sc1
    s_mov_b64 exec, -1
    """)

def poll(a, base, target, slp=8, sreg=None, dbg=False):
    l1 = a.newlabel("poll"); l2 = a.newlabel("polled")
    if dbg: a(f"s_mov_b32 s40, {base}")
    else: cidx(a, base, sreg)
    a(f"""
    v_mov_b32 v3, 0
    s_mov_b32 s41, 0
    {l1}:
    buffer_load_dword v2, v3, s[{80 if dbg else 20}:{83 if dbg else 23}], s40 offen sc1
    s_waitcnt vmcnt(0)
    v_readfirstlane_b32 s29, v2
    s_cmp_ge_u32 s29, {target}
    s_cbranch_scc1 {l2}
    s_sleep {slp}
    s_add_u32 s41, s41, 1
    s_cmp_lt_u32 s41, 0x100000
    s_cbranch_scc1 {l1}
    {l2}:
    """)

def amap(a):
    a("""
    s_and_b32 s28, s2, 7
    s_lshl_b32 s28, s28, 1
    s_lshr_b32 s29, s2, 7
    s_add_u32 s66, s28, s29
    s_lshr_b32 s67, s2, 3
    s_and_b32 s67, s67, 15
    """)

def side_workers(a, task_setup, extra_part):
    a.label("k1_side")
    amap(a)
    WB = MISC + 8192 + 256
    a(f"""
    s_waitcnt vmcnt(0)
    s_mov_b32 s46, 0
    s_mov_b32 s44, 0
    s_sub_u32 s45, s3, 4
    v_and_b32 v4, 31, v0
    v_lshrrev_b32 v5, 5, v0
    v_lshlrev_b32 v12, 10, v4
    v_lshl_add_u32 v12, v5, 4, v12
    s_lshl_b32 s28, s66, 2
    s_add_u32 s28, s28, s45
    s_lshl_b32 s48, s28, 15
    s_lshl_b32 s49, s66, 2
    s_add_u32 s49, s49, 3
    s_lshl_b32 s49, s49, 15
    v_bfe_u32 v6, v0, 2, 2
    v_lshl_add_u32 v13, v5, 3, v6
    v_lshlrev_b32 v13, 6, v13
    v_lshl_add_u32 v14, v5, 2, v6
    v_lshlrev_b32 v14, 6, v14
    v_bfe_u32 v6, v0, 4, 1
    v_lshlrev_b32 v6, 5, v6
    v_and_b32 v7, 3, v0
    v_lshl_add_u32 v6, v7, 3, v6
    v_add_u32 v13, v6, v13
    v_add_u32 v13, {MISC}, v13
    v_add_u32 v14, v6, v14
    s_lshl_b32 s28, s45, 10
    s_add_u32 s51, s28, {WB}
    v_add_u32 v14, s51, v14
    v_lshrrev_b32 v15, 2, v0
    v_lshlrev_b32 v15, 10, v15
    v_lshl_add_u32 v15, v7, 4, v15
    s_mov_b32 s92, s58
    s_mov_b32 s93, s59
    s_mov_b32 s94, {512*1024}
    s_mov_b32 s95, 0x00020000
    s_mul_i32 s52, s2, 18
    s_mul_i32 s28, s45, 6
    s_add_u32 s52, s52, s28
    s_mov_b32 s19, 0x00020000
    """)
    task_setup()
    a("s_cmp_lg_u32 s3, 5")
    a("s_cbranch_scc1 sw_ni")
    a("""
    v_mov_b32 v3, 0
    s_mov_b32 s41, 0
    sw_ip:
    buffer_load_dword v2, v3, s[80:83], 0 offen sc1
    s_waitcnt vmcnt(0)
    v_readfirstlane_b32 s29, v2
    s_and_b32 s29, s29, 1
    s_cbranch_scc1 sw_ipd
    s_sleep 8
    s_add_u32 s41, s41, 1
    s_cmp_lt_u32 s41, 0x100000
    s_cbranch_scc1 sw_ip
    sw_ipd:
    """)
    a(f"""
    v_mov_b32 v2, {FLAG + 32}
    v_mov_b32 v3, 0
    ds_write_b32 v2, v3
    s_waitcnt lgkmcnt(0)
    """)
    a.label("sw_ni")
    a("s_cmp_ge_u32 s2, 64")
    a("s_cbranch_scc1 sw_nox")
    for k in range(10, 16):
        a("s_barrier")
        l = a.newlabel("sw_x")
        a("s_cmp_eq_u32 s3, 4")
        a(f"s_cbranch_scc1 {l}")
        extra_part(k)
        a.label(l)
    a(f"""
    s_mov_b32 s92, s58
    s_mov_b32 s93, s59
    s_mov_b32 s94, {512*1024}
    s_mov_b32 s95, 0x00020000
    sw_nox:
    """)
    QA0 = 128; QA1 = 144; XA = 64; XB = 80; WQF = 96
    for j in range(10):
        a("s_barrier")
        if j >= 1:
            a("s_waitcnt vmcnt(0)")
        if 1 <= j <= 8:
            p = j - 1
            for s in range(4):
                a(f"ds_read_b64_tr_b16 v[{WQF+4*s}:{WQF+4*s+1}], v13 offset:{(p&1)*4096 + s*1024}")
                a(f"ds_read_b64_tr_b16 v[{WQF+4*s+2}:{WQF+4*s+3}], v13 offset:{(p&1)*4096 + s*1024 + 256}")
        if 1 <= j <= 6:
            a("ds_read_b64_tr_b16 v[112:113], v14")
            a("ds_read_b64_tr_b16 v[114:115], v14 offset:512")
        if j >= 1: a("s_waitcnt lgkmcnt(0)")
        if 1 <= j <= 6:
            a(f"""
            s_lshl_b32 s28, s52, 10
            s_add_u32 s28, s28, {WF_OFF}
            buffer_store_dwordx4 v[112:115], v1, s[20:23], s28 offen sc1
            s_add_u32 s52, s52, 1
            """)
        if 1 <= j <= 8:
            for s in range(4):
                c = "0" if (j == 1 and s == 0) else f"v[{QA0}:{QA0+15}]"
                a(f"{MFMA} v[{QA0}:{QA0+15}], v[{WQF+4*s}:{WQF+4*s+3}], v[{XA+4*s}:{XA+4*s+3}], {c}")
            l = a.newlabel("sw_n2")
            a("s_cmp_lg_u32 s3, 4")
            a(f"s_cbranch_scc1 {l}")
            for s in range(4):
                c = "0" if (j == 1 and s == 0) else f"v[{QA1}:{QA1+15}]"
                a(f"{MFMA} v[{QA1}:{QA1+15}], v[{WQF+4*s}:{WQF+4*s+3}], v[{XB+4*s}:{XB+4*s+3}], {c}")
            a.label(l)
        if j <= 7:
            for s in range(4): a(f"buffer_load_dwordx4 v[{XA+4*s}:{XA+4*s+3}], v12, s[76:79], s48 offen offset:{j*128 + s*32}")
            l = a.newlabel("sw_n3"); l2 = a.newlabel("sw_n4")
            a("s_cmp_lg_u32 s3, 4")
            a(f"s_cbranch_scc1 {l}")
            for s in range(4): a(f"buffer_load_dwordx4 v[{XB+4*s}:{XB+4*s+3}], v12, s[76:79], s49 offen offset:{j*128 + s*32}")
            a.label(l)
            a("s_cmp_lg_u32 s3, 6")
            a(f"s_cbranch_scc1 {l2}")
            a(f"s_mov_b32 m0, {MISC + (j&1)*4096}")
            a("s_lshl_b32 s29, s67, 6")
            for i in range(4):
                a(f"s_add_u32 s28, s29, {j*65536 + i*16384 - i*1024}")
                a(f"buffer_load_dwordx4 v15, s[92:95], s28 offen offset:{i*1024} lds")
            a.label(l2)
        if j <= 5:
            a(f"""
            s_lshr_b32 s28, s52, 4
            s_and_b32 s29, s52, 15
            s_lshl_b32 s29, s29, 6
            s_cmp_lt_u32 s28, 256
            s_cselect_b32 s16, s56, s60
            s_cselect_b32 s17, s57, s61
            s_cselect_b32 s18, {4*MB}, s94
            s_and_b32 s28, s28, 255
            s_lshl_b32 s28, s28, 14
            s_add_u32 s28, s28, s29
            s_mov_b32 m0, s51
            s_nop 0
            buffer_load_dwordx4 v15, s[16:19], s28 offen lds
            """)
        if j == 7: pass
        if j == 8:
            l = a.newlabel("sw_wf")
            a("s_cmp_lg_u32 s3, 5")
            a(f"s_cbranch_scc1 {l}")
            signal(a, 33, wait=False)
            a.label(l)
        if j == 9:
            a(f"s_mov_b32 s28, {f32hex(LOG2E * 0.25)}")
            for r in range(32): a(f"v_mul_f32 v{QA0+r}, s28, v{QA0+r}")
            for i in range(4): pack8(a, 64 + 4 * i, QA0 + 8 * i)
            a(f"""
            s_lshl_b32 s28, s2, 13
            s_lshl_b32 s29, s45, 11
            s_add_u32 s29, s29, s28
            s_add_u32 s29, s29, {QA_OFF}
            buffer_store_dwordx4 v[64:67], v1, s[20:23], s29 offen sc1
            buffer_store_dwordx4 v[68:71], v1, s[20:23], s29 offen offset:1024 sc1
            s_cmp_lg_u32 s3, 4
            s_cbranch_scc1 sw_q3
            s_add_u32 s29, s28, {QA_OFF + 6144}
            buffer_store_dwordx4 v[72:75], v1, s[20:23], s29 offen sc1
            buffer_store_dwordx4 v[76:79], v1, s[20:23], s29 offen offset:1024 sc1
            sw_q3:
            s_waitcnt vmcnt(0)
            """)
        if j <= 7:
            l = a.newlabel("sw_n5")
            a("s_cmp_lg_u32 s3, 6")
            a(f"s_cbranch_scc1 {l}")
            a("s_waitcnt vmcnt(0)")
            a.label(l)
    a("""
    s_cmp_ge_u32 s2, 64
    s_cselect_b32 s58, 40, 64
    s_branch sw_chk
    """)
    a.label("sw_task")
    a("s_mov_b32 s58, 0")
    a.label("sw_loop")
    a("s_barrier")
    a("s_add_u32 s58, s58, 4")
    a.label("sw_chk")
    a("""
    s_add_u32 s28, s50, 2
    s_cmp_lt_u32 s58, s28
    s_cbranch_scc1 sw_loop
    s_barrier
    """)
    read_flags(a, 32)
    a("""
    s_cmp_eq_u32 s28, 0
    s_cbranch_scc1 sw_ok
    s_cmp_lg_u32 s44, 0
    s_cbranch_scc1 sw_ok
    s_mov_b32 s44, 1
    s_mov_b32 s58, 0
    sw_max:
    s_barrier
    s_barrier
    s_add_u32 s58, s58, 1
    s_cmp_lt_u32 s58, s50
    s_cbranch_scc1 sw_max
    s_branch sw_task
    sw_ok:
    s_mov_b32 s44, 0
    s_add_u32 s46, s46, 1
    s_cmp_ge_u32 s46, 2
    s_cbranch_scc1 p3_a
    """)
    task_setup()
    a("s_branch sw_task")

def phase3_A(a):
    AQ = 8; ANEG = (32, 48); AO = (64, 80); AS = (96, 112); AP = (16, 24); AKV = 128
    a.label("p3_a")
    amap(a)
    a("s_sub_u32 s45, s3, 4")
    a(f"""
    v_mov_b32 v2, {FLAG + 64}
    ds_read_b32 v4, v2
    s_waitcnt lgkmcnt(0)
    v_readfirstlane_b32 s50, v4
    """)
    a(f"""
    s_lshl_b32 s28, s2, 13
    s_lshl_b32 s29, s45, 11
    s_add_u32 s29, s29, s28
    s_add_u32 s29, s29, {QA_OFF}
    buffer_load_dwordx4 v[{AQ}:{AQ+3}], v1, s[20:23], s29 offen sc1
    buffer_load_dwordx4 v[{AQ+4}:{AQ+7}], v1, s[20:23], s29 offen offset:1024 sc1
    s_lshl_b32 s48, s66, 7
    s_lshl_b32 s29, s45, 5
    s_add_u32 s48, s48, s29
    v_and_b32 v3, 31, v0
    v_lshrrev_b32 v4, 5, v0
    v_add_u32 v2, s48, v3
    v_lshlrev_b32 v2, 3, v2
    s_mov_b32 s28, {G_OFF}
    buffer_load_dword v160, v2, s[20:23], s28 offen sc1
    v_lshl_add_u32 v7, v4, 4, v3
    v_lshlrev_b32 v7, 4, v7
    v_add_u32 v7, 0x2000, v7
    v_mov_b32 v2, 0x3f803f80
    v_cmp_eq_u32 vcc, 16, v3
    s_nop 1
    v_cndmask_b32 v2, 0, v2, vcc
    v_cmp_gt_u32 s[62:63], 16, v3
    s_mov_b32 s60, 0
    """)
    for st in range(2):
        for r in range(8): a(f"v_mov_b32 v{AKV+12*st+4+r}, v2")
    a("s_waitcnt vmcnt(0)")
    st7(a, 12, tv=250)
    a("s_setprio 3")
    a.label("p3a_start")
    a(f"""
    v_add_u32 v5, s50, v1
    v_add_u32 v6, s50, v7
    s_add_u32 s51, s50, {SLOT}
    s_cmp_ge_u32 s51, {RING}
    s_cselect_b32 s51, 0, s51
    v_add_u32 v164, s51, v1
    v_add_u32 v165, s51, v7
    ds_read_b128 v[{AKV+12}:{AKV+15}], v5
    """)
    def stage_reads(j, stg):
        f = AKV + 12 * stg
        k = f"v5 offset:{(j+1)*1024}" if j < 7 else f"v164 offset:{(j-7)*1024}"
        vv, vo = ("v6", j * 1024) if j < 8 else ("v165", 0)
        return [f"ds_read_b128 v[{f}:{f+3}], {k}",
                "s_mov_b64 exec, s[62:63]",
                f"ds_read_b128 v[{f+4}:{f+7}], {vv} offset:{vo}",
                f"ds_read_b128 v[{f+8}:{f+11}], {vv} offset:{vo + 512}",
                "s_mov_b64 exec, -1"]
    for o in stage_reads(0, 0): a(o)
    for X in range(2):
        for r in range(16): a(f"v_mov_b32 v{AO[X]+r}, 0")
    a("s_waitcnt lgkmcnt(3)")
    K0 = AKV + 12
    a("s_cmp_eq_u32 s60, 0")
    a("s_cbranch_scc1 p3a_raw")
    for X in range(2):
        a(f"{MFMA} v[{AS[X]}:{AS[X]+15}], v[{K0}:{K0+3}], v[{AQ+4*X}:{AQ+4*X+3}], v[{ANEG[X]}:{ANEG[X]+15}]")
    a("s_nop 15")
    a("s_branch p3a_go")
    a.label("p3a_raw")
    for X in range(2):
        a(f"{MFMA} v[{AS[X]}:{AS[X]+15}], v[{K0}:{K0+3}], v[{AQ+4*X}:{AQ+4*X+3}], 0")
    a("s_nop 15")
    for X in range(2):
        S = AS[X]
        a(f"v_max3_f32 v2, v{S}, v{S+1}, v{S+2}")
        for r in range(3, 15, 2): a(f"v_max3_f32 v2, v2, v{S+r}, v{S+r+1}")
        a(f"v_max_f32 v2, v2, v{S+15}")
        a("""
        v_mov_b32 v161, v2
        s_nop 1
        v_permlane32_swap_b32 v161, v2
        s_nop 1
        v_max_f32 v2, v2, v161
        """)
        for r in range(16): a(f"v_sub_f32 v{S+r}, v{S+r}, v2")
        for r in range(16): a(f"v_sub_f32 v{ANEG[X]+r}, 0, v2")
    a.label("p3a_go")
    a("s_mov_b32 s52, 0")
    def valu(X):
        S = AS[X]; P = AP[X]
        ops = []
        for r in range(16):
            ops.append(f"v_exp_f32 v{S+r}, v{S+r}")
            if r >= 2 and (r & 1) == 0: ops.append(f"v_cvt_pk_bf16_f32 v{P+(r>>1)-1}, v{S+r-2}, v{S+r-1}")
        ops.append("s_nop 0")
        ops.append(f"v_cvt_pk_bf16_f32 v{P+7}, v{S+14}, v{S+15}")
        return ops
    def phase(X, f, extra=(), grp=()):
        Y = X ^ 1
        ops = valu(X)
        m = [f"{MFMA} v[{AS[Y]}:{AS[Y]+15}], v[{f}:{f+3}], v[{AQ+4*Y}:{AQ+4*Y+3}], v[{ANEG[Y]}:{ANEG[Y]+15}]",
             f"{MFMA} v[{AO[Y]}:{AO[Y]+15}], v[{f+4}:{f+7}], v[{AP[Y]}:{AP[Y]+3}], v[{AO[Y]}:{AO[Y]+15}]",
             f"{MFMA} v[{AO[Y]}:{AO[Y]+15}], v[{f+8}:{f+11}], v[{AP[Y]+4}:{AP[Y]+7}], v[{AO[Y]}:{AO[Y]+15}]"]
        extra = list(extra)
        for i, o in enumerate(ops):
            if i == 0:
                a(m[0])
                for g in grp: a(g)
            if i == 5: a(m[1])
            if i == 11: a(m[2])
            a(o)
            if i >= 1 and extra: a(extra.pop(0))
    for o in valu(0): a(o)
    a.label("p3a_loop")
    a(f"""
    s_cmp_lg_u32 s52, 4
    s_cbranch_scc1 p3a_nf
    v_mov_b32 v2, {FLAG + 68}
    s_mov_b32 s41, 0
    p3a_fw:
    ds_read_b32 v4, v2
    s_waitcnt lgkmcnt(0)
    v_readfirstlane_b32 s29, v4
    s_cmp_lg_u32 s29, 0
    s_cbranch_scc1 p3a_nf
    s_sleep 2
    s_add_u32 s41, s41, 1
    s_cmp_lt_u32 s41, 0x1000000
    s_cbranch_scc1 p3a_fw
    p3a_nf:
    """)
    for j in range(8):
        stg = j & 1
        f = AKV + 12 * stg
        a("s_waitcnt lgkmcnt(0)")
        phase(1, f, grp=stage_reads(j + 1, stg ^ 1))
        ex = []
        if j == 7: ex = ["v_mov_b32 v5, v164", "v_mov_b32 v6, v165", f"s_add_u32 s51, s51, {SLOT}", f"s_cmp_ge_u32 s51, {RING}", "s_cselect_b32 s51, 0, s51",
                         "v_add_u32 v164, s51, v1", "v_add_u32 v165, s51, v7", "s_add_u32 s52, s52, 1", "s_cmp_lt_u32 s52, 8"]
        phase(0, f, extra=ex)
    a("s_cbranch_scc1 p3a_loop")
    a(f"""
    s_waitcnt lgkmcnt(0)
    s_nop 15
    v_lshlrev_b32 v5, 2, v3
    ds_bpermute_b32 v6, v5, v{AO[0]+8}
    ds_bpermute_b32 v161, v5, v{AO[1]+8}
    v_mov_b32 v4, 0
    """)
    for X in range(2):
        for r in range(8): a(f"v_fma_f32 v4, v{AO[X]+r}, 0, v4")
    a(f"""
    s_mov_b32 s28, {f32hex(2.0**THR)}
    s_waitcnt lgkmcnt(0)
    v_cmp_nle_f32 vcc, v6, s28
    v_cmp_nle_f32 s[56:57], v161, s28
    s_or_b64 s[56:57], s[56:57], vcc
    v_cmp_u_f32 vcc, v4, v4
    s_or_b64 s[56:57], s[56:57], vcc
    s_cmp_eq_u64 s[56:57], 0
    s_cbranch_scc1 p3a_ok
    s_cmp_lg_u32 s60, 0
    s_cbranch_scc1 p3a_ok
    s_mov_b32 s60, 1
    s_mov_b32 s52, 0
    s_mov_b32 s51, s50
    v_mov_b32 v162, 0xff800000
    v_mov_b32 v163, 0xff800000
    p3a_max:
    s_and_b32 s28, s52, 7
    s_lshl_b32 s29, s28, 10
    s_add_u32 s29, s29, s51
    v_add_u32 v5, s29, v1
    ds_read_b128 v[{AKV}:{AKV+3}], v5
    s_add_u32 s29, s51, {SLOT}
    s_cmp_ge_u32 s29, {RING}
    s_cselect_b32 s29, 0, s29
    s_cmp_eq_u32 s28, 7
    s_cselect_b32 s51, s29, s51
    s_waitcnt lgkmcnt(0)
    """)
    for X in range(2):
        a(f"{MFMA} v[{AS[X]}:{AS[X]+15}], v[{AKV}:{AKV+3}], v[{AQ+4*X}:{AQ+4*X+3}], 0")
    a("s_nop 15")
    for X in range(2):
        for r in range(0, 16, 2): a(f"v_max3_f32 v{162+X}, v{162+X}, v{AS[X]+r}, v{AS[X]+r+1}")
    a("""
    s_add_u32 s52, s52, 1
    s_cmp_lt_u32 s52, 64
    s_cbranch_scc1 p3a_max
    """)
    for X in range(2):
        a(f"""
        v_mov_b32 v5, v{162+X}
        s_nop 1
        v_permlane32_swap_b32 v5, v{162+X}
        s_nop 1
        v_max_f32 v{162+X}, v{162+X}, v5
        """)
        for r in range(16): a(f"v_sub_f32 v{ANEG[X]+r}, 0, v{162+X}")
    a("s_branch p3a_start")
    a.label("p3a_ok")
    a(f"""
    v_rcp_f32 v6, v6
    v_rcp_f32 v161, v161
    s_lshr_b32 s28, s48, 5
    s_mul_i32 s28, s28, {ZF_RG}
    s_lshl_b32 s29, s67, 11
    s_add_u32 s28, s28, s29
    s_add_u32 s28, s28, {ZF_OFF + 256*1024}
    v_mul_f32 v6, v6, v160
    v_mul_f32 v161, v161, v160
    """)
    for X in range(2):
        for r in range(8): a(f"v_mul_f32 v{AO[X]+r}, v{(6, 161)[X]}, v{AO[X]+r}")
        pack8(a, AP[X], AO[X])
        a(f"buffer_store_dwordx4 v[{AP[X]}:{AP[X]+3}], v1, s[20:23], s28 offen offset:{X*1024} sc1")
    signal(a, 16, "s66")
    st7(a, 13, tv=250)
    a("s_endpgm")

def phase3_G(a):
    ACC = 192; RG = 32
    a.label("p3_g")
    a("s_setprio 0")
    amap(a)
    srd(a, 16, 74, 2*MB)
    a(f"""
    s_and_b32 s28, s2, 7
    s_lshl_b32 s28, s28, 2
    s_lshr_b32 s29, s2, 6
    s_add_u32 s6, s28, s29
    s_lshr_b32 s7, s2, 3
    s_and_b32 s7, s7, 7
    s_mul_i32 s44, s6, {2*ZF_RG}
    s_lshl_b32 s28, s3, 11
    s_add_u32 s44, s44, s28
    s_add_u32 s44, s44, {ZF_OFF}
    s_add_u32 s45, s44, {ZF_RG}
    s_lshl_b32 s46, s3, 15
    s_lshl_b32 s28, s7, 11
    s_add_u32 s46, s46, s28
    s_add_u32 s46, s46, {WF_OFF}
    s_add_u32 s47, s46, 16384
    """)
    poll(a, 33, 256)
    def loads(slot, zr=("s52", "s53"), wr=("s54", "s55"), z=True, w=True):
        r = RG + 32 * slot
        if w:
            a(f"buffer_load_dwordx4 v[{r+16}:{r+19}], v1, s[20:23], {wr[0]} offen sc1")
            a(f"buffer_load_dwordx4 v[{r+20}:{r+23}], v1, s[20:23], {wr[0]} offen offset:1024 sc1")
            a(f"buffer_load_dwordx4 v[{r+24}:{r+27}], v1, s[20:23], {wr[1]} offen sc1")
            a(f"buffer_load_dwordx4 v[{r+28}:{r+31}], v1, s[20:23], {wr[1]} offen offset:1024 sc1")
        if z:
            a(f"buffer_load_dwordx4 v[{r}:{r+3}], v1, s[20:23], {zr[0]} offen sc1")
            a(f"buffer_load_dwordx4 v[{r+4}:{r+7}], v1, s[20:23], {zr[0]} offen offset:1024 sc1")
            a(f"buffer_load_dwordx4 v[{r+8}:{r+11}], v1, s[20:23], {zr[1]} offen sc1")
            a(f"buffer_load_dwordx4 v[{r+12}:{r+15}], v1, s[20:23], {zr[1]} offen offset:1024 sc1")
    def addr(idx):
        if isinstance(idx, int): a(f"s_mov_b32 s28, {idx}"); idx = "s28"
        a(f"""
        s_lshl_b32 s29, {idx}, 13
        s_add_u32 s52, s44, s29
        s_add_u32 s53, s45, s29
        s_lshl_b32 s29, {idx}, 17
        s_add_u32 s54, s46, s29
        s_add_u32 s55, s47, s29
        """)
    def pick():
        l0 = a.newlabel("g_have"); l1 = a.newlabel("g_pl")
        a(f"""
        s_and_b32 s28, s56, s57
        s_cmp_lg_u32 s28, 0
        s_cbranch_scc1 {l0}
        s_mov_b32 s41, 0
        {l1}:
        buffer_load_dword v2, v3, s[20:23], s58 offen sc1
        s_waitcnt vmcnt(0)
        v_readfirstlane_b32 s57, v2
        s_and_b32 s28, s56, s57
        s_cmp_lg_u32 s28, 0
        s_cbranch_scc1 {l0}
        s_sleep 6
        s_add_u32 s41, s41, 1
        s_cmp_lt_u32 s41, 0x100000
        s_cbranch_scc1 {l1}
        s_mov_b32 s28, s56
        {l0}:
        s_ff1_i32_b32 s28, s28
        s_bitset0_b32 s56, s28
        """)
        addr("s28")
    def mm(slot):
        r = RG + 32 * slot
        for s in range(2):
            for m in range(2):
                for rg in range(2):
                    w = r + 16 + 8 * s + 4 * m; z = r + 8 * rg + 4 * s
                    acc = ACC + 16 * (2 * m + rg)
                    a(f"{MFMA} v[{acc}:{acc+15}], v[{w}:{w+3}], v[{z}:{z+3}], v[{acc}:{acc+15}]")
    for r in range(64): a(f"v_mov_b32 v{ACC+r}, 0")
    st7(a, 12, tv=28)
    a(f"""
    v_and_b32 v9, 31, v0
    s_lshl_b32 s28, s6, 6
    v_add_u32 v9, s28, v9
    v_lshlrev_b32 v4, 3, v9
    v_mov_b32 v3, 0
    s_mov_b32 s56, -1
    s_mov_b32 s57, 0
    s_lshl_b32 s58, s66, 8
    s_add_u32 s58, s58, {CNT_OFF}
    """)
    for sl in range(4):
        pick(); loads(sl)
    a("s_mov_b32 s48, 0")
    a.label("p3g_loop")
    for sl in range(4):
        a("s_waitcnt vmcnt(24)")
        mm(sl)
        pick(); loads(sl)
    a("""
    s_add_u32 s48, s48, 1
    s_cmp_lt_u32 s48, 7
    s_cbranch_scc1 p3g_loop
    """)
    for sl in range(4):
        a(f"s_waitcnt vmcnt({24 - 4*sl})")
        mm(sl)
        addr(32 + sl); loads(sl, z=False)
    poll(a, 32, 64)
    a(f"""
    s_mov_b32 s28, {G_OFF}
    buffer_load_dword v10, v4, s[20:23], s28 offen offset:4 sc1
    buffer_load_dword v11, v4, s[20:23], s28 offen offset:260 sc1
    s_waitcnt vmcnt(0)
    """)
    for m in range(2):
        for rg in range(2):
            for r in range(16): a(f"v_mul_f32 v{ACC+16*(2*m+rg)+r}, v{10+rg}, v{ACC+16*(2*m+rg)+r}")
    st7(a, 13, tv=28)
    poll(a, 16, 64, slp=4, sreg="s66")
    for sl in range(4):
        addr(32 + sl); loads(sl, w=False)
    for sl in range(4):
        a(f"s_waitcnt vmcnt({12 - 4*sl})")
        mm(sl)
    a("""
    s_lshl_b32 s28, s3, 14
    v_add_u32 v7, s28, v1
    s_nop 15
    s_barrier
    """)
    for bk in range(16): a(f"ds_write_b128 v7, v[{ACC+4*bk}:{ACC+4*bk+3}] offset:{bk*1024}")
    a("""
    s_waitcnt lgkmcnt(0)
    s_barrier
    s_lshl_b32 s28, s3, 12
    v_add_u32 v7, s28, v1
    """)
    for e in range(4):
        for w in range(4):
            d = 32 + 16 * e + 4 * w
            a(f"ds_read_b128 v[{d}:{d+3}], v7 offset:{w*16384 + e*1024}")
    a("""
    s_and_b32 s28, s3, 1
    s_lshl_b32 s28, s28, 5
    v_add_u32 v9, s28, v9
    v_lshlrev_b32 v9, 10, v9
    v_lshrrev_b32 v10, 5, v0
    v_lshl_add_u32 v9, v10, 3, v9
    s_lshl_b32 s28, s7, 7
    s_lshr_b32 s29, s3, 1
    s_lshl_b32 s29, s29, 6
    s_add_u32 s28, s28, s29
    """)
    for e in range(4):
        a(f"s_waitcnt lgkmcnt({4*(3-e)})")
        d = 32 + 16 * e
        for w in range(1, 4):
            for j in range(4): a(f"v_add_f32 v{d+j}, v{d+j}, v{d+4*w+j}")
        a(f"v_cvt_pk_bf16_f32 v{12+2*e}, v{d}, v{d+1}")
        a(f"v_cvt_pk_bf16_f32 v{13+2*e}, v{d+2}, v{d+3}")
        a(f"buffer_store_dwordx2 v[{12+2*e}:{13+2*e}], v9, s[16:19], s28 offen offset:{16*e}")
    if STAMP: a("s_waitcnt vmcnt(0)")
    st7(a, 14, real=True, tv=28)

if __name__ == "__main__":
    os.environ["NOSPLIT"] = "1"; os.environ["GSCALE"] = "1"
    if not os.environ.get("ROT"): os.environ["NOROT"] = "1"
    build([gen_k12], sys.argv[1] if len(sys.argv) > 1 else "out.s")
```
